```python
import torch

def _softmax(x, axis=-1):
    return torch.softmax(x, dim=axis)
def _gelu(x):
    return torch.nn.functional.gelu(x, approximate="tanh")
def _silu(x):
    return torch.nn.functional.silu(x)
def _sigmoid(x):
    return torch.sigmoid(x)
def _layernorm(x, axis=-1, eps=1e-5):
    m = x.mean(dim=axis, keepdim=True)
    v = x.var(dim=axis, keepdim=True, unbiased=False)
    return (x - m) / torch.sqrt(v + eps)
def _scatter_add(tgt, idx, src, axis=0):
    return tgt.clone().index_add_(axis, idx, src)
def _segment_sum(src, seg, n):
    out = torch.zeros((n,) + src.shape[1:], dtype=src.dtype)
    return out.index_add_(0, seg, src)
def _pad(x, pw):
    flat = tuple(v for pair in reversed(pw) for v in pair)
    return torch.nn.functional.pad(x, flat)

kernel_name = 'parallel_sum__mha_block_cached__mixer_channel_mlp__decode'

def setup_inputs():

    _w = (lambda a: (lambda t: t.to(torch.bfloat16) if t.is_floating_point() else t)(torch.as_tensor(a)))
    def _A_setup():
        B, Sq, D = 8, 1, 1024
        H, Sk, Dh = 32, 4096, 128
        return {
            "x": _w((lambda *s: torch.randn(*s, dtype=torch.bfloat16) * 0.05)(B, Sq, D)),
            "k_cache": _w((lambda *s: torch.randn(*s, dtype=torch.bfloat16) * 3.2)(B, H, Sk, Dh)),
            "v_cache": _w((lambda *s: torch.randn(*s, dtype=torch.bfloat16) * 0.4)(B, H, Sk, Dh)),
            "wq": _w((lambda *s: torch.randn(*s, dtype=torch.bfloat16) * 3.2)(D, H * Dh) * (D ** -0.5)),
            "wo": _w((lambda *s: torch.randn(*s, dtype=torch.bfloat16) * 0.4)(H * Dh, D) * ((H * Dh) ** -0.5)),
        }
    _A_in = _A_setup()

    def _B_setup():
        B, S, D, F = 8, 1, 1024, 3584
        return {
            "x": _w((lambda *s: torch.randn(*s, dtype=torch.bfloat16) * 0.05)(B, S, D)),
            "w1": _w((lambda *s: torch.randn(*s, dtype=torch.bfloat16) * 3.2)(D, F) * (D ** -0.5)),
            "b1": _w((lambda *s: torch.randn(*s, dtype=torch.bfloat16) * 1.6)(F)),
            "w2": _w((lambda *s: torch.randn(*s, dtype=torch.bfloat16) * 0.1)(F, D) * (F ** -0.5)),
            "b2": _w((lambda *s: torch.randn(*s, dtype=torch.bfloat16) * 0.1)(D)),
        }
    _B_in = _B_setup()

    return {
        "A_x": _A_in["x"],
        "A_k_cache": _A_in["k_cache"],
        "A_v_cache": _A_in["v_cache"],
        "A_wq": _A_in["wq"],
        "A_wo": _A_in["wo"],
        "B_x": _B_in["x"],
        "B_w1": _B_in["w1"],
        "B_b1": _B_in["b1"],
        "B_w2": _B_in["w2"],
        "B_b2": _B_in["b2"],
    }

def reference(A_x, A_k_cache, A_v_cache, A_wq, A_wo, B_x, B_w1, B_b1, B_w2, B_b2):
    def _A_ref(x, k_cache, v_cache, wq, wo):
        B, Sq, D = x.shape
        H, Dh = 32, 128
        q = (lambda x, *d: x.permute(*d))((x @ wq).reshape(B, Sq, H, Dh), 0, 2, 1, 3)
        scores = torch.einsum("bhqd,bhkd->bhqk", q, k_cache) * (Dh ** -0.5)
        p = _softmax(scores, axis=-1)
        o = torch.einsum("bhqk,bhkd->bhqd", p, v_cache)
        return (lambda x, *d: x.permute(*d))(o, 0, 2, 1, 3).reshape(B, Sq, H * Dh) @ wo

    def _B_ref(x, w1, b1, w2, b2):
        y = _layernorm(x, axis=-1)
        h = _gelu(torch.einsum("bsd,df->bsf", y, w1) + b1)
        return torch.einsum("bsf,fd->bsd", h, w2) + b2

    x = A_x
    xn = _layernorm(x, axis=-1)
    return x + _A_ref(xn, A_k_cache, A_v_cache, A_wq, A_wo) + _B_ref(xn, B_w1, B_b1, B_w2, B_b2)
```

```python
import sys, os

NAME = "parallel_sum__mha_block_cached__mixer_channel_mlp__decode"
KNAME = NAME + "_kernel"

OPT = dict(
    stream_flag="nt",
    w_flag="nt",
    ws_flag="",
    ts=False,
)

XD = 0
QP = 4096
OP = 6144
OD = 8192
SM = 10240
BC = 10304
PD = 12288
RED = 28672
AT = 45056
LDS_BYTES = 77824

HP = 0
MP = 0x80000
AP = 0x100000
WS_BYTES = 0x200000
TS_OFF = 0x300000

sK, sV, sW, sX, sWS, sDBG, sB, sO = 32, 36, 40, 44, 48, 52, 56, 60
S_W, S_B, S_H, S_ROLE, S_T1, S_T2, S_OFF, S_TMP = 64, 65, 66, 67, 68, 69, 70, 71
S_ODD, S_TWO = 80, 82
S_RL = 86
S_SELLO, S_SELHI, S_HIM = 90, 91, 92
S_TS = 94


def srd(n):
    return f"s[{n}:{n+3}]"


def vr(a, n=4):
    return f"v[{a}:{a+n-1}]"


def ar(a, n=4):
    return f"a[{a}:{a+n-1}]"


V_LANE, V_G, V_C, V_KV, V_WQ, V_W2K, V_W1, V_L16 = 1, 2, 3, 4, 5, 6, 7, 8
V_DUPX, V_DUPP, V_DUPO, V_JOB, V_PDW, V_DW, V_REDW = 9, 10, 11, 12, 13, 14, 15
V_T16, V_ZERO, V_L32, V_OUTW, V_JST, V_L8 = 16, 17, 18, 19, 20, 21
V_M, V_TA, V_TB, V_TC, V_TD = 22, 23, 24, 25, 26
V_ACC = 32
V_B1 = 36
V_POLLB, V_POLLA = 38, 39
V_D = 40
V_DUP = 56
V_FRAG = 64
V_MASK = 72
V_Q = 76
V_S = 80
V_A = 96
V_R = 112
V_WIN = 128
DEPTH = 32


class G:
    def __init__(self):
        self.L = []
        self.vm = {"C": [], "A": [], "B": []}
        self.role = "C"
        self.nlab = 0

    def e(self, s):
        for ln in s.split("\n"):
            self.L.append("  " + ln.strip())

    def lab(self, l):
        self.L.append(l + ":")

    def newlab(self, p="L"):
        self.nlab += 1
        return f"{p}_{self.nlab}"

    def nop(self, n):
        while n > 0:
            k = min(n, 16)
            self.e(f"s_nop {k-1}")
            n -= k

    def _roles(self):
        return list(self.vm.keys()) if self.role == "C" else [self.role]

    def vissue(self, instr, tag):
        worst = max(len(self.vm[r]) for r in self._roles())
        if worst >= 63:
            self._wait_n(61)
        self.e(instr)
        for r in self._roles():
            self.vm[r].append(tag)

    def _wait_n(self, n):
        self.e(f"s_waitcnt vmcnt({n})")
        for r in self._roles():
            self.vm[r] = self.vm[r][len(self.vm[r]) - n:] if n > 0 and len(self.vm[r]) > n else (self.vm[r] if n > 0 else [])

    def vwait(self, tag):
        f = self.vm[self.role]
        if tag not in f:
            return
        n = len(f) - 1 - f.index(tag)
        self._wait_n(n)

    def vwait_all(self):
        self._wait_n(0)

    def wave_reduce(self, T, op):
        for r in (8, 4, 2, 1):
            self.nop(2)
            self.e(f"v_{op}_f32_dpp v{T}, v{T}, v{T} row_ror:{r} row_mask:0xf bank_mask:0xf")
        self.nop(1)
        for i in range(4):
            self.e(f"v_readlane_b32 s{S_RL+i}, v{T}, {16*i}")
        self.nop(2)
        self.e(f"v_mov_b32 v{T}, s{S_RL}")
        for i in range(1, 4):
            self.e(f"v_{op}_f32 v{T}, s{S_RL+i}, v{T}")

    def bf16r(self, dst, src):
        self.e(f"v_cvt_pk_bf16_f32 v{dst}, v{src}, v{src}")
        self.e(f"v_lshlrev_b32 v{dst}, 16, v{dst}")

    def layernorm(self, P, DST, E, T):
        e = self.e
        for j in range(8):
            e(f"v_lshlrev_b32 v{E+2*j}, 16, v{P+j}")
            e(f"v_and_b32 v{E+2*j+1}, s{S_HIM}, v{P+j}")
        e(f"v_add_f32 v{T}, v{E}, v{E+1}")
        e(f"v_add_f32 v{T+1}, v{E+2}, v{E+3}")
        e(f"v_add_f32 v{T+2}, v{E+4}, v{E+5}")
        e(f"v_add_f32 v{T+3}, v{E+6}, v{E+7}")
        for j in range(4):
            e(f"v_add_f32 v{T+j}, v{T+j}, v{E+8+2*j}")
            e(f"v_add_f32 v{T+j}, v{T+j}, v{E+9+2*j}")
        e(f"v_add_f32 v{T}, v{T}, v{T+1}")
        e(f"v_add_f32 v{T+2}, v{T+2}, v{T+3}")
        e(f"v_add_f32 v{T}, v{T}, v{T+2}")
        self.wave_reduce(T, "add")
        e(f"v_mul_f32 v{T}, 0x3a800000, v{T}")
        self.bf16r(T + 1, T)
        e(f"v_mov_b32 v{T+2}, 0")
        e(f"v_mov_b32 v{T+3}, 0")
        for j in range(16):
            e(f"v_sub_f32 v{T+4+(j&1)}, v{E+j}, v{T}")
            e(f"v_fmac_f32 v{T+2+(j&1)}, v{T+4+(j&1)}, v{T+4+(j&1)}")
        e(f"v_add_f32 v{T+2}, v{T+2}, v{T+3}")
        self.wave_reduce(T + 2, "add")
        e(f"v_mul_f32 v{T+2}, 0x3a800000, v{T+2}")
        self.bf16r(T + 2, T + 2)
        e(f"v_add_f32 v{T+2}, 0x3727c5ac, v{T+2}")
        self.bf16r(T + 2, T + 2)
        e(f"v_sqrt_f32 v{T+2}, v{T+2}")
        self.nop(1)
        self.bf16r(T + 2, T + 2)
        e(f"v_rcp_f32 v{T+3}, v{T+2}")
        self.nop(1)
        for j in range(8):
            a, b = E + 2 * j, E + 2 * j + 1
            e(f"v_sub_f32 v{a}, v{a}, v{T+1}")
            e(f"v_sub_f32 v{b}, v{b}, v{T+1}")
            e(f"v_cvt_pk_bf16_f32 v{T+4}, v{a}, v{b}")
            e(f"v_lshlrev_b32 v{a}, 16, v{T+4}")
            e(f"v_and_b32 v{b}, s{S_HIM}, v{T+4}")
            e(f"v_mul_f32 v{T+4}, v{a}, v{T+3}")
            e(f"v_mul_f32 v{T+5}, v{b}, v{T+3}")
            e(f"v_fma_f32 v{T+6}, -v{T+4}, v{T+2}, v{a}")
            e(f"v_fma_f32 v{T+7}, -v{T+5}, v{T+2}, v{b}")
            e(f"v_fmac_f32 v{T+4}, v{T+6}, v{T+3}")
            e(f"v_fmac_f32 v{T+5}, v{T+7}, v{T+3}")
            e(f"v_cvt_pk_bf16_f32 v{DST+j}, v{T+4}, v{T+5}")

    def write_dup_row(self, P, E, vaddr, base):
        for j in range(8):
            self.e(f"v_perm_b32 v{E+2*j}, v{P+j}, v{P+j}, s{S_SELLO}")
            self.e(f"v_perm_b32 v{E+2*j+1}, v{P+j}, v{P+j}, s{S_SELHI}")
        for k in range(4):
            off = base + (k >> 1) * 2048 + (k & 1) * 16
            self.e(f"ds_write_b128 v{vaddr}, {vr(E+4*k)} offset:{off}")

    def frag(self, fr, dup):
        for j in range(4):
            self.e(f"v_and_b32 v{fr+j}, v{dup}, v{V_MASK+j}")

    def mfma(self, D, fr, B):
        self.e(f"v_mfma_f32_16x16x32_bf16 {vr(D)}, {vr(fr)}, {B}, {vr(D)}")


def build(opt=None):
    o = dict(OPT)
    if opt:
        o.update(opt)
    SF, WF, WSF = o["stream_flag"], o["w_flag"], o["ws_flag"]
    g = G()
    e = g.e

    def ts(i):
        if o["ts"]:
            e(f"s_memrealtime s[{S_TS+2*i}:{S_TS+2*i+1}]")

    e("s_cmp_ge_u32 s2, 256")
    e("s_cbranch_scc1 L_done")
    e("s_load_dwordx16 s[4:19], s[0:1], 0")
    e("s_load_dwordx8 s[20:27], s[0:1], 64")
    e("s_load_dwordx2 s[28:29], s[0:1], 96")
    ts(0)
    e(f"v_and_b32 v{V_LANE}, 63, v0")
    e(f"v_lshrrev_b32 v{V_TA}, 6, v0")
    e(f"v_lshrrev_b32 v{V_G}, 4, v{V_LANE}")
    e(f"v_readfirstlane_b32 s{S_W}, v{V_TA}")
    e(f"v_and_b32 v{V_C}, 15, v{V_LANE}")
    e(f"v_lshlrev_b32 v{V_L16}, 4, v{V_LANE}")
    e(f"v_lshlrev_b32 v{V_L32}, 5, v{V_LANE}")
    e(f"v_lshlrev_b32 v{V_L8}, 3, v{V_LANE}")
    e(f"v_lshlrev_b32 v{V_T16}, 4, v0")
    e(f"v_mov_b32 v{V_ZERO}, 0")
    e(f"v_lshlrev_b32 v{V_TB}, 4, v{V_C}")
    e(f"v_lshl_add_u32 v{V_KV}, v{V_TA}, 12, v{V_L16}")
    e(f"v_lshl_add_u32 v{V_WQ}, v{V_G}, 15, v{V_TB}")
    e(f"v_lshl_add_u32 v{V_W2K}, v{V_G}, 13, v{V_TB}")
    e(f"v_mul_u32_u24 v{V_W1}, 28672, v{V_G}")
    e(f"v_add_u32 v{V_W1}, v{V_W1}, v{V_TB}")
    e(f"s_and_b32 s{S_H}, s2, 31")
    e(f"s_lshr_b32 s{S_B}, s2, 5")
    e(f"s_mov_b32 s{S_SELLO}, 0x01000100")
    e(f"s_mov_b32 s{S_SELHI}, 0x03020302")
    e(f"s_mov_b32 s{S_HIM}, 0xffff0000")
    e(f"s_mov_b32 s{S_ODD}, 0xaaaaaaaa")
    e(f"s_mov_b32 s{S_ODD+1}, 0xaaaaaaaa")
    e(f"s_mov_b32 s{S_TWO}, 0xcccccccc")
    e(f"s_mov_b32 s{S_TWO+1}, 0xcccccccc")
    e("s_lshr_b32 s72, s2, 3")
    e("s_and_b32 s73, s2, 7")
    e("s_mul_i32 s73, s73, 14")
    e("s_add_u32 s74, s73, s72")
    e("s_sub_u32 s75, s74, 14")
    e(f"s_mov_b32 s{S_ROLE}, 0")
    e(f"s_and_b32 s{S_T1}, s74, 3")
    e(f"s_lshr_b32 s{S_T2}, s74, 2")
    e("s_cmp_lt_u32 s72, 14")
    e(f"s_cselect_b32 s{S_ROLE}, 1, 0")
    e("s_cbranch_scc1 L_role_done")
    e("s_cmp_lt_u32 s72, 28")
    e(f"s_cselect_b32 s{S_ROLE}, 2, 0")
    e(f"s_lshr_b32 s{S_T1}, s75, 3")
    e(f"s_and_b32 s{S_T2}, s75, 7")
    g.lab("L_role_done")
    e("s_waitcnt lgkmcnt(0)")
    e("s_lshl_b32 s72, s2, 20")
    e(f"s_add_u32 s{sK}, s6, s72\ns_addc_u32 s{sK+1}, s7, 0\ns_mov_b32 s{sK+2}, 0x100000\ns_mov_b32 s{sK+3}, 0x00020000")
    e(f"s_add_u32 s{sV}, s8, s72\ns_addc_u32 s{sV+1}, s9, 0\ns_mov_b32 s{sV+2}, 0x100000\ns_mov_b32 s{sV+3}, 0x00020000")
    e(f"s_mov_b32 s{sX}, s4\ns_mov_b32 s{sX+1}, s5\ns_mov_b32 s{sX+2}, 16384\ns_mov_b32 s{sX+3}, 0x00020000")
    e(f"s_lshl_b32 s{S_TMP}, s{S_B}, 11")
    g.vissue(f"buffer_load_dwordx4 {vr(V_D)}, v{V_L16}, {srd(sX)}, s{S_TMP} offen", "x0")
    g.vissue(f"buffer_load_dwordx4 {vr(V_D+4)}, v{V_L16}, {srd(sX)}, s{S_TMP} offen offset:1024", "x1")
    e(f"s_mov_b32 s{S_OFF}, 0")

    def stream_issue(L):
        if L >= 512:
            return
        if L == 256:
            e(f"s_mov_b32 s{S_OFF}, 0")
        sd = sK if L < 256 else sV
        slot = V_WIN + 4 * (L % DEPTH)
        g.vissue(f"buffer_load_dwordx4 {vr(slot)}, v{V_KV}, {srd(sd)}, s{S_OFF} offen offset:{(L&3)*1024} {SF}", f"S{L}")
        if L & 3 == 3:
            e(f"s_add_u32 s{S_OFF}, s{S_OFF}, 16384")

    for L in range(16):
        stream_issue(L)
    e(f"s_lshl_b32 s72, s{S_W}, 21")
    e(f"s_lshl_b32 s73, s{S_H}, 8")
    e("s_add_u32 s72, s72, s73")
    e(f"s_add_u32 s{sW}, s10, s72\ns_addc_u32 s{sW+1}, s11, 0")
    e(f"s_sub_u32 s{sW+2}, 0x800000, s72\ns_mov_b32 s{sW+3}, 0x00020000")

    def wq_issue(i):
        e(f"s_mov_b32 s{S_TMP}, {(16*(i>>2)+(i&3))*8192}")
        g.vissue(f"buffer_load_dwordx4 {ar(4*i)}, v{V_WQ}, {srd(sW)}, s{S_TMP} offen {WSF}", f"wq{i}")

    for i in range(44):
        wq_issue(i)
    e(f"s_mov_b32 s{sWS}, s28\ns_mov_b32 s{sWS+1}, s29\ns_mov_b32 s{sWS+2}, {WS_BYTES}\ns_mov_b32 s{sWS+3}, 0x00020000")
    e(f"s_mov_b32 s{sDBG}, s26\ns_mov_b32 s{sDBG+1}, s27\ns_mov_b32 s{sDBG+2}, 256\ns_mov_b32 s{sDBG+3}, 0x00020000")
    e(f"s_mov_b32 s{sO}, s24\ns_mov_b32 s{sO+1}, s25\ns_mov_b32 s{sO+2}, 16384\ns_mov_b32 s{sO+3}, 0x00020000")
    e(f"v_and_b32 v{V_TA}, 1, v{V_C}")
    e(f"v_lshlrev_b32 v{V_TA}, 4, v{V_TA}")
    e(f"v_mov_b32 v{V_TB}, 0xffff")
    e(f"v_lshlrev_b32 v{V_TB}, v{V_TA}, v{V_TB}")
    e(f"v_bfe_u32 v{V_TA}, v{V_C}, 1, 2")
    for j in range(4):
        e(f"v_cmp_eq_u32 vcc, {j}, v{V_TA}")
        g.nop(2)
        e(f"v_cndmask_b32 v{V_MASK+j}, 0, v{V_TB}, vcc")
    e(f"v_lshrrev_b32 v{V_TC}, 6, v0")
    e(f"v_lshlrev_b32 v{V_TA}, 4, v{V_G}")
    e(f"v_lshl_add_u32 v{V_DUPX}, v{V_TC}, 10, v{V_TA}")
    e(f"v_lshl_add_u32 v{V_DUPP}, v{V_TC}, 12, v{V_TA}")
    e(f"v_lshl_add_u32 v{V_DUPO}, v{V_TC}, 9, v{V_TA}")
    e(f"v_lshrrev_b32 v{V_TB}, 3, v{V_C}")
    e(f"v_lshl_add_u32 v{V_JOB}, v{V_TB}, 12, v{V_TA}")
    e(f"v_lshl_add_u32 v{V_JOB}, v{V_TC}, 8, v{V_JOB}")
    e(f"v_add_u32 v{V_JOB}, {AT}, v{V_JOB}")
    e(f"v_bfe_u32 v{V_TB}, v{V_C}, 1, 1")
    e(f"v_lshl_add_u32 v{V_PDW}, v{V_TB}, 7, v{V_DUPP}")
    e(f"v_and_b32 v{V_TB}, 1, v{V_C}")
    e(f"v_lshl_add_u32 v{V_PDW}, v{V_TB}, 6, v{V_PDW}")
    e(f"v_bfe_u32 v{V_TB}, v{V_C}, 2, 1")
    e(f"v_lshl_add_u32 v{V_PDW}, v{V_TB}, 3, v{V_PDW}")
    e(f"v_lshrrev_b32 v{V_TB}, 3, v{V_C}")
    e(f"v_lshl_add_u32 v{V_PDW}, v{V_TB}, 2, v{V_PDW}")
    e(f"v_and_b32 v{V_TB}, 1, v{V_G}")
    e(f"v_lshlrev_b32 v{V_TB}, 4, v{V_TB}")
    e(f"v_lshl_add_u32 v{V_TB}, v{V_C}, 5, v{V_TB}")
    e(f"v_lshl_add_u32 v{V_DW}, v{V_TC}, 9, v{V_TB}")
    e(f"v_lshl_add_u32 v{V_OUTW}, v{V_TC}, 10, v{V_TB}")
    e(f"v_lshrrev_b32 v{V_TA}, 1, v{V_G}")
    e(f"v_lshl_add_u32 v{V_REDW}, v{V_TA}, 9, v{V_TB}")
    e(f"v_lshl_add_u32 v{V_REDW}, v{V_TC}, 12, v{V_REDW}")

    g.vwait("x1")
    g.layernorm(V_D, V_R + 8, V_A, V_R)
    g.write_dup_row(V_R + 8, V_A, V_L32, XD)
    for i in range(44, 64):
        wq_issue(i)
    for L in range(16, 32):
        stream_issue(L)
    for j in range(4):
        e(f"v_mov_b32 v{V_ACC+j}, 0")
    e("s_waitcnt lgkmcnt(0)")
    e(f"ds_read_b128 {vr(V_DUP)}, v{V_DUPX} offset:{XD}")
    for i4 in range(16):
        cur = V_DUP + 4 * (i4 & 1)
        nxt = V_DUP + 4 * ((i4 + 1) & 1)
        e("s_waitcnt lgkmcnt(0)")
        if i4 < 15:
            e(f"ds_read_b128 {vr(nxt)}, v{V_DUPX} offset:{XD + (i4+1)*64}")
        for ii in range(4):
            i = 4 * i4 + ii
            fr = V_FRAG + 4 * (i & 1)
            g.frag(fr, cur + ii)
            g.vwait(f"wq{i}")
            g.nop(2)
            g.mfma(V_ACC, fr, ar(4 * i))
    g.nop(10)
    e(f"ds_write_b128 v{V_DW}, {vr(V_ACC)} offset:{QP}")
    e("s_waitcnt lgkmcnt(0)")
    e("s_barrier")
    e(f"v_lshlrev_b32 v{V_TA}, 5, v{V_C}")
    for w in range(4):
        e(f"ds_read_b128 {vr(V_A+8*w)}, v{V_TA} offset:{QP + w*512}")
        e(f"ds_read_b128 {vr(V_A+8*w+4)}, v{V_TA} offset:{QP + w*512 + 16}")

    lb = g.newlab("L_r1")
    le = g.newlab("L_r1e")
    e(f"s_cmp_eq_u32 s{S_ROLE}, 1")
    e(f"s_cbranch_scc0 {lb}")
    g.role = "A"
    e(f"s_lshl_b32 s72, s{S_T1}, 2\ns_add_u32 s72, s72, s{S_W}\ns_mul_i32 s72, s72, {64*7168}")
    e(f"s_lshl_b32 s73, s{S_T2}, 8\ns_add_u32 s72, s72, s73")
    e(f"s_add_u32 s{sW}, s16, s72\ns_addc_u32 s{sW+1}, s17, 0\ns_sub_u32 s{sW+2}, {1024*7168}, s72")
    for i in range(16):
        e(f"s_mov_b32 s{S_TMP}, {(16*(i>>2)+(i&3))*7168}")
        g.vissue(f"buffer_load_dwordx4 {ar(4*i)}, v{V_W1}, {srd(sW)}, s{S_TMP} offen {WF}", f"jt{i}")
    e(f"s_lshl_b32 s{S_TMP}, s{S_W}, 12")
    for k in range(4):
        g.vissue(f"buffer_load_dwordx4 {vr(V_D+4*k)}, v{V_L16}, {srd(sX)}, s{S_TMP} offen offset:{k*1024}", f"jx{k}")
    e(f"s_branch {le}")
    g.role = "C"
    g.lab(lb)
    e(f"s_cmp_eq_u32 s{S_ROLE}, 2")
    e(f"s_cbranch_scc0 {le}")
    g.role = "B"
    e(f"s_lshl_b32 s72, s{S_T1}, 2\ns_add_u32 s72, s72, s{S_W}\ns_lshl_b32 s72, s72, 17")
    e(f"s_lshl_b32 s73, s{S_T2}, 8\ns_add_u32 s72, s72, s73")
    e(f"s_add_u32 s{sW}, s20, s72\ns_addc_u32 s{sW+1}, s21, 0\ns_sub_u32 s{sW+2}, {3584*2048}, s72")
    for i in range(16):
        e(f"s_mov_b32 s{S_TMP}, {(16*(i>>2)+(i&3))*2048}")
        g.vissue(f"buffer_load_dwordx4 {ar(4*i)}, v{V_W2K}, {srd(sW)}, s{S_TMP} offen {WF}", f"jt{i}")
    g.role = "C"
    g.lab(le)

    e("s_waitcnt lgkmcnt(0)")
    for j in range(8):
        e(f"v_add_f32 v{V_A+j}, v{V_A+j}, v{V_A+8+j}")
        e(f"v_add_f32 v{V_A+16+j}, v{V_A+16+j}, v{V_A+24+j}")
    for j in range(8):
        e(f"v_add_f32 v{V_A+j}, v{V_A+j}, v{V_A+16+j}")
    for j in range(4):
        e(f"v_cvt_pk_bf16_f32 v{V_Q+j}, v{V_A+2*j}, v{V_A+2*j+1}")
    ts(1)

    def job_mfma_and_store(role):
        for j in range(16):
            e(f"v_mov_b32 v{V_D+j}, 0")
        seq = [(i4, pr) for i4 in range(4) for pr in range(4)]
        e(f"ds_read_b128 {vr(V_DUP)}, v{V_JOB} offset:0")
        for n, (i4, pr) in enumerate(seq):
            cur = V_DUP + 4 * (n & 1)
            nxt = V_DUP + 4 * ((n + 1) & 1)
            e("s_waitcnt lgkmcnt(0)")
            if n + 1 < len(seq):
                i4n, prn = seq[n + 1]
                e(f"ds_read_b128 {vr(nxt)}, v{V_JOB} offset:{prn*8192 + i4n*64}")
            for ii in range(4):
                i = 4 * i4 + ii
                fr = V_FRAG + 4 * (ii & 1)
                g.frag(fr, cur + ii)
                g.vwait(f"jt{i}")
                g.nop(2)
                g.mfma(V_D + 4 * pr, fr, ar(4 * i))
        g.nop(10)
        for pr in range(4):
            e(f"ds_write_b128 v{V_REDW}, {vr(V_D+4*pr)} offset:{RED + pr*1024}")
        e("s_waitcnt lgkmcnt(0)")
        e("s_barrier")
        for w in range(4):
            e(f"ds_read_b128 {vr(V_D+4*w)}, v{V_T16} offset:{RED + w*4096}")
        rowb = 3584 * 4 if role == "A" else 1024 * 4
        e(f"v_lshrrev_b32 v{V_TA}, 5, v0")
        e(f"v_mul_u32_u24 v{V_TA}, {rowb}, v{V_TA}")
        e(f"v_and_b32 v{V_TB}, 31, v0")
        e(f"v_lshl_add_u32 v{V_JST}, v{V_TB}, 4, v{V_TA}")
        e(f"s_mul_i32 s{S_TMP}, s{S_T1}, {8*rowb}")
        e(f"s_lshl_b32 s72, s{S_T2}, 9")
        e(f"s_add_u32 s{S_TMP}, s{S_TMP}, s72")
        e(f"s_add_u32 s{S_TMP}, s{S_TMP}, {HP if role == 'A' else MP}")
        e("s_waitcnt lgkmcnt(0)")
        for j in range(4):
            e(f"v_add_f32 v{V_D+j}, v{V_D+j}, v{V_D+4+j}")
            e(f"v_add_f32 v{V_D+8+j}, v{V_D+8+j}, v{V_D+12+j}")
        for j in range(4):
            e(f"v_add_f32 v{V_D+j}, v{V_D+j}, v{V_D+8+j}")
        g.vissue(f"buffer_store_dwordx4 {vr(V_D)}, v{V_JST}, {srd(sWS)}, s{S_TMP} offen sc1", "jst")

    def job_signal(role, off):
        lb = g.newlab("L_sig")
        e(f"s_cmp_eq_u32 s{S_ROLE}, {1 if role == 'A' else 2}")
        e(f"s_cbranch_scc0 {lb}")
        g.role = role
        g.vwait("jst")
        e("s_barrier")
        e(f"s_cmp_eq_u32 s{S_W}, 0")
        e(f"s_cbranch_scc0 {lb}")
        e("s_mov_b64 exec, 1")
        e(f"v_mov_b32 v{V_TA}, 1")
        e(f"buffer_atomic_add v{V_TA}, v{V_ZERO}, {srd(sDBG)}, 0 offen offset:{off}")
        e("s_mov_b64 exec, -1")
        g.role = "C"
        g.lab(lb)

    def poll_check(vreg, off, target):
        ok = g.newlab("L_ok")
        sp = g.newlab("L_spin")
        e(f"v_readfirstlane_b32 s72, v{vreg}")
        g.nop(1)
        e(f"s_cmp_ge_u32 s72, {target}")
        e(f"s_cbranch_scc1 {ok}")
        e("s_mov_b32 s73, 0")
        g.lab(sp)
        e("s_add_u32 s73, s73, 1")
        e("s_cmp_ge_u32 s73, 0x40000")
        e(f"s_cbranch_scc1 {ok}")
        e("s_sleep 4")
        e(f"buffer_load_dword v{vreg}, v{V_ZERO}, {srd(sDBG)}, 0 offen offset:{off} sc1")
        e("s_waitcnt vmcnt(0)")
        e(f"v_readfirstlane_b32 s72, v{vreg}")
        g.nop(1)
        e(f"s_cmp_ge_u32 s72, {target}")
        e(f"s_cbranch_scc0 {sp}")
        g.lab(ok)

    for beta in range(16):
        for t in range(16):
            L = 16 * beta + t
            slot = V_WIN + 4 * (L % DEPTH)
            g.vwait(f"S{L}")
            e(f"v_dot2_f32_bf16 v{V_A+t}, v{slot}, v{V_Q}, 0")
            for j in range(1, 4):
                e(f"v_dot2_f32_bf16 v{V_A+t}, v{slot+j}, v{V_Q+j}, v{V_A+t}")
            stream_issue(L + DEPTH)
        g.nop(3)
        for p in range(8):
            e(f"v_add_f32_dpp v{V_R+p}, v{V_A+2*p}, v{V_A+2*p} row_ror:8 row_mask:0xf bank_mask:0x3")
            e(f"v_add_f32_dpp v{V_R+p}, v{V_A+2*p+1}, v{V_A+2*p+1} row_ror:8 row_mask:0xf bank_mask:0xc")
        for p in range(4):
            e(f"v_add_f32_dpp v{V_R+8+p}, v{V_R+2*p}, v{V_R+2*p} row_shl:4 row_mask:0xf bank_mask:0x5")
            e(f"v_add_f32_dpp v{V_R+8+p}, v{V_R+2*p+1}, v{V_R+2*p+1} row_shr:4 row_mask:0xf bank_mask:0xa")
        g.nop(1)
        for p in range(4):
            e(f"v_add_f32_dpp v{V_R+12+p}, v{V_R+8+p}, v{V_R+8+p} quad_perm:[1,0,3,2] row_mask:0xf bank_mask:0xf")
        for p in range(2):
            e(f"v_cndmask_b32 v{V_R+p}, v{V_R+12+2*p}, v{V_R+13+2*p}, s[{S_ODD}:{S_ODD+1}]")
        g.nop(1)
        for p in range(2):
            e(f"v_add_f32_dpp v{V_R+2+p}, v{V_R+p}, v{V_R+p} quad_perm:[2,3,0,1] row_mask:0xf bank_mask:0xf")
        e(f"v_cndmask_b32 v{V_R}, v{V_R+2}, v{V_R+3}, s[{S_TWO}:{S_TWO+1}]")
        g.bf16r(V_R, V_R)
        e(f"v_mul_f32 v{V_R}, 0x3db504f3, v{V_R}")
        g.bf16r(V_S + beta, V_R)

        if beta == 2:
            lb = g.newlab("L_a2")
            e(f"s_cmp_eq_u32 s{S_ROLE}, 1")
            e(f"s_cbranch_scc0 {lb}")
            g.role = "A"
            g.vwait("jx3")
            e(f"s_lshl_b32 s72, s{S_W}, 13")
            e(f"s_add_u32 s72, s72, {AT}")
            e(f"v_add_u32 v{V_TD}, s72, v{V_L32}")
            for rr in range(2):
                g.layernorm(V_D + 8 * rr, V_R + 8, V_A, V_R)
                g.layernorm(V_R + 8, V_R + 8, V_A, V_R)
                g.write_dup_row(V_R + 8, V_A, V_TD, rr * 4096)
            e(f"s_lshl_b32 s72, s{S_T1}, 10")
            e(f"v_add_u32 v{V_JOB}, s72, v{V_JOB}")
            e("s_waitcnt lgkmcnt(0)")
            e("s_barrier")
            job_mfma_and_store("A")
            g.role = "C"
            g.lab(lb)
        if beta == 4:
            job_signal("A", 0)
        if beta == 12:
            lb = g.newlab("L_b2")
            e(f"s_cmp_eq_u32 s{S_ROLE}, 2")
            e(f"s_cbranch_scc0 {lb}")
            g.role = "B"
            g.vissue(f"buffer_load_dword v{V_POLLA}, v{V_ZERO}, {srd(sDBG)}, 0 offen offset:0 sc1", "pollA")
            g.role = "C"
            g.lab(lb)

    ts(2)
    lb = g.newlab("L_b3")
    e(f"s_cmp_eq_u32 s{S_ROLE}, 2")
    e(f"s_cbranch_scc0 {lb}")
    g.role = "B"
    g.vwait("pollA")
    poll_check(V_POLLA, 0, 112)
    e(f"s_mul_i32 s72, s{S_W}, {2*3584*4}")
    e(f"s_lshl_b32 s73, s{S_T1}, 10")
    e(f"s_add_u32 s72, s72, s73")
    for bb in range(2):
        for kq in range(4):
            e(f"s_add_u32 s{S_TMP}, s72, {HP + (kq*8+bb)*3584*4}")
            g.vissue(f"buffer_load_dwordx4 {vr(V_A+(bb*4+kq)*4)}, v{V_L16}, {srd(sWS)}, s{S_TMP} offen sc1", f"hp{bb*4+kq}")
    e(f"s_mov_b32 s{sB}, s18\ns_mov_b32 s{sB+1}, s19\ns_mov_b32 s{sB+2}, 7168\ns_mov_b32 s{sB+3}, 0x00020000")
    e(f"s_lshl_b32 s{S_TMP}, s{S_T1}, 9")
    g.vissue(f"buffer_load_dwordx2 {vr(V_B1,2)}, v{V_L8}, {srd(sB)}, s{S_TMP} offen", "b1")
    g.role = "C"
    g.lab(lb)

    LOG2E = "0x3fb8aa3b"
    e(f"v_max3_f32 v{V_M}, v{V_S}, v{V_S+1}, v{V_S+2}")
    for k in range(3, 15, 2):
        e(f"v_max3_f32 v{V_M}, v{V_M}, v{V_S+k}, v{V_S+k+1}")
    e(f"v_max_f32 v{V_M}, v{V_M}, v{V_S+15}")
    g.wave_reduce(V_M, "max")
    e(f"v_mov_b32 v{V_TA}, 0")
    for k in range(16):
        t = V_TB + (k & 1)
        e(f"v_sub_f32 v{t}, v{V_S+k}, v{V_M}")
        e(f"v_mul_f32 v{t}, {LOG2E}, v{t}")
        e(f"v_exp_f32 v{t}, v{t}")
        g.nop(1)
        e(f"v_add_f32 v{V_TA}, v{V_TA}, v{t}")
    g.wave_reduce(V_TA, "add")
    e(f"v_mov_b32 v{V_TB}, v{V_M}")
    e(f"v_mov_b32 v{V_TC}, v{V_TA}")
    e(f"s_lshl_b32 s72, s{S_W}, 3")
    e(f"v_mov_b32 v{V_TD}, s72")
    e(f"ds_write_b64 v{V_TD}, v[{V_TB}:{V_TC}] offset:{SM}")
    e("s_waitcnt lgkmcnt(0)")
    e("s_barrier")
    e(f"ds_read_b128 {vr(V_DUP)}, v{V_ZERO} offset:{SM}")
    e(f"ds_read_b128 {vr(V_DUP+4)}, v{V_ZERO} offset:{SM+16}")
    e("s_waitcnt lgkmcnt(0)")
    e(f"v_max3_f32 v{V_M}, v{V_DUP}, v{V_DUP+2}, v{V_DUP+4}")
    e(f"v_max_f32 v{V_M}, v{V_M}, v{V_DUP+6}")
    e(f"v_mov_b32 v{V_TA}, 0")
    for w in range(4):
        e(f"v_sub_f32 v{V_TB}, v{V_DUP+2*w}, v{V_M}")
        e(f"v_mul_f32 v{V_TB}, {LOG2E}, v{V_TB}")
        e(f"v_exp_f32 v{V_TB}, v{V_TB}")
        g.nop(1)
        e(f"v_fmac_f32 v{V_TA}, v{V_TB}, v{V_DUP+2*w+1}")
    e(f"v_rcp_f32 v{V_TB}, v{V_TA}")
    g.nop(1)
    e(f"v_fma_f32 v{V_TC}, -v{V_TA}, v{V_TB}, 1.0")
    e(f"v_fmac_f32 v{V_TB}, v{V_TC}, v{V_TB}")
    for k in range(16):
        t = V_FRAG + (k & 3)
        e(f"v_sub_f32 v{t}, v{V_S+k}, v{V_M}")
        e(f"v_mul_f32 v{t}, {LOG2E}, v{t}")
        e(f"v_exp_f32 v{t}, v{t}")
        g.nop(1)
        e(f"v_mul_f32 v{t}, v{t}, v{V_TB}")
        e(f"v_cvt_pk_bf16_f32 v{t}, v{t}, v{t}")
        e(f"ds_write_b32 v{V_PDW}, v{t} offset:{PD + k*256}")
    for j in range(4):
        e(f"v_mov_b32 v{V_ACC+j}, 0")
    e("s_waitcnt lgkmcnt(0)")
    e(f"ds_read_b128 {vr(V_DUP)}, v{V_DUPP} offset:{PD}")

    def wo_srd():
        e(f"s_lshl_b32 s72, s{S_H}, 18")
        e(f"s_lshl_b32 s73, s{S_W}, 9")
        e("s_add_u32 s72, s72, s73")
        e(f"s_add_u32 s{sW}, s12, s72\ns_addc_u32 s{sW+1}, s13, 0\ns_sub_u32 s{sW+2}, 0x800000, s72")

    def wo_issue(k):
        blk, i = k >> 5, k & 31
        e(f"s_mov_b32 s{S_TMP}, {(16*(i>>2)+(i&3))*2048}")
        g.vissue(f"buffer_load_dwordx4 {ar(4*k)}, v{V_W2K}, {srd(sW)}, s{S_TMP} offen offset:{blk*256} {WSF}", f"wo{k}")

    for n in range(64):
        cur = V_DUP + 4 * (n & 1)
        nxt = V_DUP + 4 * ((n + 1) & 1)
        e("s_waitcnt lgkmcnt(0)")
        if n < 63:
            e(f"ds_read_b128 {vr(nxt)}, v{V_DUPP} offset:{PD + (n+1)*64}")
        for d in range(4):
            L = 256 + 4 * n + d
            slot = V_WIN + 4 * (L % DEPTH)
            fr = V_FRAG + 4 * (d & 1)
            g.frag(fr, cur + d)
            g.vwait(f"S{L}")
            g.nop(2)
            g.mfma(V_ACC, fr, vr(slot))
            stream_issue(L + DEPTH)
        if n == 8:
            lb = g.newlab("L_b4")
            e(f"s_cmp_eq_u32 s{S_ROLE}, 2")
            e(f"s_cbranch_scc0 {lb}")
            g.role = "B"
            e("s_waitcnt lgkmcnt(0)")
            for j in range(4):
                e(f"v_mov_b32 v{V_S+12+j}, v{nxt+j}")
            g.vwait("b1")
            e(f"v_lshlrev_b32 v{V_S}, 16, v{V_B1}")
            e(f"v_and_b32 v{V_S+1}, s{S_HIM}, v{V_B1}")
            e(f"v_lshlrev_b32 v{V_S+2}, 16, v{V_B1+1}")
            e(f"v_and_b32 v{V_S+3}, s{S_HIM}, v{V_B1+1}")
            e(f"s_lshl_b32 s72, s{S_W}, 13")
            e(f"s_add_u32 s72, s72, {AT}")
            e(f"v_add_u32 v{V_TD}, s72, v{V_L16}")
            for bb in range(2):
                hb = V_A + bb * 16
                for j in range(4):
                    x = V_S + 4 + j
                    e(f"v_add_f32 v{x}, v{hb+j}, v{hb+4+j}")
                    e(f"v_add_f32 v{x}, v{x}, v{hb+8+j}")
                    e(f"v_add_f32 v{x}, v{x}, v{hb+12+j}")
                    g.bf16r(x, x)
                    e(f"v_add_f32 v{x}, v{x}, v{V_S+j}")
                    g.bf16r(x, x)
                    t = V_S + 8 + j
                    e(f"v_mul_f32 v{t}, v{x}, v{x}")
                    e(f"v_mul_f32 v{t}, v{t}, v{x}")
                    e(f"v_mov_b32 v{V_TA}, 0x3d372713")
                    e(f"v_fma_f32 v{t}, v{t}, v{V_TA}, v{x}")
                    e(f"v_mul_f32 v{t}, 0xc0135761, v{t}")
                    e(f"v_exp_f32 v{t}, v{t}")
                    g.nop(1)
                    e(f"v_add_f32 v{t}, 1.0, v{t}")
                    e(f"v_rcp_f32 v{t}, v{t}")
                    g.nop(1)
                    e(f"v_mul_f32 v{x}, v{x}, v{t}")
                    e(f"v_cvt_pk_bf16_f32 v{x}, v{x}, v{x}")
                e(f"ds_write_b128 v{V_TD}, {vr(V_S+4)} offset:{bb*4096}")
            e("s_waitcnt lgkmcnt(0)")
            e("s_barrier")
            job_mfma_and_store("B")
            g.nop(2)
            for j in range(4):
                e(f"v_mov_b32 v{nxt+j}, v{V_S+12+j}")
            g.role = "C"
            g.lab(lb)
        if n == 11:
            job_signal("B", 4)
            wo_srd()
        if 12 <= n < 44:
            wo_issue(2 * (n - 12))
            wo_issue(2 * (n - 12) + 1)
        if n == 52:
            g.vissue(f"buffer_load_dword v{V_POLLB}, v{V_ZERO}, {srd(sDBG)}, 0 offen offset:4 sc1", "pollB")
    ts(3)
    g.nop(10)
    e(f"ds_write_b128 v{V_DW}, {vr(V_ACC)} offset:{OP}")
    e("s_waitcnt lgkmcnt(0)")
    e("s_barrier")
    for w in range(4):
        e(f"ds_read_b64 {vr(V_A+2*w,2)}, v{V_L8} offset:{OP + w*512}")
    e(f"s_lshl_b32 s72, s{S_W}, 9")
    e(f"v_add_u32 v{V_TD}, s72, v{V_L8}")
    e("s_waitcnt lgkmcnt(0)")
    for j in range(2):
        e(f"v_add_f32 v{V_A+j}, v{V_A+j}, v{V_A+2+j}")
        e(f"v_add_f32 v{V_A+4+j}, v{V_A+4+j}, v{V_A+6+j}")
        e(f"v_add_f32 v{V_A+j}, v{V_A+j}, v{V_A+4+j}")
        e(f"v_cvt_pk_bf16_f32 v{V_A+j}, v{V_A+j}, v{V_A+j}")
    e(f"ds_write_b64 v{V_TD}, {vr(V_A,2)} offset:{OD}")
    for j in range(8):
        e(f"v_mov_b32 v{V_D+j}, 0")
    e("s_waitcnt lgkmcnt(0)")
    e(f"ds_read_b128 {vr(V_DUP)}, v{V_DUPO} offset:{OD}")
    g.vwait("wo63")
    for i4 in range(8):
        cur = V_DUP + 4 * (i4 & 1)
        nxt = V_DUP + 4 * ((i4 + 1) & 1)
        e("s_waitcnt lgkmcnt(0)")
        if i4 < 7:
            e(f"ds_read_b128 {vr(nxt)}, v{V_DUPO} offset:{OD + (i4+1)*64}")
        for ii in range(4):
            i = 4 * i4 + ii
            fr = V_FRAG + 4 * (i & 1)
            g.frag(fr, cur + ii)
            g.nop(2)
            g.mfma(V_D, fr, ar(4 * i))
            g.mfma(V_D + 4, fr, ar(4 * (32 + i)))
    g.vwait("pollB")
    poll_check(V_POLLB, 4, 112)
    g.nop(8)
    e(f"s_lshl_b32 s{S_TMP}, s2, 12")
    e(f"s_add_u32 s{S_TMP}, s{S_TMP}, {AP}")
    e("s_mov_b64 exec, 0xffffffff")
    g.vissue(f"buffer_store_dwordx4 {vr(V_D)}, v{V_OUTW}, {srd(sWS)}, s{S_TMP} offen sc1", "ap0")
    g.vissue(f"buffer_store_dwordx4 {vr(V_D+4)}, v{V_OUTW}, {srd(sWS)}, s{S_TMP} offen offset:512 sc1", "ap1")
    e("s_mov_b64 exec, -1")
    MPR = 48
    XR, B2R = 104, 106
    e(f"s_lshl_b32 s72, s{S_B}, 12")
    for ks in range(14):
        e(f"s_add_u32 s{S_TMP}, s72, {MP + ks*8*4096}")
        g.vissue(f"buffer_load_dwordx4 {vr(MPR+4*ks)}, v{V_T16}, {srd(sWS)}, s{S_TMP} offen sc1", f"mp{ks}")
    e(f"v_lshlrev_b32 v{V_TD}, 3, v0")
    e(f"s_lshl_b32 s73, s{S_B}, 11")
    g.vissue(f"buffer_load_dwordx2 {vr(XR,2)}, v{V_TD}, {srd(sX)}, s73 offen", "xf")
    e(f"s_mov_b32 s{sB}, s22\ns_mov_b32 s{sB+1}, s23\ns_mov_b32 s{sB+2}, 2048\ns_mov_b32 s{sB+3}, 0x00020000")
    g.vissue(f"buffer_load_dwordx2 {vr(B2R,2)}, v{V_TD}, {srd(sB)}, 0 offen", "b2")
    g.vwait("ap1")
    e("s_barrier")
    lb = g.newlab("L_nat")
    e(f"s_cmp_eq_u32 s{S_W}, 0")
    e(f"s_cbranch_scc0 {lb}")
    e("s_mov_b64 exec, 1")
    e(f"v_mov_b32 v{V_TA}, 1")
    e(f"s_lshl_b32 s72, s{S_B}, 2")
    e(f"buffer_atomic_add v{V_TA}, v{V_ZERO}, {srd(sDBG)}, s72 offen offset:32 sc0")
    e("s_waitcnt vmcnt(0)")
    e(f"ds_write_b32 v{V_ZERO}, v{V_TA} offset:{BC}")
    e("s_waitcnt lgkmcnt(0)")
    e("s_mov_b64 exec, -1")
    g.lab(lb)
    e("s_barrier")
    e(f"ds_read_b32 v{V_TA}, v{V_ZERO} offset:{BC}")
    e("s_waitcnt lgkmcnt(0)")
    e(f"v_readfirstlane_b32 s72, v{V_TA}")
    g.nop(1)
    e("s_cmp_eq_u32 s72, 31")
    e("s_cbranch_scc0 L_fin")
    e(f"s_lshl_b32 s72, s{S_B}, 17")
    e(f"s_add_u32 s72, s72, {AP}")
    for hh in range(32):
        e(f"s_add_u32 s{S_TMP}, s72, {hh*4096}")
        g.vissue(f"buffer_load_dwordx4 {vr(V_WIN+4*hh)}, v{V_T16}, {srd(sWS)}, s{S_TMP} offen sc1", f"apl{hh}")
    g.vwait("b2")
    for ks in range(1, 14):
        for j in range(4):
            e(f"v_add_f32 v{MPR+j}, v{MPR+j}, v{MPR+4*ks+j}")
    e(f"v_lshlrev_b32 v{V_R}, 16, v{B2R}")
    e(f"v_and_b32 v{V_R+1}, s{S_HIM}, v{B2R}")
    e(f"v_lshlrev_b32 v{V_R+2}, 16, v{B2R+1}")
    e(f"v_and_b32 v{V_R+3}, s{S_HIM}, v{B2R+1}")
    e(f"v_lshlrev_b32 v{V_R+4}, 16, v{XR}")
    e(f"v_and_b32 v{V_R+5}, s{S_HIM}, v{XR}")
    e(f"v_lshlrev_b32 v{V_R+6}, 16, v{XR+1}")
    e(f"v_and_b32 v{V_R+7}, s{S_HIM}, v{XR+1}")
    for j in range(4):
        g.bf16r(MPR + j, MPR + j)
        e(f"v_add_f32 v{MPR+j}, v{MPR+j}, v{V_R+j}")
        g.bf16r(MPR + j, MPR + j)
    for hh in range(1, 32):
        g.vwait(f"apl{hh}")
        for j in range(4):
            e(f"v_add_f32 v{V_WIN+j}, v{V_WIN+j}, v{V_WIN+4*hh+j}")
    for j in range(4):
        g.bf16r(V_WIN + j, V_WIN + j)
        e(f"v_add_f32 v{V_WIN+j}, v{V_WIN+j}, v{V_R+4+j}")
        g.bf16r(V_WIN + j, V_WIN + j)
        e(f"v_add_f32 v{V_WIN+j}, v{V_WIN+j}, v{MPR+j}")
    e(f"v_cvt_pk_bf16_f32 v{V_R+8}, v{V_WIN}, v{V_WIN+1}")
    e(f"v_cvt_pk_bf16_f32 v{V_R+9}, v{V_WIN+2}, v{V_WIN+3}")
    e(f"buffer_store_dwordx2 {vr(V_R+8,2)}, v{V_TD}, {srd(sO)}, s73 offen")
    g.lab("L_fin")
    if o["ts"]:
        e(f"s_memrealtime s[72:73]")
        e("s_waitcnt vmcnt(0) lgkmcnt(0)")
        for k in range(4):
            e(f"v_mov_b32 v{V_R+k}, s{S_TS+2*k}")
        e(f"v_mov_b32 v{V_R+4}, s72")
        e(f"s_mov_b32 s{sWS+2}, 0x400000")
        e(f"s_lshl_b32 s72, s2, 7\ns_lshl_b32 s73, s{S_W}, 5\ns_add_u32 s72, s72, s73\ns_add_u32 s72, s72, {TS_OFF}")
        e(f"buffer_store_dwordx4 {vr(V_R)}, v{V_ZERO}, {srd(sWS)}, s72 offen")
        e(f"buffer_store_dword v{V_R+4}, v{V_ZERO}, {srd(sWS)}, s72 offen offset:16")
    g.lab("L_done")
    e("s_endpgm")
    return g


HEADER = open("cdna_kernels/" + NAME + ".s.ref").read().split("; Override launch geometry")[0]


def full_asm(opt=None):
    g = build(opt)
    s = HEADER
    s += "; generated by gen/gen.py\n"
    s += f"; @launch grid=(256,1,1) block=(256,1,1) lds={LDS_BYTES}\n"
    s += '.amdgcn_target "amdgcn-amd-amdhsa--gfx950"\n.text\n'
    s += f".globl {KNAME}\n.p2align 8\n.type {KNAME},@function\n{KNAME}:\n"
    s += "\n".join(g.L) + "\n"
    s += f""".section .rodata,"a"
.p2align 6
.amdhsa_kernel {KNAME}
  .amdhsa_next_free_vgpr 512
  .amdhsa_next_free_sgpr 102
  .amdhsa_accum_offset 256
  .amdhsa_group_segment_fixed_size 0
  .amdhsa_kernarg_size 104
  .amdhsa_user_sgpr_count 2
  .amdhsa_user_sgpr_kernarg_segment_ptr 1
  .amdhsa_system_sgpr_workgroup_id_x 1
.end_amdhsa_kernel
"""
    return s


if __name__ == "__main__":
    out = "cdna_kernels/" + NAME + ".s"
    open(out, "w").write(full_asm())
    print("wrote", out, os.path.getsize(out))
```

```python
import sys, os

NAME = "parallel_sum__mha_block_cached__mixer_channel_mlp__decode"
KNAME = NAME + "_kernel"

OPT = dict(
    stream_flag="nt",
    w_flag="nt",
    ws_flag="",
    ts=False,
)

XD = 0
QP = 4096
OP = 6144
OD = 8192
SM = 10240
BC = 10304
PD = 12288
RED = 28672
AT = 45056
LDS_BYTES = 77824

HP = 0
MP = 0x80000
AP = 0x100000
QPW = 0x200000
QFL = 0x300000
WS_BYTES = 0x380000
TS_OFF = 0x380000

sK, sV, sW, sX, sWS, sDBG, sB, sO = 32, 36, 40, 44, 48, 52, 56, 60
S_W, S_B, S_H, S_ROLE, S_T1, S_T2, S_OFF, S_TMP = 64, 65, 66, 67, 68, 69, 70, 71
S_ODD, S_TWO = 80, 82
S_RL = 86
S_SELLO, S_SELHI, S_HIM = 90, 91, 92
S_TS = 94
S_NON = 76


def srd(n):
    return f"s[{n}:{n+3}]"


def vr(a, n=4):
    return f"v[{a}:{a+n-1}]"


def ar(a, n=4):
    return f"a[{a}:{a+n-1}]"


V_LANE, V_G, V_C, V_KV, V_WQ, V_W2K, V_W1, V_L16 = 1, 2, 3, 4, 5, 6, 7, 8
V_DUPX, V_DUPP, V_DUPO, V_JOB, V_PDW, V_DW, V_REDW = 9, 10, 11, 12, 13, 14, 15
V_T16, V_ZERO, V_L32, V_OUTW, V_JST, V_L8 = 16, 17, 18, 19, 20, 21
V_M, V_TA, V_TB, V_TC, V_TD = 22, 23, 24, 25, 26
V_NON = 28
V_FLG = 30
V_ACC = 32
V_B1 = 36
V_POLLB, V_POLLA = 38, 39
V_D = 40
V_DUP = 56
V_FRAG = 64
V_MASK = 72
V_Q = 76
V_S = 80
V_A = 96
V_R = 112
V_WIN = 128
DEPTH = 32


class G:
    def __init__(self):
        self.L = []
        self.vm = {"C": [], "A": [], "B": []}
        self.role = "C"
        self.nlab = 0

    def e(self, s):
        for ln in s.split("\n"):
            self.L.append("  " + ln.strip())

    def lab(self, l):
        self.L.append(l + ":")

    def newlab(self, p="L"):
        self.nlab += 1
        return f"{p}_{self.nlab}"

    def nop(self, n):
        while n > 0:
            k = min(n, 16)
            self.e(f"s_nop {k-1}")
            n -= k

    def _roles(self):
        return list(self.vm.keys()) if self.role == "C" else [self.role]

    def vissue(self, instr, tag):
        worst = max(len(self.vm[r]) for r in self._roles())
        if worst >= 63:
            self._wait_n(61)
        self.e(instr)
        for r in self._roles():
            self.vm[r].append(tag)

    def _wait_n(self, n):
        self.e(f"s_waitcnt vmcnt({n})")
        for r in self._roles():
            self.vm[r] = self.vm[r][len(self.vm[r]) - n:] if n > 0 and len(self.vm[r]) > n else (self.vm[r] if n > 0 else [])

    def vwait(self, tag):
        f = self.vm[self.role]
        if tag not in f:
            return
        n = len(f) - 1 - f.index(tag)
        self._wait_n(n)

    def vwait_all(self):
        self._wait_n(0)

    def wave_reduce(self, T, op):
        for r in (8, 4, 2, 1):
            self.nop(2)
            self.e(f"v_{op}_f32_dpp v{T}, v{T}, v{T} row_ror:{r} row_mask:0xf bank_mask:0xf")
        self.nop(1)
        for i in range(4):
            self.e(f"v_readlane_b32 s{S_RL+i}, v{T}, {16*i}")
        self.nop(2)
        self.e(f"v_mov_b32 v{T}, s{S_RL}")
        for i in range(1, 4):
            self.e(f"v_{op}_f32 v{T}, s{S_RL+i}, v{T}")

    def bf16r(self, dst, src):
        self.e(f"v_cvt_pk_bf16_f32 v{dst}, v{src}, v{src}")
        self.e(f"v_lshlrev_b32 v{dst}, 16, v{dst}")

    def layernorm(self, P, DST, E, T):
        e = self.e
        for j in range(8):
            e(f"v_lshlrev_b32 v{E+2*j}, 16, v{P+j}")
            e(f"v_and_b32 v{E+2*j+1}, s{S_HIM}, v{P+j}")
        e(f"v_add_f32 v{T}, v{E}, v{E+1}")
        e(f"v_add_f32 v{T+1}, v{E+2}, v{E+3}")
        e(f"v_add_f32 v{T+2}, v{E+4}, v{E+5}")
        e(f"v_add_f32 v{T+3}, v{E+6}, v{E+7}")
        for j in range(4):
            e(f"v_add_f32 v{T+j}, v{T+j}, v{E+8+2*j}")
            e(f"v_add_f32 v{T+j}, v{T+j}, v{E+9+2*j}")
        e(f"v_add_f32 v{T}, v{T}, v{T+1}")
        e(f"v_add_f32 v{T+2}, v{T+2}, v{T+3}")
        e(f"v_add_f32 v{T}, v{T}, v{T+2}")
        self.wave_reduce(T, "add")
        e(f"v_mul_f32 v{T}, 0x3a800000, v{T}")
        self.bf16r(T + 1, T)
        e(f"v_mov_b32 v{T+2}, 0")
        e(f"v_mov_b32 v{T+3}, 0")
        for j in range(16):
            e(f"v_sub_f32 v{T+4+(j&1)}, v{E+j}, v{T}")
            e(f"v_fmac_f32 v{T+2+(j&1)}, v{T+4+(j&1)}, v{T+4+(j&1)}")
        e(f"v_add_f32 v{T+2}, v{T+2}, v{T+3}")
        self.wave_reduce(T + 2, "add")
        e(f"v_mul_f32 v{T+2}, 0x3a800000, v{T+2}")
        self.bf16r(T + 2, T + 2)
        e(f"v_add_f32 v{T+2}, 0x3727c5ac, v{T+2}")
        self.bf16r(T + 2, T + 2)
        e(f"v_sqrt_f32 v{T+2}, v{T+2}")
        self.nop(1)
        self.bf16r(T + 2, T + 2)
        e(f"v_rcp_f32 v{T+3}, v{T+2}")
        self.nop(1)
        for j in range(8):
            a, b = E + 2 * j, E + 2 * j + 1
            e(f"v_sub_f32 v{a}, v{a}, v{T+1}")
            e(f"v_sub_f32 v{b}, v{b}, v{T+1}")
            e(f"v_cvt_pk_bf16_f32 v{T+4}, v{a}, v{b}")
            e(f"v_lshlrev_b32 v{a}, 16, v{T+4}")
            e(f"v_and_b32 v{b}, s{S_HIM}, v{T+4}")
            e(f"v_mul_f32 v{T+4}, v{a}, v{T+3}")
            e(f"v_mul_f32 v{T+5}, v{b}, v{T+3}")
            e(f"v_fma_f32 v{T+6}, -v{T+4}, v{T+2}, v{a}")
            e(f"v_fma_f32 v{T+7}, -v{T+5}, v{T+2}, v{b}")
            e(f"v_fmac_f32 v{T+4}, v{T+6}, v{T+3}")
            e(f"v_fmac_f32 v{T+5}, v{T+7}, v{T+3}")
            e(f"v_cvt_pk_bf16_f32 v{DST+j}, v{T+4}, v{T+5}")

    def write_dup_row(self, P, E, vaddr, base):
        for j in range(8):
            self.e(f"v_perm_b32 v{E+2*j}, v{P+j}, v{P+j}, s{S_SELLO}")
            self.e(f"v_perm_b32 v{E+2*j+1}, v{P+j}, v{P+j}, s{S_SELHI}")
        for k in range(4):
            off = base + (k >> 1) * 2048 + (k & 1) * 16
            self.e(f"ds_write_b128 v{vaddr}, {vr(E+4*k)} offset:{off}")

    def frag(self, fr, dup):
        for j in range(4):
            self.e(f"v_and_b32 v{fr+j}, v{dup}, v{V_MASK+j}")

    def mfma(self, D, fr, B):
        self.e(f"v_mfma_f32_16x16x32_bf16 {vr(D)}, {vr(fr)}, {B}, {vr(D)}")


def build(opt=None):
    o = dict(OPT)
    if opt:
        o.update(opt)
    SF, WF, WSF = o["stream_flag"], o["w_flag"], o["ws_flag"]
    g = G()
    e = g.e

    def ts(i):
        if o["ts"]:
            e(f"s_memrealtime s[{S_TS+2*i}:{S_TS+2*i+1}]")

    e("s_cmp_ge_u32 s2, 256")
    e("s_cbranch_scc1 L_done")
    e("s_load_dwordx16 s[4:19], s[0:1], 0")
    e("s_load_dwordx8 s[20:27], s[0:1], 64")
    e("s_load_dwordx2 s[28:29], s[0:1], 96")
    ts(0)
    e(f"v_and_b32 v{V_LANE}, 63, v0")
    e(f"v_lshrrev_b32 v{V_TA}, 6, v0")
    e(f"v_lshrrev_b32 v{V_G}, 4, v{V_LANE}")
    e(f"v_readfirstlane_b32 s{S_W}, v{V_TA}")
    e(f"v_and_b32 v{V_C}, 15, v{V_LANE}")
    e(f"v_lshlrev_b32 v{V_L16}, 4, v{V_LANE}")
    e(f"v_lshlrev_b32 v{V_L32}, 5, v{V_LANE}")
    e(f"v_lshlrev_b32 v{V_L8}, 3, v{V_LANE}")
    e(f"v_lshlrev_b32 v{V_T16}, 4, v0")
    e(f"v_mov_b32 v{V_ZERO}, 0")
    e(f"v_lshlrev_b32 v{V_TB}, 4, v{V_C}")
    e(f"v_lshl_add_u32 v{V_KV}, v{V_TA}, 12, v{V_L16}")
    e(f"v_lshl_add_u32 v{V_WQ}, v{V_G}, 15, v{V_TB}")
    e(f"v_lshl_add_u32 v{V_W2K}, v{V_G}, 13, v{V_TB}")
    e(f"v_mul_u32_u24 v{V_W1}, 28672, v{V_G}")
    e(f"v_add_u32 v{V_W1}, v{V_W1}, v{V_TB}")
    e(f"s_and_b32 s{S_H}, s2, 31")
    e(f"s_lshr_b32 s{S_B}, s2, 5")
    e(f"s_mov_b32 s{S_SELLO}, 0x01000100")
    e(f"s_mov_b32 s{S_SELHI}, 0x03020302")
    e(f"s_mov_b32 s{S_HIM}, 0xffff0000")
    e(f"s_mov_b32 s{S_ODD}, 0xaaaaaaaa")
    e(f"s_mov_b32 s{S_ODD+1}, 0xaaaaaaaa")
    e(f"s_mov_b32 s{S_TWO}, 0xcccccccc")
    e(f"s_mov_b32 s{S_TWO+1}, 0xcccccccc")
    e("s_lshr_b32 s72, s2, 3")
    e("s_and_b32 s73, s2, 7")
    e("s_mul_i32 s73, s73, 14")
    e("s_add_u32 s74, s73, s72")
    e("s_sub_u32 s75, s74, 14")
    e(f"s_mov_b32 s{S_ROLE}, 0")
    e(f"s_and_b32 s{S_T1}, s74, 3")
    e(f"s_lshr_b32 s{S_T2}, s74, 2")
    e("s_cmp_lt_u32 s72, 14")
    e(f"s_cselect_b32 s{S_ROLE}, 1, 0")
    e("s_cbranch_scc1 L_role_done")
    e("s_cmp_lt_u32 s72, 28")
    e(f"s_cselect_b32 s{S_ROLE}, 2, 0")
    e(f"s_lshr_b32 s{S_T1}, s75, 3")
    e(f"s_and_b32 s{S_T2}, s75, 7")
    g.lab("L_role_done")
    e("s_waitcnt lgkmcnt(0)")
    e("s_lshl_b32 s72, s2, 20")
    e(f"s_add_u32 s{sK}, s6, s72\ns_addc_u32 s{sK+1}, s7, 0\ns_mov_b32 s{sK+2}, 0x100000\ns_mov_b32 s{sK+3}, 0x00020000")
    e(f"s_add_u32 s{sV}, s8, s72\ns_addc_u32 s{sV+1}, s9, 0\ns_mov_b32 s{sV+2}, 0x100000\ns_mov_b32 s{sV+3}, 0x00020000")
    e(f"s_mov_b32 s{sX}, s4\ns_mov_b32 s{sX+1}, s5\ns_mov_b32 s{sX+2}, 16384\ns_mov_b32 s{sX+3}, 0x00020000")
    e(f"s_mov_b32 s{sDBG}, s26\ns_mov_b32 s{sDBG+1}, s27\ns_mov_b32 s{sDBG+2}, 256\ns_mov_b32 s{sDBG+3}, 0x00020000")
    e("s_or_b32 s72, s2, s64")
    e("s_cmp_eq_u32 s72, 0")
    e("s_cbranch_scc0 L_no_nonce")
    e("s_memrealtime s[72:73]")
    e("s_waitcnt lgkmcnt(0)")
    e("s_or_b32 s72, s72, 1")
    e(f"v_mov_b32 v{V_NON}, s72")
    e(f"v_mov_b32 v{V_NON+1}, s73")
    e("s_mov_b64 exec, 1")
    e(f"buffer_store_dwordx2 {vr(V_NON,2)}, v{V_ZERO}, {srd(sDBG)}, 0 offen offset:8 sc1")
    e("s_mov_b64 exec, -1")
    g.nop(2)
    g.lab("L_no_nonce")
    e(f"s_lshl_b32 s{S_TMP}, s{S_W}, 12")
    for k in range(4):
        g.vissue(f"buffer_load_dwordx4 {vr(V_D+4*k)}, v{V_L16}, {srd(sX)}, s{S_TMP} offen offset:{k*1024}", f"x{k}")
    e(f"s_lshl_b32 s72, s{S_B}, 2")
    e(f"s_add_u32 s72, s72, s{S_W}")
    e(f"s_lshl_b32 s72, s72, 18")
    e(f"s_lshl_b32 s73, s{S_H}, 8")
    e("s_add_u32 s72, s72, s73")
    e(f"s_add_u32 s{sW}, s10, s72\ns_addc_u32 s{sW+1}, s11, 0")
    e(f"s_sub_u32 s{sW+2}, 0x800000, s72\ns_mov_b32 s{sW+3}, 0x00020000")
    for i in range(8):
        e(f"s_mov_b32 s{S_TMP}, {(16*(i>>2)+(i&3))*8192}")
        g.vissue(f"buffer_load_dwordx4 {ar(4*i)}, v{V_WQ}, {srd(sW)}, s{S_TMP} offen {WF}", f"wq{i}")
    g.vissue(f"buffer_load_dwordx2 {vr(V_NON,2)}, v{V_ZERO}, {srd(sDBG)}, 0 offen offset:8 sc1", "non")
    e(f"s_mov_b32 s{S_OFF}, 0")

    def stream_issue(L):
        if L >= 512:
            return
        if L == 256:
            e(f"s_mov_b32 s{S_OFF}, 0")
        sd = sK if L < 256 else sV
        slot = V_WIN + 4 * (L % DEPTH)
        g.vissue(f"buffer_load_dwordx4 {vr(slot)}, v{V_KV}, {srd(sd)}, s{S_OFF} offen offset:{(L&3)*1024} {SF}", f"S{L}")
        if L & 3 == 3:
            e(f"s_add_u32 s{S_OFF}, s{S_OFF}, 16384")

    for L in range(32):
        stream_issue(L)
    JT = 64
    lb = g.newlab("L_r1")
    le = g.newlab("L_r1e")
    e(f"s_cmp_eq_u32 s{S_ROLE}, 1")
    e(f"s_cbranch_scc0 {lb}")
    g.role = "A"
    e(f"s_lshl_b32 s72, s{S_T1}, 2\ns_add_u32 s72, s72, s{S_W}\ns_mul_i32 s72, s72, {64*7168}")
    e(f"s_lshl_b32 s73, s{S_T2}, 8\ns_add_u32 s72, s72, s73")
    e(f"s_add_u32 s{sW}, s16, s72\ns_addc_u32 s{sW+1}, s17, 0\ns_sub_u32 s{sW+2}, {1024*7168}, s72")
    for i in range(16):
        e(f"s_mov_b32 s{S_TMP}, {(16*(i>>2)+(i&3))*7168}")
        g.vissue(f"buffer_load_dwordx4 {ar(JT+4*i)}, v{V_W1}, {srd(sW)}, s{S_TMP} offen {WF}", f"jt{i}")
    e(f"s_branch {le}")
    g.role = "C"
    g.lab(lb)
    e(f"s_cmp_eq_u32 s{S_ROLE}, 2")
    e(f"s_cbranch_scc0 {le}")
    g.role = "B"
    e(f"s_lshl_b32 s72, s{S_T1}, 2\ns_add_u32 s72, s72, s{S_W}\ns_lshl_b32 s72, s72, 17")
    e(f"s_lshl_b32 s73, s{S_T2}, 8\ns_add_u32 s72, s72, s73")
    e(f"s_add_u32 s{sW}, s20, s72\ns_addc_u32 s{sW+1}, s21, 0\ns_sub_u32 s{sW+2}, {3584*2048}, s72")
    for i in range(16):
        e(f"s_mov_b32 s{S_TMP}, {(16*(i>>2)+(i&3))*2048}")
        g.vissue(f"buffer_load_dwordx4 {ar(JT+4*i)}, v{V_W2K}, {srd(sW)}, s{S_TMP} offen {WF}", f"jt{i}")
    g.role = "C"
    g.lab(le)
    e(f"s_mov_b32 s{sWS}, s28\ns_mov_b32 s{sWS+1}, s29\ns_mov_b32 s{sWS+2}, {WS_BYTES}\ns_mov_b32 s{sWS+3}, 0x00020000")
    e(f"s_mov_b32 s{sO}, s24\ns_mov_b32 s{sO+1}, s25\ns_mov_b32 s{sO+2}, 16384\ns_mov_b32 s{sO+3}, 0x00020000")
    e(f"v_and_b32 v{V_TA}, 1, v{V_C}")
    e(f"v_lshlrev_b32 v{V_TA}, 4, v{V_TA}")
    e(f"v_mov_b32 v{V_TB}, 0xffff")
    e(f"v_lshlrev_b32 v{V_TB}, v{V_TA}, v{V_TB}")
    e(f"v_bfe_u32 v{V_TA}, v{V_C}, 1, 2")
    for j in range(4):
        e(f"v_cmp_eq_u32 vcc, {j}, v{V_TA}")
        g.nop(2)
        e(f"v_cndmask_b32 v{V_MASK+j}, 0, v{V_TB}, vcc")
    e(f"v_lshrrev_b32 v{V_TC}, 6, v0")
    e(f"v_lshlrev_b32 v{V_TA}, 4, v{V_G}")
    e(f"v_lshl_add_u32 v{V_DUPX}, v{V_TC}, 10, v{V_TA}")
    e(f"v_lshl_add_u32 v{V_DUPP}, v{V_TC}, 12, v{V_TA}")
    e(f"v_lshl_add_u32 v{V_DUPO}, v{V_TC}, 9, v{V_TA}")
    e(f"v_lshrrev_b32 v{V_TB}, 3, v{V_C}")
    e(f"v_lshl_add_u32 v{V_JOB}, v{V_TB}, 12, v{V_TA}")
    e(f"v_lshl_add_u32 v{V_JOB}, v{V_TC}, 8, v{V_JOB}")
    e(f"v_add_u32 v{V_JOB}, {AT}, v{V_JOB}")
    e(f"v_bfe_u32 v{V_TB}, v{V_C}, 1, 1")
    e(f"v_lshl_add_u32 v{V_PDW}, v{V_TB}, 7, v{V_DUPP}")
    e(f"v_and_b32 v{V_TB}, 1, v{V_C}")
    e(f"v_lshl_add_u32 v{V_PDW}, v{V_TB}, 6, v{V_PDW}")
    e(f"v_bfe_u32 v{V_TB}, v{V_C}, 2, 1")
    e(f"v_lshl_add_u32 v{V_PDW}, v{V_TB}, 3, v{V_PDW}")
    e(f"v_lshrrev_b32 v{V_TB}, 3, v{V_C}")
    e(f"v_lshl_add_u32 v{V_PDW}, v{V_TB}, 2, v{V_PDW}")
    e(f"v_and_b32 v{V_TB}, 1, v{V_G}")
    e(f"v_lshlrev_b32 v{V_TB}, 4, v{V_TB}")
    e(f"v_lshl_add_u32 v{V_TB}, v{V_C}, 5, v{V_TB}")
    e(f"v_lshl_add_u32 v{V_DW}, v{V_TC}, 9, v{V_TB}")
    e(f"v_lshl_add_u32 v{V_OUTW}, v{V_TC}, 10, v{V_TB}")
    e(f"v_lshrrev_b32 v{V_TA}, 1, v{V_G}")
    e(f"v_lshl_add_u32 v{V_REDW}, v{V_TA}, 9, v{V_TB}")
    e(f"v_lshl_add_u32 v{V_REDW}, v{V_TC}, 12, v{V_REDW}")

    e(f"s_lshl_b32 s72, s{S_W}, 13")
    e(f"s_add_u32 s72, s72, {AT}")
    e(f"v_add_u32 v{V_TD}, s72, v{V_L32}")
    for rr in range(2):
        g.vwait(f"x{2*rr+1}")
        g.layernorm(V_D + 8 * rr, V_R + 8, V_A, V_R)
        g.write_dup_row(V_R + 8, V_A, V_TD, rr * 4096)
    e(f"s_lshl_b32 s72, s{S_B}, 9")
    e(f"s_lshl_b32 s73, s{S_W}, 7")
    e("s_sub_u32 s72, s72, s73")
    e(f"v_add_u32 v{V_TC}, s72, v{V_JOB}")
    QD = V_S
    for j in range(16):
        e(f"v_mov_b32 v{QD+j}, 0")
    e("s_waitcnt lgkmcnt(0)")
    e("s_barrier")
    seq = [(i4, pr) for i4 in range(2) for pr in range(4)]
    e(f"ds_read_b128 {vr(V_DUP)}, v{V_TC} offset:0")
    for n, (i4, pr) in enumerate(seq):
        cur = V_DUP + 4 * (n & 1)
        nxt = V_DUP + 4 * ((n + 1) & 1)
        e("s_waitcnt lgkmcnt(0)")
        if n + 1 < len(seq):
            i4n, prn = seq[n + 1]
            e(f"ds_read_b128 {vr(nxt)}, v{V_TC} offset:{prn*8192 + i4n*64}")
        for ii in range(4):
            i = 4 * i4 + ii
            fr = V_FRAG + 4 * (ii & 1)
            g.frag(fr, cur + ii)
            g.vwait(f"wq{i}")
            g.nop(2)
            g.mfma(QD + 4 * pr, fr, ar(4 * i))
    g.nop(10)
    for pr in range(4):
        e(f"ds_write_b128 v{V_REDW}, {vr(QD+4*pr)} offset:{RED + pr*1024}")
    e("s_waitcnt lgkmcnt(0)")
    e("s_barrier")
    for w in range(4):
        e(f"ds_read_b128 {vr(QD+4*w)}, v{V_T16} offset:{RED + w*4096}")
    g.vwait("non")
    ok = g.newlab("L_ok")
    sp = g.newlab("L_spin")
    e("s_mov_b32 s73, 0")
    g.lab(sp)
    e(f"v_readfirstlane_b32 s{S_NON}, v{V_NON}")
    e(f"v_readfirstlane_b32 s{S_NON+1}, v{V_NON+1}")
    g.nop(1)
    e(f"s_cmp_lg_u32 s{S_NON}, 0")
    e(f"s_cbranch_scc1 {ok}")
    e("s_add_u32 s73, s73, 1")
    e("s_cmp_ge_u32 s73, 0x40000")
    e(f"s_cbranch_scc1 {ok}")
    e(f"buffer_load_dwordx2 {vr(V_NON,2)}, v{V_ZERO}, {srd(sDBG)}, 0 offen offset:8 sc1")
    e("s_waitcnt vmcnt(0)")
    e(f"s_branch {sp}")
    g.lab(ok)
    e(f"s_lshl_b32 s72, s{S_H}, 3")
    e(f"s_add_u32 s72, s72, s{S_B}")
    e(f"s_lshl_b32 s{S_TMP}, s72, 12")
    e(f"s_add_u32 s{S_TMP}, s{S_TMP}, {QPW}")
    e("s_waitcnt lgkmcnt(0)")
    for j in range(4):
        e(f"v_add_f32 v{QD+j}, v{QD+j}, v{QD+4+j}")
        e(f"v_add_f32 v{QD+8+j}, v{QD+8+j}, v{QD+12+j}")
    for j in range(4):
        e(f"v_add_f32 v{QD+j}, v{QD+j}, v{QD+8+j}")
    g.vissue(f"buffer_store_dwordx4 {vr(QD)}, v{V_T16}, {srd(sWS)}, s{S_TMP} offen sc1", "qst")
    e(f"v_mov_b32 v{V_NON}, s{S_NON}")
    e(f"v_mov_b32 v{V_NON+1}, s{S_NON+1}")
    e(f"s_lshl_b32 s72, s{S_H}, 2")
    e(f"s_add_u32 s73, s72, s{S_W}")
    e(f"s_lshl_b32 s73, s73, 3")
    e(f"s_add_u32 s73, s73, s{S_B}")
    e(f"s_lshl_b32 s73, s73, 3")
    e(f"s_add_u32 s73, s73, {QFL}")
    e(f"s_lshr_b32 s74, s{S_B}, 1")
    e("s_add_u32 s74, s74, s72")
    e("s_lshl_b32 s74, s74, 6")
    e(f"s_add_u32 s74, s74, {QFL}")
    e(f"v_and_b32 v{V_TA}, 7, v{V_LANE}")
    e(f"v_lshlrev_b32 v{V_TA}, 3, v{V_TA}")
    g.vwait("qst")
    e("s_mov_b64 exec, 1")
    e(f"buffer_store_dwordx2 {vr(V_NON,2)}, v{V_ZERO}, {srd(sWS)}, s73 offen sc1")
    e("s_mov_b64 exec, -1")
    ok = g.newlab("L_ok")
    sp = g.newlab("L_spin")
    e("s_mov_b32 s73, 0")
    g.lab(sp)
    e(f"buffer_load_dwordx2 {vr(V_FLG,2)}, v{V_TA}, {srd(sWS)}, s74 offen sc1")
    e("s_waitcnt vmcnt(0)")
    e(f"v_cmp_ne_u64 vcc, {vr(V_FLG,2)}, {vr(V_NON,2)}")
    e("s_add_u32 s73, s73, 1")
    e("s_cmp_ge_u32 s73, 0x40000")
    e(f"s_cbranch_scc1 {ok}")
    g.nop(2)
    e(f"s_cbranch_vccnz {sp}")
    g.lab(ok)
    g.vwait_all()
    quads = [V_DUP, V_DUP + 4, V_FRAG, V_FRAG + 4] + [V_S + 4 * k for k in range(12)]
    e(f"v_lshlrev_b32 v{V_TA}, 5, v{V_C}")
    e(f"s_lshl_b32 s72, s{S_H}, 15")
    e(f"s_lshl_b32 s73, s{S_B}, 9")
    e("s_add_u32 s72, s72, s73")
    for k8 in range(8):
        e(f"s_add_u32 s{S_TMP}, s72, {QPW + k8*4096}")
        g.vissue(f"buffer_load_dwordx4 {vr(quads[2*k8])}, v{V_TA}, {srd(sWS)}, s{S_TMP} offen sc1", f"qg{2*k8}")
        g.vissue(f"buffer_load_dwordx4 {vr(quads[2*k8+1])}, v{V_TA}, {srd(sWS)}, s{S_TMP} offen offset:16 sc1", f"qg{2*k8+1}")
    for k8 in range(1, 8):
        g.vwait(f"qg{2*k8+1}")
        for hf in range(2):
            for j in range(4):
                e(f"v_add_f32 v{quads[hf]+j}, v{quads[hf]+j}, v{quads[2*k8+hf]+j}")
    for j in range(4):
        q0 = quads[j >> 1] + 2 * (j & 1)
        e(f"v_cvt_pk_bf16_f32 v{V_Q+j}, v{q0}, v{q0+1}")
    ts(1)

    def job_mfma_and_store(role):
        for j in range(16):
            e(f"v_mov_b32 v{V_D+j}, 0")
        seq = [(i4, pr) for i4 in range(4) for pr in range(4)]
        e(f"ds_read_b128 {vr(V_DUP)}, v{V_JOB} offset:0")
        for n, (i4, pr) in enumerate(seq):
            cur = V_DUP + 4 * (n & 1)
            nxt = V_DUP + 4 * ((n + 1) & 1)
            e("s_waitcnt lgkmcnt(0)")
            if n + 1 < len(seq):
                i4n, prn = seq[n + 1]
                e(f"ds_read_b128 {vr(nxt)}, v{V_JOB} offset:{prn*8192 + i4n*64}")
            for ii in range(4):
                i = 4 * i4 + ii
                fr = V_FRAG + 4 * (ii & 1)
                g.frag(fr, cur + ii)
                g.vwait(f"jt{i}")
                g.nop(2)
                g.mfma(V_D + 4 * pr, fr, ar(JT + 4 * i))
        g.nop(10)
        for pr in range(4):
            e(f"ds_write_b128 v{V_REDW}, {vr(V_D+4*pr)} offset:{RED + pr*1024}")
        e("s_waitcnt lgkmcnt(0)")
        e("s_barrier")
        for w in range(4):
            e(f"ds_read_b128 {vr(V_D+4*w)}, v{V_T16} offset:{RED + w*4096}")
        rowb = 3584 * 4 if role == "A" else 1024 * 4
        e(f"v_lshrrev_b32 v{V_TA}, 5, v0")
        e(f"v_mul_u32_u24 v{V_TA}, {rowb}, v{V_TA}")
        e(f"v_and_b32 v{V_TB}, 31, v0")
        e(f"v_lshl_add_u32 v{V_JST}, v{V_TB}, 4, v{V_TA}")
        e(f"s_mul_i32 s{S_TMP}, s{S_T1}, {8*rowb}")
        e(f"s_lshl_b32 s72, s{S_T2}, 9")
        e(f"s_add_u32 s{S_TMP}, s{S_TMP}, s72")
        e(f"s_add_u32 s{S_TMP}, s{S_TMP}, {HP if role == 'A' else MP}")
        e("s_waitcnt lgkmcnt(0)")
        for j in range(4):
            e(f"v_add_f32 v{V_D+j}, v{V_D+j}, v{V_D+4+j}")
            e(f"v_add_f32 v{V_D+8+j}, v{V_D+8+j}, v{V_D+12+j}")
        for j in range(4):
            e(f"v_add_f32 v{V_D+j}, v{V_D+j}, v{V_D+8+j}")
        g.vissue(f"buffer_store_dwordx4 {vr(V_D)}, v{V_JST}, {srd(sWS)}, s{S_TMP} offen sc1", "jst")

    def job_signal(role, off):
        lb = g.newlab("L_sig")
        e(f"s_cmp_eq_u32 s{S_ROLE}, {1 if role == 'A' else 2}")
        e(f"s_cbranch_scc0 {lb}")
        g.role = role
        g.vwait("jst")
        e("s_barrier")
        e(f"s_cmp_eq_u32 s{S_W}, 0")
        e(f"s_cbranch_scc0 {lb}")
        e("s_mov_b64 exec, 1")
        e(f"v_mov_b32 v{V_TA}, 1")
        e(f"buffer_atomic_add v{V_TA}, v{V_ZERO}, {srd(sDBG)}, 0 offen offset:{off}")
        e("s_mov_b64 exec, -1")
        g.role = "C"
        g.lab(lb)

    def poll_check(vreg, off, target):
        ok = g.newlab("L_ok")
        sp = g.newlab("L_spin")
        e(f"v_readfirstlane_b32 s72, v{vreg}")
        g.nop(1)
        e(f"s_cmp_ge_u32 s72, {target}")
        e(f"s_cbranch_scc1 {ok}")
        e("s_mov_b32 s73, 0")
        g.lab(sp)
        e("s_add_u32 s73, s73, 1")
        e("s_cmp_ge_u32 s73, 0x40000")
        e(f"s_cbranch_scc1 {ok}")
        e("s_sleep 4")
        e(f"buffer_load_dword v{vreg}, v{V_ZERO}, {srd(sDBG)}, 0 offen offset:{off} sc1")
        e("s_waitcnt vmcnt(0)")
        e(f"v_readfirstlane_b32 s72, v{vreg}")
        g.nop(1)
        e(f"s_cmp_ge_u32 s72, {target}")
        e(f"s_cbranch_scc0 {sp}")
        g.lab(ok)

    for beta in range(16):
        for t in range(16):
            L = 16 * beta + t
            slot = V_WIN + 4 * (L % DEPTH)
            g.vwait(f"S{L}")
            e(f"v_dot2_f32_bf16 v{V_A+t}, v{slot}, v{V_Q}, 0")
            for j in range(1, 4):
                e(f"v_dot2_f32_bf16 v{V_A+t}, v{slot+j}, v{V_Q+j}, v{V_A+t}")
            stream_issue(L + DEPTH)
        g.nop(3)
        for p in range(8):
            e(f"v_add_f32_dpp v{V_R+p}, v{V_A+2*p}, v{V_A+2*p} row_ror:8 row_mask:0xf bank_mask:0x3")
            e(f"v_add_f32_dpp v{V_R+p}, v{V_A+2*p+1}, v{V_A+2*p+1} row_ror:8 row_mask:0xf bank_mask:0xc")
        for p in range(4):
            e(f"v_add_f32_dpp v{V_R+8+p}, v{V_R+2*p}, v{V_R+2*p} row_shl:4 row_mask:0xf bank_mask:0x5")
            e(f"v_add_f32_dpp v{V_R+8+p}, v{V_R+2*p+1}, v{V_R+2*p+1} row_shr:4 row_mask:0xf bank_mask:0xa")
        g.nop(1)
        for p in range(4):
            e(f"v_add_f32_dpp v{V_R+12+p}, v{V_R+8+p}, v{V_R+8+p} quad_perm:[1,0,3,2] row_mask:0xf bank_mask:0xf")
        for p in range(2):
            e(f"v_cndmask_b32 v{V_R+p}, v{V_R+12+2*p}, v{V_R+13+2*p}, s[{S_ODD}:{S_ODD+1}]")
        g.nop(1)
        for p in range(2):
            e(f"v_add_f32_dpp v{V_R+2+p}, v{V_R+p}, v{V_R+p} quad_perm:[2,3,0,1] row_mask:0xf bank_mask:0xf")
        e(f"v_cndmask_b32 v{V_R}, v{V_R+2}, v{V_R+3}, s[{S_TWO}:{S_TWO+1}]")
        g.bf16r(V_R, V_R)
        e(f"v_mul_f32 v{V_R}, 0x3db504f3, v{V_R}")
        g.bf16r(V_S + beta, V_R)

        if beta == 2:
            lb = g.newlab("L_a2")
            e(f"s_cmp_eq_u32 s{S_ROLE}, 1")
            e(f"s_cbranch_scc0 {lb}")
            g.role = "A"
            e(f"s_lshl_b32 s72, s{S_W}, 13")
            e(f"s_add_u32 s72, s72, {AT}")
            e(f"v_add_u32 v{V_TD}, s72, v{V_L32}")
            for rr in range(2):
                g.layernorm(V_D + 8 * rr, V_R + 8, V_A, V_R)
                g.layernorm(V_R + 8, V_R + 8, V_A, V_R)
                g.write_dup_row(V_R + 8, V_A, V_TD, rr * 4096)
            e(f"s_lshl_b32 s72, s{S_T1}, 10")
            e(f"v_add_u32 v{V_JOB}, s72, v{V_JOB}")
            e("s_waitcnt lgkmcnt(0)")
            e("s_barrier")
            job_mfma_and_store("A")
            g.role = "C"
            g.lab(lb)
        if beta == 4:
            job_signal("A", 0)
        if beta == 12:
            lb = g.newlab("L_b2")
            e(f"s_cmp_eq_u32 s{S_ROLE}, 2")
            e(f"s_cbranch_scc0 {lb}")
            g.role = "B"
            g.vissue(f"buffer_load_dword v{V_POLLA}, v{V_ZERO}, {srd(sDBG)}, 0 offen offset:0 sc1", "pollA")
            g.role = "C"
            g.lab(lb)

    ts(2)
    lb = g.newlab("L_b3")
    e(f"s_cmp_eq_u32 s{S_ROLE}, 2")
    e(f"s_cbranch_scc0 {lb}")
    g.role = "B"
    g.vwait("pollA")
    poll_check(V_POLLA, 0, 112)
    e(f"s_mul_i32 s72, s{S_W}, {2*3584*4}")
    e(f"s_lshl_b32 s73, s{S_T1}, 10")
    e(f"s_add_u32 s72, s72, s73")
    for bb in range(2):
        for kq in range(4):
            e(f"s_add_u32 s{S_TMP}, s72, {HP + (kq*8+bb)*3584*4}")
            g.vissue(f"buffer_load_dwordx4 {vr(V_A+(bb*4+kq)*4)}, v{V_L16}, {srd(sWS)}, s{S_TMP} offen sc1", f"hp{bb*4+kq}")
    e(f"s_mov_b32 s{sB}, s18\ns_mov_b32 s{sB+1}, s19\ns_mov_b32 s{sB+2}, 7168\ns_mov_b32 s{sB+3}, 0x00020000")
    e(f"s_lshl_b32 s{S_TMP}, s{S_T1}, 9")
    g.vissue(f"buffer_load_dwordx2 {vr(V_B1,2)}, v{V_L8}, {srd(sB)}, s{S_TMP} offen", "b1")
    g.role = "C"
    g.lab(lb)

    LOG2E = "0x3fb8aa3b"
    e(f"v_max3_f32 v{V_M}, v{V_S}, v{V_S+1}, v{V_S+2}")
    for k in range(3, 15, 2):
        e(f"v_max3_f32 v{V_M}, v{V_M}, v{V_S+k}, v{V_S+k+1}")
    e(f"v_max_f32 v{V_M}, v{V_M}, v{V_S+15}")
    g.wave_reduce(V_M, "max")
    e(f"v_mov_b32 v{V_TA}, 0")
    for k in range(16):
        t = V_TB + (k & 1)
        e(f"v_sub_f32 v{t}, v{V_S+k}, v{V_M}")
        e(f"v_mul_f32 v{t}, {LOG2E}, v{t}")
        e(f"v_exp_f32 v{t}, v{t}")
        g.nop(1)
        e(f"v_add_f32 v{V_TA}, v{V_TA}, v{t}")
    g.wave_reduce(V_TA, "add")
    e(f"v_mov_b32 v{V_TB}, v{V_M}")
    e(f"v_mov_b32 v{V_TC}, v{V_TA}")
    e(f"s_lshl_b32 s72, s{S_W}, 3")
    e(f"v_mov_b32 v{V_TD}, s72")
    e(f"ds_write_b64 v{V_TD}, v[{V_TB}:{V_TC}] offset:{SM}")
    e("s_waitcnt lgkmcnt(0)")
    e("s_barrier")
    e(f"ds_read_b128 {vr(V_DUP)}, v{V_ZERO} offset:{SM}")
    e(f"ds_read_b128 {vr(V_DUP+4)}, v{V_ZERO} offset:{SM+16}")
    e("s_waitcnt lgkmcnt(0)")
    e(f"v_max3_f32 v{V_M}, v{V_DUP}, v{V_DUP+2}, v{V_DUP+4}")
    e(f"v_max_f32 v{V_M}, v{V_M}, v{V_DUP+6}")
    e(f"v_mov_b32 v{V_TA}, 0")
    for w in range(4):
        e(f"v_sub_f32 v{V_TB}, v{V_DUP+2*w}, v{V_M}")
        e(f"v_mul_f32 v{V_TB}, {LOG2E}, v{V_TB}")
        e(f"v_exp_f32 v{V_TB}, v{V_TB}")
        g.nop(1)
        e(f"v_fmac_f32 v{V_TA}, v{V_TB}, v{V_DUP+2*w+1}")
    e(f"v_rcp_f32 v{V_TB}, v{V_TA}")
    g.nop(1)
    e(f"v_fma_f32 v{V_TC}, -v{V_TA}, v{V_TB}, 1.0")
    e(f"v_fmac_f32 v{V_TB}, v{V_TC}, v{V_TB}")
    for k in range(16):
        t = V_FRAG + (k & 3)
        e(f"v_sub_f32 v{t}, v{V_S+k}, v{V_M}")
        e(f"v_mul_f32 v{t}, {LOG2E}, v{t}")
        e(f"v_exp_f32 v{t}, v{t}")
        g.nop(1)
        e(f"v_mul_f32 v{t}, v{t}, v{V_TB}")
        e(f"v_cvt_pk_bf16_f32 v{t}, v{t}, v{t}")
        e(f"ds_write_b32 v{V_PDW}, v{t} offset:{PD + k*256}")
    for j in range(4):
        e(f"v_mov_b32 v{V_ACC+j}, 0")
    e("s_waitcnt lgkmcnt(0)")
    e(f"ds_read_b128 {vr(V_DUP)}, v{V_DUPP} offset:{PD}")

    def wo_srd():
        e(f"s_lshl_b32 s72, s{S_H}, 18")
        e(f"s_lshl_b32 s73, s{S_W}, 9")
        e("s_add_u32 s72, s72, s73")
        e(f"s_add_u32 s{sW}, s12, s72\ns_addc_u32 s{sW+1}, s13, 0\ns_sub_u32 s{sW+2}, 0x800000, s72")

    def wo_issue(k):
        blk, i = k >> 5, k & 31
        e(f"s_mov_b32 s{S_TMP}, {(16*(i>>2)+(i&3))*2048}")
        g.vissue(f"buffer_load_dwordx4 {ar(4*k)}, v{V_W2K}, {srd(sW)}, s{S_TMP} offen offset:{blk*256} {WSF}", f"wo{k}")

    for n in range(64):
        cur = V_DUP + 4 * (n & 1)
        nxt = V_DUP + 4 * ((n + 1) & 1)
        e("s_waitcnt lgkmcnt(0)")
        if n < 63:
            e(f"ds_read_b128 {vr(nxt)}, v{V_DUPP} offset:{PD + (n+1)*64}")
        for d in range(4):
            L = 256 + 4 * n + d
            slot = V_WIN + 4 * (L % DEPTH)
            fr = V_FRAG + 4 * (d & 1)
            g.frag(fr, cur + d)
            g.vwait(f"S{L}")
            g.nop(2)
            g.mfma(V_ACC, fr, vr(slot))
            stream_issue(L + DEPTH)
        if n == 8:
            lb = g.newlab("L_b4")
            e(f"s_cmp_eq_u32 s{S_ROLE}, 2")
            e(f"s_cbranch_scc0 {lb}")
            g.role = "B"
            e("s_waitcnt lgkmcnt(0)")
            for j in range(4):
                e(f"v_mov_b32 v{V_S+12+j}, v{nxt+j}")
            g.vwait("b1")
            e(f"v_lshlrev_b32 v{V_S}, 16, v{V_B1}")
            e(f"v_and_b32 v{V_S+1}, s{S_HIM}, v{V_B1}")
            e(f"v_lshlrev_b32 v{V_S+2}, 16, v{V_B1+1}")
            e(f"v_and_b32 v{V_S+3}, s{S_HIM}, v{V_B1+1}")
            e(f"s_lshl_b32 s72, s{S_W}, 13")
            e(f"s_add_u32 s72, s72, {AT}")
            e(f"v_add_u32 v{V_TD}, s72, v{V_L16}")
            for bb in range(2):
                hb = V_A + bb * 16
                for j in range(4):
                    x = V_S + 4 + j
                    e(f"v_add_f32 v{x}, v{hb+j}, v{hb+4+j}")
                    e(f"v_add_f32 v{x}, v{x}, v{hb+8+j}")
                    e(f"v_add_f32 v{x}, v{x}, v{hb+12+j}")
                    g.bf16r(x, x)
                    e(f"v_add_f32 v{x}, v{x}, v{V_S+j}")
                    g.bf16r(x, x)
                    t = V_S + 8 + j
                    e(f"v_mul_f32 v{t}, v{x}, v{x}")
                    e(f"v_mul_f32 v{t}, v{t}, v{x}")
                    e(f"v_mov_b32 v{V_TA}, 0x3d372713")
                    e(f"v_fma_f32 v{t}, v{t}, v{V_TA}, v{x}")
                    e(f"v_mul_f32 v{t}, 0xc0135761, v{t}")
                    e(f"v_exp_f32 v{t}, v{t}")
                    g.nop(1)
                    e(f"v_add_f32 v{t}, 1.0, v{t}")
                    e(f"v_rcp_f32 v{t}, v{t}")
                    g.nop(1)
                    e(f"v_mul_f32 v{x}, v{x}, v{t}")
                    e(f"v_cvt_pk_bf16_f32 v{x}, v{x}, v{x}")
                e(f"ds_write_b128 v{V_TD}, {vr(V_S+4)} offset:{bb*4096}")
            e("s_waitcnt lgkmcnt(0)")
            e("s_barrier")
            job_mfma_and_store("B")
            g.nop(2)
            for j in range(4):
                e(f"v_mov_b32 v{nxt+j}, v{V_S+12+j}")
            g.role = "C"
            g.lab(lb)
        if n == 11:
            job_signal("B", 4)
            wo_srd()
        if 12 <= n < 44:
            wo_issue(2 * (n - 12))
            wo_issue(2 * (n - 12) + 1)
        if n == 52:
            g.vissue(f"buffer_load_dword v{V_POLLB}, v{V_ZERO}, {srd(sDBG)}, 0 offen offset:4 sc1", "pollB")
    ts(3)
    g.nop(10)
    e(f"ds_write_b128 v{V_DW}, {vr(V_ACC)} offset:{OP}")
    e("s_waitcnt lgkmcnt(0)")
    e("s_barrier")
    for w in range(4):
        e(f"ds_read_b64 {vr(V_A+2*w,2)}, v{V_L8} offset:{OP + w*512}")
    e(f"s_lshl_b32 s72, s{S_W}, 9")
    e(f"v_add_u32 v{V_TD}, s72, v{V_L8}")
    e("s_waitcnt lgkmcnt(0)")
    for j in range(2):
        e(f"v_add_f32 v{V_A+j}, v{V_A+j}, v{V_A+2+j}")
        e(f"v_add_f32 v{V_A+4+j}, v{V_A+4+j}, v{V_A+6+j}")
        e(f"v_add_f32 v{V_A+j}, v{V_A+j}, v{V_A+4+j}")
        e(f"v_cvt_pk_bf16_f32 v{V_A+j}, v{V_A+j}, v{V_A+j}")
    e(f"ds_write_b64 v{V_TD}, {vr(V_A,2)} offset:{OD}")
    for j in range(8):
        e(f"v_mov_b32 v{V_D+j}, 0")
    e("s_waitcnt lgkmcnt(0)")
    e(f"ds_read_b128 {vr(V_DUP)}, v{V_DUPO} offset:{OD}")
    g.vwait("wo63")
    for i4 in range(8):
        cur = V_DUP + 4 * (i4 & 1)
        nxt = V_DUP + 4 * ((i4 + 1) & 1)
        e("s_waitcnt lgkmcnt(0)")
        if i4 < 7:
            e(f"ds_read_b128 {vr(nxt)}, v{V_DUPO} offset:{OD + (i4+1)*64}")
        for ii in range(4):
            i = 4 * i4 + ii
            fr = V_FRAG + 4 * (i & 1)
            g.frag(fr, cur + ii)
            g.nop(2)
            g.mfma(V_D, fr, ar(4 * i))
            g.mfma(V_D + 4, fr, ar(4 * (32 + i)))
    g.vwait("pollB")
    poll_check(V_POLLB, 4, 112)
    g.nop(8)
    e(f"s_lshl_b32 s{S_TMP}, s2, 12")
    e(f"s_add_u32 s{S_TMP}, s{S_TMP}, {AP}")
    e("s_mov_b64 exec, 0xffffffff")
    g.vissue(f"buffer_store_dwordx4 {vr(V_D)}, v{V_OUTW}, {srd(sWS)}, s{S_TMP} offen sc1", "ap0")
    g.vissue(f"buffer_store_dwordx4 {vr(V_D+4)}, v{V_OUTW}, {srd(sWS)}, s{S_TMP} offen offset:512 sc1", "ap1")
    e("s_mov_b64 exec, -1")
    MPR = 48
    XR, B2R = 104, 106
    e(f"s_lshl_b32 s72, s{S_B}, 12")
    for ks in range(14):
        e(f"s_add_u32 s{S_TMP}, s72, {MP + ks*8*4096}")
        g.vissue(f"buffer_load_dwordx4 {vr(MPR+4*ks)}, v{V_T16}, {srd(sWS)}, s{S_TMP} offen sc1", f"mp{ks}")
    e(f"v_lshlrev_b32 v{V_TD}, 3, v0")
    e(f"s_lshl_b32 s73, s{S_B}, 11")
    g.vissue(f"buffer_load_dwordx2 {vr(XR,2)}, v{V_TD}, {srd(sX)}, s73 offen", "xf")
    e(f"s_mov_b32 s{sB}, s22\ns_mov_b32 s{sB+1}, s23\ns_mov_b32 s{sB+2}, 2048\ns_mov_b32 s{sB+3}, 0x00020000")
    g.vissue(f"buffer_load_dwordx2 {vr(B2R,2)}, v{V_TD}, {srd(sB)}, 0 offen", "b2")
    g.vwait("ap1")
    e("s_barrier")
    lb = g.newlab("L_nat")
    e(f"s_cmp_eq_u32 s{S_W}, 0")
    e(f"s_cbranch_scc0 {lb}")
    e("s_mov_b64 exec, 1")
    e(f"v_mov_b32 v{V_TA}, 1")
    e(f"s_lshl_b32 s72, s{S_B}, 2")
    e(f"buffer_atomic_add v{V_TA}, v{V_ZERO}, {srd(sDBG)}, s72 offen offset:32 sc0")
    e("s_waitcnt vmcnt(0)")
    e(f"ds_write_b32 v{V_ZERO}, v{V_TA} offset:{BC}")
    e("s_waitcnt lgkmcnt(0)")
    e("s_mov_b64 exec, -1")
    g.lab(lb)
    e("s_barrier")
    e(f"ds_read_b32 v{V_TA}, v{V_ZERO} offset:{BC}")
    e("s_waitcnt lgkmcnt(0)")
    e(f"v_readfirstlane_b32 s72, v{V_TA}")
    g.nop(1)
    e("s_cmp_eq_u32 s72, 31")
    e("s_cbranch_scc0 L_fin")
    e(f"s_lshl_b32 s72, s{S_B}, 17")
    e(f"s_add_u32 s72, s72, {AP}")
    for hh in range(32):
        e(f"s_add_u32 s{S_TMP}, s72, {hh*4096}")
        g.vissue(f"buffer_load_dwordx4 {vr(V_WIN+4*hh)}, v{V_T16}, {srd(sWS)}, s{S_TMP} offen sc1", f"apl{hh}")
    g.vwait("b2")
    for ks in range(1, 14):
        for j in range(4):
            e(f"v_add_f32 v{MPR+j}, v{MPR+j}, v{MPR+4*ks+j}")
    e(f"v_lshlrev_b32 v{V_R}, 16, v{B2R}")
    e(f"v_and_b32 v{V_R+1}, s{S_HIM}, v{B2R}")
    e(f"v_lshlrev_b32 v{V_R+2}, 16, v{B2R+1}")
    e(f"v_and_b32 v{V_R+3}, s{S_HIM}, v{B2R+1}")
    e(f"v_lshlrev_b32 v{V_R+4}, 16, v{XR}")
    e(f"v_and_b32 v{V_R+5}, s{S_HIM}, v{XR}")
    e(f"v_lshlrev_b32 v{V_R+6}, 16, v{XR+1}")
    e(f"v_and_b32 v{V_R+7}, s{S_HIM}, v{XR+1}")
    for j in range(4):
        g.bf16r(MPR + j, MPR + j)
        e(f"v_add_f32 v{MPR+j}, v{MPR+j}, v{V_R+j}")
        g.bf16r(MPR + j, MPR + j)
    for hh in range(1, 32):
        g.vwait(f"apl{hh}")
        for j in range(4):
            e(f"v_add_f32 v{V_WIN+j}, v{V_WIN+j}, v{V_WIN+4*hh+j}")
    for j in range(4):
        g.bf16r(V_WIN + j, V_WIN + j)
        e(f"v_add_f32 v{V_WIN+j}, v{V_WIN+j}, v{V_R+4+j}")
        g.bf16r(V_WIN + j, V_WIN + j)
        e(f"v_add_f32 v{V_WIN+j}, v{V_WIN+j}, v{MPR+j}")
    e(f"v_cvt_pk_bf16_f32 v{V_R+8}, v{V_WIN}, v{V_WIN+1}")
    e(f"v_cvt_pk_bf16_f32 v{V_R+9}, v{V_WIN+2}, v{V_WIN+3}")
    e(f"buffer_store_dwordx2 {vr(V_R+8,2)}, v{V_TD}, {srd(sO)}, s73 offen")
    g.lab("L_fin")
    if o["ts"]:
        e(f"s_memrealtime s[72:73]")
        e("s_waitcnt vmcnt(0) lgkmcnt(0)")
        for k in range(4):
            e(f"v_mov_b32 v{V_R+k}, s{S_TS+2*k}")
        e(f"v_mov_b32 v{V_R+4}, s72")
        e(f"s_mov_b32 s{sWS+2}, 0x400000")
        e(f"s_lshl_b32 s72, s2, 7\ns_lshl_b32 s73, s{S_W}, 5\ns_add_u32 s72, s72, s73\ns_add_u32 s72, s72, {TS_OFF}")
        e(f"buffer_store_dwordx4 {vr(V_R)}, v{V_ZERO}, {srd(sWS)}, s72 offen")
        e(f"buffer_store_dword v{V_R+4}, v{V_ZERO}, {srd(sWS)}, s72 offen offset:16")
    g.lab("L_done")
    e("s_endpgm")
    return g


HEADER = open("cdna_kernels/" + NAME + ".s.ref").read().split("; Override launch geometry")[0]


def full_asm(opt=None):
    g = build(opt)
    s = HEADER
    s += "; generated by gen/gen.py\n"
    s += f"; @launch grid=(256,1,1) block=(256,1,1) lds={LDS_BYTES}\n"
    s += '.amdgcn_target "amdgcn-amd-amdhsa--gfx950"\n.text\n'
    s += f".globl {KNAME}\n.p2align 8\n.type {KNAME},@function\n{KNAME}:\n"
    s += "\n".join(g.L) + "\n"
    s += f""".section .rodata,"a"
.p2align 6
.amdhsa_kernel {KNAME}
  .amdhsa_next_free_vgpr 512
  .amdhsa_next_free_sgpr 102
  .amdhsa_accum_offset 256
  .amdhsa_group_segment_fixed_size 0
  .amdhsa_kernarg_size 104
  .amdhsa_user_sgpr_count 2
  .amdhsa_user_sgpr_kernarg_segment_ptr 1
  .amdhsa_system_sgpr_workgroup_id_x 1
.end_amdhsa_kernel
"""
    return s


if __name__ == "__main__":
    out = "cdna_kernels/" + NAME + ".s"
    open(out, "w").write(full_asm())
    print("wrote", out, os.path.getsize(out))
```

```python
import sys, json
sys.path.insert(0,'gen')
import importlib, gen
from common import *
def mk(name, opt):
    s = gen.full_asm(opt)
    s += meta([(gen.KNAME, 102, 512, 256)])
    build(s, name)
    return f"{name},{gen.KNAME},256,256,{gen.LDS_BYTES}"
if __name__=='__main__':
    variants = json.loads(sys.argv[1])
    specs=[mk(n+'.co', o) for n,o in variants.items()]
    open('specs.txt','w').write(' '.join(specs))
    print(json.dumps(["bench/bench","bench/specs.txt"]+["bench/"+s.split(',')[0] for s in specs]))
    print(json.dumps(["bench/"+s.split(',')[0]+".ts" for s in specs]))
```

```python
import sys, os

NAME = "parallel_sum__mha_block_cached__mixer_channel_mlp__decode"
KNAME = NAME + "_kernel"

OPT = dict(
    stream_flag="nt",
    w_flag="nt",
    ws_flag="nt",
    ts=False,
    apf=32,
)

PD = 0
OP = 16384
OD = 18432
FB = 22528
FX = 26624
QB = 30720
SM = 30976
CNT = 31040
RED = 32768
AT = 49152
AT2 = 81920
LDS_BYTES = 114688

HP = 0
MP = 0x80000
AP = 0x100000
QPW = 0x200000
QFL = 0x300000
WS_BYTES = 0x380000
TS_OFF = 0x380000

sK, sV, sW, sX, sWS, sDBG, sB, sO = 32, 36, 40, 44, 48, 52, 56, 60
S_W, S_B, S_H, S_ROLE, S_T1, S_T2, S_OFF, S_TMP = 64, 65, 66, 67, 68, 69, 70, 71
S_NON = 76
S_WA = 78
S_XT = 79
S_ODD, S_TWO = 80, 82
S_RL = 86
S_SELLO, S_SELHI, S_HIM = 90, 91, 92
S_TS = 94


def srd(n):
    return f"s[{n}:{n+3}]"


def vr(a, n=4):
    return f"v[{a}:{a+n-1}]"


def ar(a, n=4):
    return f"a[{a}:{a+n-1}]"


V_LANE, V_G, V_C, V_L16, V_L32, V_L8, V_ZERO = 1, 2, 3, 4, 5, 6, 7
V_MASK = 8
V_DW, V_W2K = 12, 13
V_TA, V_TB, V_TC, V_TD, V_TE, V_TF = 14, 15, 16, 17, 18, 19
V_DUPO = 20
V_X1, V_X2, V_X3 = 21, 22, 23
LP, LE, LT = 24, 32, 48
V_ACC = 28
V_Q = 24
V_DUP = 32
V_FRAG = 40
V_A = 32
V_D = 48
V_WIN = 64
DEPTH = 16
V_KV, V_DUPP, V_PDW = V_X1, V_X2, V_X3
V_M = 63
V_JOB, V_REDW, V_TA16 = V_X1, V_X2, V_X3
V_NON, V_FLG = 56, 58


class G:
    def __init__(self):
        self.L = []
        self.vm = {"C": [], "A": [], "B": []}
        self.role = "C"
        self.nlab = 0

    def e(self, s):
        for ln in s.split("\n"):
            self.L.append("  " + ln.strip())

    def lab(self, l):
        self.L.append(l + ":")

    def newlab(self, p="L"):
        self.nlab += 1
        return f"{p}_{self.nlab}"

    def nop(self, n):
        while n > 0:
            k = min(n, 16)
            self.e(f"s_nop {k-1}")
            n -= k

    def _roles(self):
        return list(self.vm.keys()) if self.role == "C" else [self.role]

    def vissue(self, instr, tag):
        worst = max(len(self.vm[r]) for r in self._roles())
        if worst >= 63:
            self._wait_n(61)
        self.e(instr)
        for r in self._roles():
            self.vm[r].append(tag)

    def _wait_n(self, n):
        self.e(f"s_waitcnt vmcnt({n})")
        for r in self._roles():
            f = self.vm[r]
            self.vm[r] = [] if n == 0 else f[-n:]

    def vwait(self, tag):
        f = self.vm[self.role]
        if tag not in f:
            return
        self._wait_n(len(f) - 1 - f.index(tag))

    def vwait_all(self):
        self._wait_n(0)

    def vm_save(self):
        return {k: list(v) for k, v in self.vm.items()}

    def vm_restore(self, s):
        self.vm = {k: list(v) for k, v in s.items()}

    def wave_reduce(self, T, op):
        for r in (8, 4, 2, 1):
            self.nop(2)
            self.e(f"v_{op}_f32_dpp v{T}, v{T}, v{T} row_ror:{r} row_mask:0xf bank_mask:0xf")
        self.nop(1)
        for i in range(4):
            self.e(f"v_readlane_b32 s{S_RL+i}, v{T}, {16*i}")
        self.nop(2)
        self.e(f"v_mov_b32 v{T}, s{S_RL}")
        for i in range(1, 4):
            self.e(f"v_{op}_f32 v{T}, s{S_RL+i}, v{T}")

    def bf16r(self, dst, src):
        self.e(f"v_cvt_pk_bf16_f32 v{dst}, v{src}, v{src}")
        self.e(f"v_lshlrev_b32 v{dst}, 16, v{dst}")

    def ln_unpack(self, P, E):
        for j in range(8):
            self.e(f"v_lshlrev_b32 v{E+2*j}, 16, v{P+j}")
            self.e(f"v_and_b32 v{E+2*j+1}, s{S_HIM}, v{P+j}")

    def ln_core(self, DST, E, T):
        e = self.e
        e(f"v_add_f32 v{T}, v{E}, v{E+1}")
        e(f"v_add_f32 v{T+1}, v{E+2}, v{E+3}")
        e(f"v_add_f32 v{T+2}, v{E+4}, v{E+5}")
        e(f"v_add_f32 v{T+3}, v{E+6}, v{E+7}")
        for j in range(4):
            e(f"v_add_f32 v{T+j}, v{T+j}, v{E+8+2*j}")
            e(f"v_add_f32 v{T+j}, v{T+j}, v{E+9+2*j}")
        e(f"v_add_f32 v{T}, v{T}, v{T+1}")
        e(f"v_add_f32 v{T+2}, v{T+2}, v{T+3}")
        e(f"v_add_f32 v{T}, v{T}, v{T+2}")
        self.wave_reduce(T, "add")
        e(f"v_mul_f32 v{T}, 0x3a800000, v{T}")
        self.bf16r(T + 1, T)
        e(f"v_mov_b32 v{T+2}, 0")
        e(f"v_mov_b32 v{T+3}, 0")
        for j in range(16):
            e(f"v_sub_f32 v{T+4+(j&1)}, v{E+j}, v{T}")
            e(f"v_fmac_f32 v{T+2+(j&1)}, v{T+4+(j&1)}, v{T+4+(j&1)}")
        e(f"v_add_f32 v{T+2}, v{T+2}, v{T+3}")
        self.wave_reduce(T + 2, "add")
        e(f"v_mul_f32 v{T+2}, 0x3a800000, v{T+2}")
        self.bf16r(T + 2, T + 2)
        e(f"v_add_f32 v{T+2}, 0x3727c5ac, v{T+2}")
        self.bf16r(T + 2, T + 2)
        e(f"v_sqrt_f32 v{T+2}, v{T+2}")
        self.nop(1)
        self.bf16r(T + 2, T + 2)
        e(f"v_rcp_f32 v{T+3}, v{T+2}")
        self.nop(1)
        for j in range(8):
            a, b = E + 2 * j, E + 2 * j + 1
            e(f"v_sub_f32 v{a}, v{a}, v{T+1}")
            e(f"v_sub_f32 v{b}, v{b}, v{T+1}")
            e(f"v_cvt_pk_bf16_f32 v{T+4}, v{a}, v{b}")
            e(f"v_lshlrev_b32 v{a}, 16, v{T+4}")
            e(f"v_and_b32 v{b}, s{S_HIM}, v{T+4}")
            e(f"v_mul_f32 v{T+4}, v{a}, v{T+3}")
            e(f"v_mul_f32 v{T+5}, v{b}, v{T+3}")
            e(f"v_fma_f32 v{T+6}, -v{T+4}, v{T+2}, v{a}")
            e(f"v_fma_f32 v{T+7}, -v{T+5}, v{T+2}, v{b}")
            e(f"v_fmac_f32 v{T+4}, v{T+6}, v{T+3}")
            e(f"v_fmac_f32 v{T+5}, v{T+7}, v{T+3}")
            e(f"v_cvt_pk_bf16_f32 v{DST+j}, v{T+4}, v{T+5}")

    def write_dup_row(self, P, E, vaddr, base):
        for j in range(8):
            self.e(f"v_perm_b32 v{E+2*j}, v{P+j}, v{P+j}, s{S_SELLO}")
            self.e(f"v_perm_b32 v{E+2*j+1}, v{P+j}, v{P+j}, s{S_SELHI}")
        for k in range(4):
            off = base + (k >> 1) * 2048 + (k & 1) * 16
            self.e(f"ds_write_b128 v{vaddr}, {vr(E+4*k)} offset:{off}")

    def frag(self, fr, dup):
        for j in range(4):
            self.e(f"v_and_b32 v{fr+j}, v{dup}, v{V_MASK+j}")

    def mfma(self, D, fr, B):
        self.e(f"v_mfma_f32_16x16x32_bf16 {vr(D)}, {vr(fr)}, {B}, {vr(D)}")

    def lds_wait_ge(self, off, target, sleep=1):
        sp = self.newlab("L_lspin")
        self.lab(sp)
        self.e(f"ds_read_b32 v{V_TF}, v{V_ZERO} offset:{off}")
        self.e("s_waitcnt lgkmcnt(0)")
        self.e(f"v_readfirstlane_b32 s72, v{V_TF}")
        self.nop(1)
        self.e(f"s_cmp_ge_u32 s72, {target}")
        self.e(f"s_cbranch_scc1 {sp}_ok")
        if sleep:
            self.e(f"s_sleep {sleep}")
        self.e(f"s_branch {sp}")
        self.lab(sp + "_ok")

    def lds_arrive(self, off):
        self.e("s_waitcnt lgkmcnt(0)")
        self.e("s_mov_b64 exec, 1")
        self.e(f"v_mov_b32 v{V_TF}, 1")
        self.e(f"ds_add_u32 v{V_ZERO}, v{V_TF} offset:{off}")
        self.e("s_mov_b64 exec, -1")

    def aux_sync(self):
        self.lds_arrive(CNT)
        self.e(f"s_add_u32 s{S_XT}, s{S_XT}, 4")
        self.lds_wait_ge(CNT, f"s{S_XT}", sleep=0)


def build(opt=None):
    o = dict(OPT)
    if opt:
        o.update(opt)
    SF, WF, WSF = o["stream_flag"], o["w_flag"], o["ws_flag"]
    APF = o["apf"]
    g = G()
    e = g.e

    def ts(i):
        if o["ts"]:
            e(f"s_memrealtime s[{S_TS+2*i}:{S_TS+2*i+1}]")

    def global_poll(off, target, vreg):
        ok = g.newlab("L_ok")
        sp = g.newlab("L_spin")
        e("s_mov_b32 s73, 0")
        g.lab(sp)
        e(f"buffer_load_dword v{vreg}, v{V_ZERO}, {srd(sDBG)}, 0 offen offset:{off} sc1")
        e("s_waitcnt vmcnt(0)")
        e(f"v_readfirstlane_b32 s72, v{vreg}")
        e("s_add_u32 s73, s73, 1")
        e(f"s_cmp_ge_u32 s72, {target}")
        e(f"s_cbranch_scc1 {ok}")
        e("s_cmp_ge_u32 s73, 0x40000")
        e(f"s_cbranch_scc1 {ok}")
        e("s_sleep 8")
        e(f"s_branch {sp}")
        g.lab(ok)
        g.vwait_all()

    e("s_cmp_ge_u32 s2, 256")
    e("s_cbranch_scc1 L_done")
    e("s_load_dwordx16 s[4:19], s[0:1], 0")
    e("s_load_dwordx8 s[20:27], s[0:1], 64")
    e("s_load_dwordx2 s[28:29], s[0:1], 96")
    ts(0)
    e(f"v_and_b32 v{V_LANE}, 63, v0")
    e(f"v_lshrrev_b32 v{V_TC}, 6, v0")
    e(f"v_lshrrev_b32 v{V_G}, 4, v{V_LANE}")
    e(f"v_readfirstlane_b32 s{S_W}, v{V_TC}")
    e(f"v_and_b32 v{V_C}, 15, v{V_LANE}")
    e(f"v_lshlrev_b32 v{V_L16}, 4, v{V_LANE}")
    e(f"v_lshlrev_b32 v{V_L32}, 5, v{V_LANE}")
    e(f"v_lshlrev_b32 v{V_L8}, 3, v{V_LANE}")
    e(f"v_mov_b32 v{V_ZERO}, 0")
    e(f"v_lshlrev_b32 v{V_TB}, 4, v{V_C}")
    e(f"v_lshl_add_u32 v{V_W2K}, v{V_G}, 13, v{V_TB}")
    e(f"s_and_b32 s{S_H}, s2, 31")
    e(f"s_lshr_b32 s{S_B}, s2, 5")
    e(f"s_and_b32 s{S_WA}, s{S_W}, 3")
    e(f"s_mov_b32 s{S_SELLO}, 0x01000100")
    e(f"s_mov_b32 s{S_SELHI}, 0x03020302")
    e(f"s_mov_b32 s{S_HIM}, 0xffff0000")
    e(f"s_mov_b32 s{S_ODD}, 0xaaaaaaaa")
    e(f"s_mov_b32 s{S_ODD+1}, 0xaaaaaaaa")
    e(f"s_mov_b32 s{S_TWO}, 0xcccccccc")
    e(f"s_mov_b32 s{S_TWO+1}, 0xcccccccc")
    e(f"s_mov_b32 s{S_XT}, 0")
    e("s_waitcnt lgkmcnt(0)")
    e(f"s_mov_b32 s{sX}, s4\ns_mov_b32 s{sX+1}, s5\ns_mov_b32 s{sX+2}, 16384\ns_mov_b32 s{sX+3}, 0x00020000")
    e(f"s_lshl_b32 s{S_TMP}, s{S_W}, 11")
    g.vissue(f"buffer_load_dwordx4 {vr(LP)}, v{V_L16}, {srd(sX)}, s{S_TMP} offen", "x0")
    g.vissue(f"buffer_load_dwordx4 {vr(LP+4)}, v{V_L16}, {srd(sX)}, s{S_TMP} offen offset:1024", "x1")
    e(f"s_mov_b32 s{sDBG}, s26\ns_mov_b32 s{sDBG+1}, s27\ns_mov_b32 s{sDBG+2}, 256\ns_mov_b32 s{sDBG+3}, 0x00020000")
    e(f"s_mov_b32 s{sWS}, s28\ns_mov_b32 s{sWS+1}, s29\ns_mov_b32 s{sWS+2}, {WS_BYTES}\ns_mov_b32 s{sWS+3}, 0x00020000")
    e(f"s_mov_b32 s{sW+3}, 0x00020000")
    e(f"s_cmp_ge_u32 s{S_W}, 4")
    e("s_cbranch_scc1 L_aux_pro")

    def common_consts():
        e(f"s_mov_b32 s{sO}, s24\ns_mov_b32 s{sO+1}, s25\ns_mov_b32 s{sO+2}, 16384\ns_mov_b32 s{sO+3}, 0x00020000")
        e(f"v_and_b32 v{V_TA}, 1, v{V_C}")
        e(f"v_lshlrev_b32 v{V_TA}, 4, v{V_TA}")
        e(f"v_mov_b32 v{V_TB}, 0xffff")
        e(f"v_lshlrev_b32 v{V_TB}, v{V_TA}, v{V_TB}")
        e(f"v_bfe_u32 v{V_TA}, v{V_C}, 1, 2")
        for j in range(4):
            e(f"v_cmp_eq_u32 vcc, {j}, v{V_TA}")
            g.nop(2)
            e(f"v_cndmask_b32 v{V_MASK+j}, 0, v{V_TB}, vcc")
        e(f"v_lshlrev_b32 v{V_TA}, 4, v{V_G}")
        e(f"v_lshl_add_u32 v{V_DUPO}, v{V_TC}, 9, v{V_TA}")
        e(f"v_and_b32 v{V_TB}, 1, v{V_G}")
        e(f"v_lshlrev_b32 v{V_TB}, 4, v{V_TB}")
        e(f"v_lshl_add_u32 v{V_DW}, v{V_C}, 5, v{V_TB}")

    def ln_own_row():
        e(f"s_lshl_b32 s72, s{S_W}, 12")
        e(f"s_add_u32 s72, s72, {AT}")
        e(f"v_add_u32 v{V_TD}, s72, v{V_L32}")
        g.vwait("x1")
        g.ln_unpack(LP, LE)
        g.ln_core(LP, LE, LT)
        g.write_dup_row(LP, LE, V_TD, 0)
        e("s_waitcnt lgkmcnt(0)")
        e("s_barrier")

    def wo_srd():
        e(f"s_lshl_b32 s72, s{S_H}, 18")
        e(f"s_lshl_b32 s73, s{S_W}, 8")
        e("s_add_u32 s72, s72, s73")
        e(f"s_add_u32 s{sW}, s12, s72\ns_addc_u32 s{sW+1}, s13, 0\ns_sub_u32 s{sW+2}, 0x800000, s72")

    def wo_issue(i):
        e(f"s_mov_b32 s{S_TMP}, {(16*(i>>2)+(i&3))*2048}")
        g.vissue(f"buffer_load_dwordx4 {ar(4*i)}, v{V_W2K}, {srd(sW)}, s{S_TMP} offen {WSF}", f"wo{i}")

    vm0 = g.vm_save()

    e("s_lshl_b32 s72, s2, 20")
    e(f"s_add_u32 s{sK}, s6, s72\ns_addc_u32 s{sK+1}, s7, 0\ns_mov_b32 s{sK+2}, 0x100000\ns_mov_b32 s{sK+3}, 0x00020000")
    e(f"s_add_u32 s{sV}, s8, s72\ns_addc_u32 s{sV+1}, s9, 0\ns_mov_b32 s{sV+2}, 0x100000\ns_mov_b32 s{sV+3}, 0x00020000")
    e(f"v_lshl_add_u32 v{V_KV}, v{V_TC}, 12, v{V_L16}")
    e(f"s_mov_b32 s{S_OFF}, 0")

    def dest(L):
        if L < APF:
            return ("a", 4 * L)
        return ("v", V_WIN + 4 * ((L - APF) % DEPTH))

    def stream_issue(L):
        if L >= 512:
            return
        if L == 256:
            e(f"s_mov_b32 s{S_OFF}, 0")
        sd = sK if L < 256 else sV
        k, r = dest(L)
        d = ar(r) if k == "a" else vr(r)
        g.vissue(f"buffer_load_dwordx4 {d}, v{V_KV}, {srd(sd)}, s{S_OFF} offen offset:{(L&3)*1024} {SF}", f"S{L}")
        if L & 3 == 3:
            e(f"s_add_u32 s{S_OFF}, s{S_OFF}, 16384")

    for L in range(APF + DEPTH):
        stream_issue(L)
    common_consts()
    lb = g.newlab("L_ci")
    e(f"s_cmp_eq_u32 s{S_W}, 0")
    e(f"s_cbranch_scc0 {lb}")
    for j in range(4):
        e(f"v_mov_b32 v{V_TA+j}, 0")
    e(f"ds_write_b128 v{V_ZERO}, {vr(V_TA)} offset:{CNT}")
    g.lab(lb)
    e(f"v_lshrrev_b32 v{V_TC}, 6, v0")
    e(f"v_lshlrev_b32 v{V_TA}, 4, v{V_G}")
    e(f"v_lshl_add_u32 v{V_DUPP}, v{V_TC}, 12, v{V_TA}")
    e(f"v_bfe_u32 v{V_TB}, v{V_C}, 1, 1")
    e(f"v_lshl_add_u32 v{V_PDW}, v{V_TB}, 7, v{V_DUPP}")
    e(f"v_and_b32 v{V_TB}, 1, v{V_C}")
    e(f"v_lshl_add_u32 v{V_PDW}, v{V_TB}, 6, v{V_PDW}")
    e(f"v_bfe_u32 v{V_TB}, v{V_C}, 2, 1")
    e(f"v_lshl_add_u32 v{V_PDW}, v{V_TB}, 3, v{V_PDW}")
    e(f"v_lshrrev_b32 v{V_TB}, 3, v{V_C}")
    e(f"v_lshl_add_u32 v{V_PDW}, v{V_TB}, 2, v{V_PDW}")
    ln_own_row()
    g.lds_wait_ge(CNT + 8, 1, sleep=2)
    e(f"v_lshlrev_b32 v{V_TA}, 4, v{V_C}")
    e(f"ds_read_b128 {vr(V_Q)}, v{V_TA} offset:{QB}")
    e(f"v_mov_b32 v{V_M}, 0xff800000")
    e("s_waitcnt lgkmcnt(0)")
    ts(1)
    nxt_issue = APF + DEPTH
    for beta in range(16):
        for t in range(16):
            L = 16 * beta + t
            k, r = dest(L)
            g.vwait(f"S{L}")
            if k == "a":
                for j in range(4):
                    e(f"v_accvgpr_read_b32 v{V_D+j + 4*(t&1)}, a{r+j}")
                r = V_D + 4 * (t & 1)
            e(f"v_dot2_f32_bf16 v{V_A+t}, v{r}, v{V_Q}, 0")
            for j in range(1, 4):
                e(f"v_dot2_f32_bf16 v{V_A+t}, v{r+j}, v{V_Q+j}, v{V_A+t}")
            if k == "v":
                stream_issue(nxt_issue)
                nxt_issue += 1
        g.nop(3)
        A = V_A
        for p in range(8):
            e(f"v_add_f32_dpp v{A+2*p}, v{A+2*p}, v{A+2*p} row_ror:8 row_mask:0xf bank_mask:0x3")
            e(f"v_add_f32_dpp v{A+2*p}, v{A+2*p+1}, v{A+2*p+1} row_ror:8 row_mask:0xf bank_mask:0xc")
        for p in range(4):
            e(f"v_add_f32_dpp v{A+4*p}, v{A+4*p}, v{A+4*p} row_shl:4 row_mask:0xf bank_mask:0x5")
            e(f"v_add_f32_dpp v{A+4*p}, v{A+4*p+2}, v{A+4*p+2} row_shr:4 row_mask:0xf bank_mask:0xa")
        g.nop(1)
        for p in range(4):
            e(f"v_add_f32_dpp v{A+4*p}, v{A+4*p}, v{A+4*p} quad_perm:[1,0,3,2] row_mask:0xf bank_mask:0xf")
        for p in range(2):
            e(f"v_cndmask_b32 v{A+8*p}, v{A+8*p}, v{A+8*p+4}, s[{S_ODD}:{S_ODD+1}]")
        g.nop(1)
        for p in range(2):
            e(f"v_add_f32_dpp v{A+8*p}, v{A+8*p}, v{A+8*p} quad_perm:[2,3,0,1] row_mask:0xf bank_mask:0xf")
        e(f"v_cndmask_b32 v{V_TA}, v{A}, v{A+8}, s[{S_TWO}:{S_TWO+1}]")
        g.bf16r(V_TA, V_TA)
        e(f"v_mul_f32 v{V_TA}, 0x3db504f3, v{V_TA}")
        g.bf16r(V_TA, V_TA)
        e(f"v_max_f32 v{V_M}, v{V_M}, v{V_TA}")
        e(f"ds_write_b32 v{V_PDW}, v{V_TA} offset:{PD + beta*256}")
    ts(2)
    LOG2E = "0x3fb8aa3b"
    S = V_A
    for k in range(16):
        e(f"ds_read_b32 v{S+k}, v{V_PDW} offset:{PD + k*256}")
    g.wave_reduce(V_M, "max")
    e(f"v_mov_b32 v{V_TE}, 0")
    e("s_waitcnt lgkmcnt(0)")
    for k in range(16):
        t = V_TA + (k & 1)
        e(f"v_sub_f32 v{t}, v{S+k}, v{V_M}")
        e(f"v_mul_f32 v{t}, {LOG2E}, v{t}")
        e(f"v_exp_f32 v{t}, v{t}")
        g.nop(1)
        e(f"v_add_f32 v{V_TE}, v{V_TE}, v{t}")
    g.wave_reduce(V_TE, "add")
    e(f"v_mov_b32 v{V_TA}, v{V_M}")
    e(f"v_mov_b32 v{V_TB}, v{V_TE}")
    e(f"s_lshl_b32 s72, s{S_W}, 3")
    e(f"v_mov_b32 v{V_TC}, s72")
    e(f"ds_write_b64 v{V_TC}, v[{V_TA}:{V_TB}] offset:{SM}")
    g.lds_arrive(CNT + 4)
    g.lds_wait_ge(CNT + 4, 4, sleep=0)
    X = V_D
    e(f"ds_read_b128 {vr(X)}, v{V_ZERO} offset:{SM}")
    e(f"ds_read_b128 {vr(X+4)}, v{V_ZERO} offset:{SM+16}")
    e("s_waitcnt lgkmcnt(0)")
    e(f"v_max3_f32 v{V_TC}, v{X}, v{X+2}, v{X+4}")
    e(f"v_max_f32 v{V_TC}, v{V_TC}, v{X+6}")
    e(f"v_mov_b32 v{V_TE}, 0")
    for w in range(4):
        e(f"v_sub_f32 v{V_TA}, v{X+2*w}, v{V_TC}")
        e(f"v_mul_f32 v{V_TA}, {LOG2E}, v{V_TA}")
        e(f"v_exp_f32 v{V_TA}, v{V_TA}")
        g.nop(1)
        e(f"v_fmac_f32 v{V_TE}, v{V_TA}, v{X+2*w+1}")
    e(f"v_rcp_f32 v{V_TD}, v{V_TE}")
    g.nop(1)
    e(f"v_fma_f32 v{V_TA}, -v{V_TE}, v{V_TD}, 1.0")
    e(f"v_fmac_f32 v{V_TD}, v{V_TA}, v{V_TD}")
    for k in range(16):
        t = S + k
        e(f"v_sub_f32 v{t}, v{t}, v{V_TC}")
        e(f"v_mul_f32 v{t}, {LOG2E}, v{t}")
        e(f"v_exp_f32 v{t}, v{t}")
        g.nop(1)
        e(f"v_mul_f32 v{t}, v{t}, v{V_TD}")
        e(f"v_cvt_pk_bf16_f32 v{t}, v{t}, v{t}")
        e(f"ds_write_b32 v{V_PDW}, v{t} offset:{PD + k*256}")
    for j in range(4):
        e(f"v_mov_b32 v{V_ACC+j}, 0")
    wo_srd()
    e("s_waitcnt lgkmcnt(0)")
    e(f"ds_read_b128 {vr(V_DUP)}, v{V_DUPP} offset:{PD}")
    for n in range(64):
        cur = V_DUP + 4 * (n & 1)
        nxt = V_DUP + 4 * ((n + 1) & 1)
        e("s_waitcnt lgkmcnt(0)")
        if n < 63:
            e(f"ds_read_b128 {vr(nxt)}, v{V_DUPP} offset:{PD + (n+1)*64}")
        for d in range(4):
            L = 256 + 4 * n + d
            k, r = dest(L)
            fr = V_FRAG + 4 * (d & 1)
            g.frag(fr, cur + d)
            g.vwait(f"S{L}")
            g.nop(2)
            g.mfma(V_ACC, fr, vr(r))
            stream_issue(nxt_issue)
            nxt_issue += 1
        if 4 <= n < 36:
            wo_issue(n - 4)
    ts(3)
    g.nop(10)
    e(f"s_lshl_b32 s72, s{S_W}, 9")
    e(f"v_add_u32 v{V_TA}, s72, v{V_DW}")
    e(f"ds_write_b128 v{V_TA}, {vr(V_ACC)} offset:{OP}")

    g.lab("L_tail")
    e("s_waitcnt vmcnt(0) lgkmcnt(0)")
    g.vm = {"C": [], "A": [], "B": []}
    e("s_barrier")
    R = V_D
    for w in range(4):
        e(f"ds_read_b64 {vr(R+2*w,2)}, v{V_L8} offset:{OP + w*512}")
    e(f"s_lshl_b32 s72, s{S_W}, 9")
    e(f"v_add_u32 v{V_TD}, s72, v{V_L8}")
    e(f"v_add_u32 v{V_TE}, s72, v{V_DW}")
    e("s_waitcnt lgkmcnt(0)")
    for j in range(2):
        e(f"v_add_f32 v{R+j}, v{R+j}, v{R+2+j}")
        e(f"v_add_f32 v{R+4+j}, v{R+4+j}, v{R+6+j}")
        e(f"v_add_f32 v{R+j}, v{R+j}, v{R+4+j}")
        e(f"v_cvt_pk_bf16_f32 v{R+j}, v{R+j}, v{R+j}")
    e(f"ds_write_b64 v{V_TD}, {vr(R,2)} offset:{OD}")
    for j in range(4):
        e(f"v_mov_b32 v{V_ACC+j}, 0")
    e("s_waitcnt lgkmcnt(0)")
    e(f"ds_read_b128 {vr(V_DUP)}, v{V_DUPO} offset:{OD}")
    for i4 in range(8):
        cur = V_DUP + 4 * (i4 & 1)
        nxt = V_DUP + 4 * ((i4 + 1) & 1)
        e("s_waitcnt lgkmcnt(0)")
        if i4 < 7:
            e(f"ds_read_b128 {vr(nxt)}, v{V_DUPO} offset:{OD + (i4+1)*64}")
        for ii in range(4):
            i = 4 * i4 + ii
            fr = V_FRAG + 4 * (i & 1)
            g.frag(fr, cur + ii)
            g.nop(2)
            g.mfma(V_ACC, fr, ar(4 * i))
    e(f"s_lshl_b32 s{S_TMP}, s2, 12")
    e(f"s_add_u32 s{S_TMP}, s{S_TMP}, {AP}")
    e(f"v_lshlrev_b32 v{V_TD}, 3, v0")
    e(f"v_lshlrev_b32 v{V_TC}, 2, v0")
    g.nop(6)
    e("s_mov_b64 exec, 0xffffffff")
    e(f"buffer_store_dwordx4 {vr(V_ACC)}, v{V_TE}, {srd(sWS)}, s{S_TMP} offen sc1")
    e("s_mov_b64 exec, -1")
    e(f"ds_read_b64 {vr(R,2)}, v{V_TD} offset:{FB}")
    e(f"ds_read_b64 {vr(R+2,2)}, v{V_TD} offset:{FX}")
    e("s_waitcnt vmcnt(0)")
    e("s_barrier")
    lb = g.newlab("L_nat")
    e(f"s_cmp_eq_u32 s{S_W}, 0")
    e(f"s_cbranch_scc0 {lb}")
    e("s_mov_b64 exec, 1")
    e(f"v_mov_b32 v{V_TA}, 1")
    e(f"s_lshl_b32 s72, s{S_B}, 2")
    e(f"buffer_atomic_add v{V_TA}, v{V_ZERO}, {srd(sDBG)}, s72 offen offset:32 sc0")
    e("s_waitcnt vmcnt(0)")
    e(f"ds_write_b32 v{V_ZERO}, v{V_TA} offset:{CNT+12}")
    e("s_waitcnt lgkmcnt(0)")
    e("s_mov_b64 exec, -1")
    g.lab(lb)
    e("s_barrier")
    e(f"ds_read_b32 v{V_TA}, v{V_ZERO} offset:{CNT+12}")
    e("s_waitcnt lgkmcnt(0)")
    e(f"v_readfirstlane_b32 s72, v{V_TA}")
    g.nop(1)
    e("s_cmp_eq_u32 s72, 31")
    e("s_cbranch_scc0 L_fin")
    e(f"s_lshl_b32 s72, s{S_B}, 17")
    e(f"s_add_u32 s72, s72, {AP}")
    for hh in range(32):
        e(f"s_add_u32 s{S_TMP}, s72, {hh*4096}")
        g.vissue(f"buffer_load_dwordx2 {vr(V_WIN+2*hh,2)}, v{V_TD}, {srd(sWS)}, s{S_TMP} offen sc1", f"apl{hh}")
    e(f"s_lshl_b32 s73, s{S_B}, 11")
    for hh in range(1, 32):
        g.vwait(f"apl{hh}")
        for j in range(2):
            e(f"v_add_f32 v{V_WIN+j}, v{V_WIN+j}, v{V_WIN+2*hh+j}")
    for j in range(2):
        g.bf16r(V_WIN + j, V_WIN + j)
        e(f"v_add_f32 v{V_WIN+j}, v{V_WIN+j}, v{R+2+j}")
        g.bf16r(V_WIN + j, V_WIN + j)
        e(f"v_add_f32 v{V_WIN+j}, v{V_WIN+j}, v{R+j}")
    e(f"v_cvt_pk_bf16_f32 v{V_TA}, v{V_WIN}, v{V_WIN+1}")
    e(f"buffer_store_dword v{V_TA}, v{V_TC}, {srd(sO)}, s73 offen")
    g.lab("L_fin")
    if o["ts"]:
        e(f"s_memrealtime s[72:73]")
        e("s_waitcnt vmcnt(0) lgkmcnt(0)")
        for k in range(4):
            e(f"v_mov_b32 v{V_D+k}, s{S_TS+2*k}")
        e(f"v_mov_b32 v{V_D+4}, s72")
        e(f"s_mov_b32 s{sWS+2}, 0x400000")
        e(f"s_lshl_b32 s72, s2, 8\ns_lshl_b32 s73, s{S_W}, 5\ns_add_u32 s72, s72, s73\ns_add_u32 s72, s72, {TS_OFF}")
        e(f"buffer_store_dwordx4 {vr(V_D)}, v{V_ZERO}, {srd(sWS)}, s72 offen")
        e(f"buffer_store_dword v{V_D+4}, v{V_ZERO}, {srd(sWS)}, s72 offen offset:16")
    g.lab("L_done")
    e("s_endpgm")

    g.lab("L_aux_pro")
    g.vm_restore(vm0)
    e("s_setprio 2")
    e(f"v_lshl_add_u32 v{V_TE}, v{V_G}, 15, v{V_TB}")
    e(f"s_lshl_b32 s72, s{S_B}, 2")
    e(f"s_add_u32 s72, s72, s{S_WA}")
    e(f"s_lshl_b32 s72, s72, 18")
    e(f"s_lshl_b32 s73, s{S_H}, 8")
    e("s_add_u32 s72, s72, s73")
    e(f"s_add_u32 s{sW}, s10, s72\ns_addc_u32 s{sW+1}, s11, 0")
    e(f"s_sub_u32 s{sW+2}, 0x800000, s72")
    for i in range(8):
        e(f"s_mov_b32 s{S_TMP}, {(16*(i>>2)+(i&3))*8192}")
        g.vissue(f"buffer_load_dwordx4 {ar(4*i)}, v{V_TE}, {srd(sW)}, s{S_TMP} offen {WF}", f"wq{i}")
    e(f"s_or_b32 s72, s2, s{S_WA}")
    e("s_cmp_eq_u32 s72, 0")
    e("s_cbranch_scc0 L_no_nonce")
    e("s_memrealtime s[72:73]")
    e("s_waitcnt lgkmcnt(0)")
    e("s_or_b32 s72, s72, 1")
    e(f"v_mov_b32 v{V_NON}, s72")
    e(f"v_mov_b32 v{V_NON+1}, s73")
    e("s_mov_b64 exec, 1")
    e(f"buffer_store_dwordx2 {vr(V_NON,2)}, v{V_ZERO}, {srd(sDBG)}, 0 offen offset:8 sc1")
    e("s_mov_b64 exec, -1")
    g.nop(2)
    g.lab("L_no_nonce")
    g.vissue(f"buffer_load_dwordx2 {vr(V_NON,2)}, v{V_ZERO}, {srd(sDBG)}, 0 offen offset:8 sc1", "non")
    e("s_lshr_b32 s72, s2, 3")
    e("s_and_b32 s73, s2, 7")
    e("s_mul_i32 s73, s73, 14")
    e("s_add_u32 s74, s73, s72")
    e("s_sub_u32 s75, s74, 14")
    e(f"s_and_b32 s{S_T1}, s74, 3")
    e(f"s_lshr_b32 s{S_T2}, s74, 2")
    e("s_cmp_lt_u32 s72, 14")
    e(f"s_cselect_b32 s{S_ROLE}, 1, 0")
    e("s_cbranch_scc1 L_role_done")
    e("s_cmp_lt_u32 s72, 28")
    e(f"s_cselect_b32 s{S_ROLE}, 2, 0")
    e(f"s_lshr_b32 s{S_T1}, s75, 3")
    e(f"s_and_b32 s{S_T2}, s75, 7")
    g.lab("L_role_done")
    common_consts()
    e(f"v_and_b32 v{V_TC}, 3, v{V_TC}")
    e(f"v_lshlrev_b32 v{V_TA}, 4, v{V_G}")
    e(f"v_lshrrev_b32 v{V_TB}, 3, v{V_C}")
    e(f"v_lshl_add_u32 v{V_JOB}, v{V_TB}, 12, v{V_TA}")
    e(f"v_lshrrev_b32 v{V_TA}, 1, v{V_G}")
    e(f"v_lshl_add_u32 v{V_REDW}, v{V_TA}, 9, v{V_DW}")
    e(f"v_lshl_add_u32 v{V_REDW}, v{V_TC}, 12, v{V_REDW}")
    e(f"v_lshl_add_u32 v{V_TA16}, v{V_TC}, 10, v{V_L16}")
    ln_own_row()

    def tile_mfma(vaddr, nblk, abase, tagp, D):
        for j in range(16):
            e(f"v_mov_b32 v{D+j}, 0")
        seq = [(i4, pr) for i4 in range(nblk) for pr in range(4)]
        e(f"ds_read_b128 {vr(V_DUP)}, v{vaddr} offset:0")
        for n, (i4, pr) in enumerate(seq):
            cur = V_DUP + 4 * (n & 1)
            nxt = V_DUP + 4 * ((n + 1) & 1)
            e("s_waitcnt lgkmcnt(0)")
            if n + 1 < len(seq):
                i4n, prn = seq[n + 1]
                e(f"ds_read_b128 {vr(nxt)}, v{vaddr} offset:{prn*8192 + i4n*64}")
            for ii in range(4):
                i = 4 * i4 + ii
                fr = V_FRAG + 4 * (ii & 1)
                g.frag(fr, cur + ii)
                g.vwait(f"{tagp}{i}")
                g.nop(2)
                g.mfma(D + 4 * pr, fr, ar(abase + 4 * i))
        g.nop(10)
        for pr in range(4):
            e(f"ds_write_b128 v{V_REDW}, {vr(D+4*pr)} offset:{RED + pr*1024}")
        g.aux_sync()
        for w in range(4):
            e(f"ds_read_b128 {vr(D+4*w)}, v{V_TA16} offset:{RED + w*4096}")
        e("s_waitcnt lgkmcnt(0)")
        for j in range(4):
            e(f"v_add_f32 v{D+j}, v{D+j}, v{D+4+j}")
            e(f"v_add_f32 v{D+8+j}, v{D+8+j}, v{D+12+j}")
        for j in range(4):
            e(f"v_add_f32 v{D+j}, v{D+j}, v{D+8+j}")

    QD = V_WIN
    e(f"s_lshl_b32 s72, s{S_B}, 9")
    e(f"s_lshl_b32 s73, s{S_WA}, 7")
    e("s_add_u32 s72, s72, s73")
    e(f"s_add_u32 s72, s72, {AT}")
    e(f"v_add_u32 v{V_TE}, s72, v{V_JOB}")
    tile_mfma(V_TE, 2, 0, "wq", QD)
    e(f"s_lshl_b32 s72, s{S_H}, 3")
    e(f"s_add_u32 s72, s72, s{S_B}")
    e(f"s_lshl_b32 s{S_TMP}, s72, 12")
    e(f"s_add_u32 s{S_TMP}, s{S_TMP}, {QPW}")
    g.vissue(f"buffer_store_dwordx4 {vr(QD)}, v{V_TA16}, {srd(sWS)}, s{S_TMP} offen sc1", "qst")
    g.vwait("non")
    ok = g.newlab("L_ok")
    sp = g.newlab("L_spin")
    e("s_mov_b32 s73, 0")
    g.lab(sp)
    e(f"v_readfirstlane_b32 s{S_NON}, v{V_NON}")
    e(f"v_readfirstlane_b32 s{S_NON+1}, v{V_NON+1}")
    g.nop(1)
    e(f"s_cmp_lg_u32 s{S_NON}, 0")
    e(f"s_cbranch_scc1 {ok}")
    e("s_add_u32 s73, s73, 1")
    e("s_cmp_ge_u32 s73, 0x40000")
    e(f"s_cbranch_scc1 {ok}")
    e(f"buffer_load_dwordx2 {vr(V_NON,2)}, v{V_ZERO}, {srd(sDBG)}, 0 offen offset:8 sc1")
    e("s_waitcnt vmcnt(0)")
    e(f"s_branch {sp}")
    g.lab(ok)
    e(f"v_mov_b32 v{V_NON}, s{S_NON}")
    e(f"v_mov_b32 v{V_NON+1}, s{S_NON+1}")
    e(f"s_lshl_b32 s72, s{S_H}, 2")
    e(f"s_add_u32 s73, s72, s{S_WA}")
    e(f"s_lshl_b32 s73, s73, 3")
    e(f"s_add_u32 s73, s73, s{S_B}")
    e(f"s_lshl_b32 s73, s73, 3")
    e(f"s_add_u32 s73, s73, {QFL}")
    e(f"s_lshr_b32 s74, s{S_B}, 1")
    e("s_add_u32 s74, s74, s72")
    e("s_lshl_b32 s74, s74, 6")
    e(f"s_add_u32 s74, s74, {QFL}")
    e(f"v_and_b32 v{V_TA}, 7, v{V_LANE}")
    e(f"v_lshlrev_b32 v{V_TA}, 3, v{V_TA}")
    g.vwait("qst")
    e("s_mov_b64 exec, 1")
    e(f"buffer_store_dwordx2 {vr(V_NON,2)}, v{V_ZERO}, {srd(sWS)}, s73 offen sc1")
    e("s_mov_b64 exec, -1")
    e(f"s_cmp_eq_u32 s{S_WA}, 0")
    e("s_cbranch_scc0 L_no_gather")
    ok = g.newlab("L_ok")
    sp = g.newlab("L_spin")
    e("s_mov_b32 s73, 0")
    g.lab(sp)
    e(f"buffer_load_dwordx2 {vr(V_FLG,2)}, v{V_TA}, {srd(sWS)}, s74 offen sc1")
    e("s_waitcnt vmcnt(0)")
    e(f"v_cmp_ne_u64 vcc, {vr(V_FLG,2)}, {vr(V_NON,2)}")
    e("s_add_u32 s73, s73, 1")
    e("s_cmp_ge_u32 s73, 0x40000")
    e(f"s_cbranch_scc1 {ok}")
    g.nop(2)
    e(f"s_cbranch_vccnz {sp}")
    g.lab(ok)
    e(f"s_lshl_b32 s72, s{S_H}, 15")
    e(f"s_lshl_b32 s73, s{S_B}, 9")
    e("s_add_u32 s72, s72, s73")
    for k8 in range(8):
        e(f"s_add_u32 s{S_TMP}, s72, {QPW + k8*4096}")
        e(f"buffer_load_dwordx2 {vr(QD+2*k8,2)}, v{V_L8}, {srd(sWS)}, s{S_TMP} offen sc1")
    e(f"v_lshlrev_b32 v{V_TA}, 2, v{V_LANE}")
    e("s_waitcnt vmcnt(0)")
    for k8 in range(1, 8):
        for j in range(2):
            e(f"v_add_f32 v{QD+j}, v{QD+j}, v{QD+2*k8+j}")
    e(f"v_cvt_pk_bf16_f32 v{QD}, v{QD}, v{QD+1}")
    e(f"ds_write_b32 v{V_TA}, v{QD} offset:{QB}")
    g.lds_arrive(CNT + 8)
    g.lab("L_no_gather")
    e("s_setprio 0")
    ts(1)

    JT = 64
    D = V_D

    def job_store_signal(role, off):
        rowb = 3584 * 4 if role == "A" else 1024 * 4
        e(f"v_and_b32 v{V_TA}, 255, v0")
        e(f"v_lshrrev_b32 v{V_TA}, 5, v{V_TA}")
        e(f"v_mul_u32_u24 v{V_TA}, {rowb}, v{V_TA}")
        e(f"v_and_b32 v{V_TB}, 31, v0")
        e(f"v_lshl_add_u32 v{V_TA}, v{V_TB}, 4, v{V_TA}")
        e(f"s_mul_i32 s{S_TMP}, s{S_T1}, {8*rowb}")
        e(f"s_lshl_b32 s73, s{S_T2}, 9")
        e(f"s_add_u32 s{S_TMP}, s{S_TMP}, s73")
        e(f"s_add_u32 s{S_TMP}, s{S_TMP}, {HP if role == 'A' else MP}")
        g.vissue(f"buffer_store_dwordx4 {vr(D)}, v{V_TA}, {srd(sWS)}, s{S_TMP} offen sc1", "jst")
        g.vwait_all()
        g.aux_sync()
        lb = g.newlab("L_sig")
        e(f"s_cmp_eq_u32 s{S_WA}, 0")
        e(f"s_cbranch_scc0 {lb}")
        e("s_mov_b64 exec, 1")
        e(f"v_mov_b32 v{V_TA}, 1")
        e(f"buffer_atomic_add v{V_TA}, v{V_ZERO}, {srd(sDBG)}, 0 offen offset:{off}")
        e("s_mov_b64 exec, -1")
        g.lab(lb)

    e(f"s_cmp_eq_u32 s{S_ROLE}, 1")
    e("s_cbranch_scc0 L_not_a")
    g.role = "A"
    e(f"v_lshlrev_b32 v{V_TA}, 4, v{V_C}")
    e(f"v_mul_u32_u24 v{V_TE}, 28672, v{V_G}")
    e(f"v_add_u32 v{V_TE}, v{V_TE}, v{V_TA}")
    e(f"s_lshl_b32 s72, s{S_T1}, 2\ns_add_u32 s72, s72, s{S_WA}\ns_mul_i32 s72, s72, {64*7168}")
    e(f"s_lshl_b32 s73, s{S_T2}, 8\ns_add_u32 s72, s72, s73")
    e(f"s_add_u32 s{sW}, s16, s72\ns_addc_u32 s{sW+1}, s17, 0\ns_sub_u32 s{sW+2}, {1024*7168}, s72")
    for i in range(16):
        e(f"s_mov_b32 s{S_TMP}, {(16*(i>>2)+(i&3))*7168}")
        g.vissue(f"buffer_load_dwordx4 {ar(JT+4*i)}, v{V_TE}, {srd(sW)}, s{S_TMP} offen {WF}", f"jt{i}")
    e(f"s_lshl_b32 s72, s{S_WA}, 13")
    e(f"s_add_u32 s72, s72, {AT}")
    e(f"v_add_u32 v{V_TD}, s72, v{V_L32}")
    e(f"v_add_u32 v{V_TE}, {AT2-AT}, v{V_TD}")
    for rr in range(2):
        for k in range(4):
            e(f"ds_read_b128 {vr(LE+4*k)}, v{V_TD} offset:{rr*4096 + (k>>1)*2048 + (k&1)*16}")
        e("s_waitcnt lgkmcnt(0)")
        for j in range(16):
            e(f"v_and_b32 v{LE+j}, s{S_HIM}, v{LE+j}")
        g.ln_core(LP, LE, LT)
        g.write_dup_row(LP, LE, V_TE, rr * 4096)
    e(f"s_lshl_b32 s72, s{S_T1}, 10")
    e(f"s_lshl_b32 s73, s{S_WA}, 8")
    e("s_add_u32 s72, s72, s73")
    e(f"s_add_u32 s72, s72, {AT2}")
    e(f"v_add_u32 v{V_TE}, s72, v{V_JOB}")
    g.aux_sync()
    tile_mfma(V_TE, 4, JT, "jt", D)
    job_store_signal("A", 0)
    e("s_branch L_job_done")
    g.role = "C"
    g.lab("L_not_a")
    e(f"s_cmp_eq_u32 s{S_ROLE}, 2")
    e("s_cbranch_scc0 L_job_done")
    g.role = "B"
    e(f"s_lshl_b32 s72, s{S_T1}, 2\ns_add_u32 s72, s72, s{S_WA}\ns_lshl_b32 s72, s72, 17")
    e(f"s_lshl_b32 s73, s{S_T2}, 8\ns_add_u32 s72, s72, s73")
    e(f"s_add_u32 s{sW}, s20, s72\ns_addc_u32 s{sW+1}, s21, 0\ns_sub_u32 s{sW+2}, {3584*2048}, s72")
    for i in range(16):
        e(f"s_mov_b32 s{S_TMP}, {(16*(i>>2)+(i&3))*2048}")
        g.vissue(f"buffer_load_dwordx4 {ar(JT+4*i)}, v{V_W2K}, {srd(sW)}, s{S_TMP} offen {WF}", f"jt{i}")
    e(f"s_mov_b32 s{sB}, s18\ns_mov_b32 s{sB+1}, s19\ns_mov_b32 s{sB+2}, 7168\ns_mov_b32 s{sB+3}, 0x00020000")
    e(f"s_lshl_b32 s{S_TMP}, s{S_T1}, 9")
    B1 = LP
    g.vissue(f"buffer_load_dwordx2 {vr(B1,2)}, v{V_L8}, {srd(sB)}, s{S_TMP} offen", "b1")
    global_poll(0, 112, V_TA)
    HB = V_WIN
    e(f"s_mul_i32 s72, s{S_WA}, {2*3584*4}")
    e(f"s_lshl_b32 s73, s{S_T1}, 10")
    e(f"s_add_u32 s72, s72, s73")
    for bb in range(2):
        for kq in range(4):
            e(f"s_add_u32 s{S_TMP}, s72, {HP + (kq*8+bb)*3584*4}")
            g.vissue(f"buffer_load_dwordx4 {vr(HB+(bb*4+kq)*4)}, v{V_L16}, {srd(sWS)}, s{S_TMP} offen sc1", f"hp{bb*4+kq}")
    T = LE
    e(f"v_lshlrev_b32 v{T}, 16, v{B1}")
    e(f"v_and_b32 v{T+1}, s{S_HIM}, v{B1}")
    e(f"v_lshlrev_b32 v{T+2}, 16, v{B1+1}")
    e(f"v_and_b32 v{T+3}, s{S_HIM}, v{B1+1}")
    e(f"s_lshl_b32 s72, s{S_WA}, 13")
    e(f"s_add_u32 s72, s72, {AT2}")
    e(f"v_add_u32 v{V_TD}, s72, v{V_L16}")
    e(f"v_mov_b32 v{V_TA}, 0x3d372713")
    g.vwait("hp7")
    for bb in range(2):
        hb = HB + bb * 16
        for j in range(4):
            x = T + 4 + 4 * bb + j
            t = T + 12 + j
            e(f"v_add_f32 v{x}, v{hb+j}, v{hb+4+j}")
            e(f"v_add_f32 v{x}, v{x}, v{hb+8+j}")
            e(f"v_add_f32 v{x}, v{x}, v{hb+12+j}")
            g.bf16r(x, x)
            e(f"v_add_f32 v{x}, v{x}, v{T+j}")
            g.bf16r(x, x)
            e(f"v_mul_f32 v{t}, v{x}, v{x}")
            e(f"v_mul_f32 v{t}, v{t}, v{x}")
            e(f"v_fma_f32 v{t}, v{t}, v{V_TA}, v{x}")
            e(f"v_mul_f32 v{t}, 0xc0135761, v{t}")
            e(f"v_exp_f32 v{t}, v{t}")
            g.nop(1)
            e(f"v_add_f32 v{t}, 1.0, v{t}")
            e(f"v_rcp_f32 v{t}, v{t}")
            g.nop(1)
            e(f"v_mul_f32 v{x}, v{x}, v{t}")
            e(f"v_cvt_pk_bf16_f32 v{x}, v{x}, v{x}")
        e(f"ds_write_b128 v{V_TD}, {vr(T+4+4*bb)} offset:{bb*4096}")
    e(f"s_lshl_b32 s73, s{S_WA}, 8")
    e(f"s_add_u32 s72, s73, {AT2}")
    e(f"v_add_u32 v{V_TE}, s72, v{V_JOB}")
    g.aux_sync()
    tile_mfma(V_TE, 4, JT, "jt", D)
    job_store_signal("B", 4)
    g.role = "C"
    g.lab("L_job_done")
    ts(2)
    wo_srd()
    for i in range(32):
        wo_issue(i)
    global_poll(4, 112, V_TA)
    e(f"s_lshl_b32 s72, s{S_B}, 12")
    for ks in range(14):
        e(f"s_add_u32 s{S_TMP}, s72, {MP + ks*8*4096}")
        g.vissue(f"buffer_load_dwordx4 {vr(V_WIN+4*ks)}, v{V_TA16}, {srd(sWS)}, s{S_TMP} offen sc1", f"mp{ks}")
    e(f"v_lshrrev_b32 v{V_TD}, 1, v{V_TA16}")
    e(f"s_lshl_b32 s73, s{S_B}, 11")
    XR, B2R = LP, LP + 2
    g.vissue(f"buffer_load_dwordx2 {vr(XR,2)}, v{V_TD}, {srd(sX)}, s73 offen", "xf")
    e(f"s_mov_b32 s{sB}, s22\ns_mov_b32 s{sB+1}, s23\ns_mov_b32 s{sB+2}, 2048\ns_mov_b32 s{sB+3}, 0x00020000")
    g.vissue(f"buffer_load_dwordx2 {vr(B2R,2)}, v{V_TD}, {srd(sB)}, 0 offen", "b2")
    g.vwait("b2")
    M = V_WIN
    for ks in range(1, 14):
        for j in range(4):
            e(f"v_add_f32 v{M+j}, v{M+j}, v{M+4*ks+j}")
    e(f"v_lshlrev_b32 v{T}, 16, v{B2R}")
    e(f"v_and_b32 v{T+1}, s{S_HIM}, v{B2R}")
    e(f"v_lshlrev_b32 v{T+2}, 16, v{B2R+1}")
    e(f"v_and_b32 v{T+3}, s{S_HIM}, v{B2R+1}")
    e(f"v_lshlrev_b32 v{T+4}, 16, v{XR}")
    e(f"v_and_b32 v{T+5}, s{S_HIM}, v{XR}")
    e(f"v_lshlrev_b32 v{T+6}, 16, v{XR+1}")
    e(f"v_and_b32 v{T+7}, s{S_HIM}, v{XR+1}")
    for j in range(4):
        g.bf16r(M + j, M + j)
        e(f"v_add_f32 v{M+j}, v{M+j}, v{T+j}")
        g.bf16r(M + j, M + j)
    e(f"ds_write_b128 v{V_TA16}, {vr(M)} offset:{FB}")
    e(f"ds_write_b128 v{V_TA16}, {vr(T+4)} offset:{FX}")
    ts(3)
    e("s_branch L_tail")
    return g


HEADER = open("cdna_kernels/" + NAME + ".s.ref").read().split("; Override launch geometry")[0]
BLOCK = 512


def full_asm(opt=None):
    g = build(opt)
    s = HEADER
    s += "; generated by gen/gen2.py\n"
    s += f"; @launch grid=(256,1,1) block=({BLOCK},1,1) lds={LDS_BYTES}\n"
    s += '.amdgcn_target "amdgcn-amd-amdhsa--gfx950"\n.text\n'
    s += f".globl {KNAME}\n.p2align 8\n.type {KNAME},@function\n{KNAME}:\n"
    s += "\n".join(g.L) + "\n"
    s += f""".section .rodata,"a"
.p2align 6
.amdhsa_kernel {KNAME}
  .amdhsa_next_free_vgpr 256
  .amdhsa_next_free_sgpr 102
  .amdhsa_accum_offset 128
  .amdhsa_group_segment_fixed_size 0
  .amdhsa_kernarg_size 104
  .amdhsa_user_sgpr_count 2
  .amdhsa_user_sgpr_kernarg_segment_ptr 1
  .amdhsa_system_sgpr_workgroup_id_x 1
.end_amdhsa_kernel
"""
    return s


if __name__ == "__main__":
    out = "cdna_kernels/" + NAME + ".s"
    open(out, "w").write(full_asm())
    print("wrote", out, os.path.getsize(out))
```

```python
import sys, json
sys.path.insert(0,'gen')
import gen2 as gen
from common import *
def mk(name, opt):
    s = gen.full_asm(opt)
    s += meta([(gen.KNAME, 102, 256, gen.BLOCK)])
    build(s, name)
    return f"{name},{gen.KNAME},256,{gen.BLOCK},{gen.LDS_BYTES}"
if __name__=='__main__':
    variants = json.loads(sys.argv[1])
    specs=[mk(n+'.co', o) for n,o in variants.items()]
    open('specs.txt','w').write(' '.join(specs))
    print(json.dumps(["bench/bench","bench/specs.txt"]+["bench/"+s.split(',')[0] for s in specs]))
    print(json.dumps(["bench/"+s.split(',')[0]+".ts" for s in specs]))
```

```python
import sys, os

NAME = "parallel_sum__mha_block_cached__mixer_channel_mlp__decode"
KNAME = NAME + "_kernel"

OPT = dict(
    stream_flag="nt",
    w_flag="nt",
    ws_flag="nt",
    ts=False,
    apf=32,
    din=8,
)

PD = 0
OP = 16384
OD = 18432
FB = 22528
FX = 26624
QB = 30720
SM = 30976
CNT = 31040
RED = 32768
AT = 49152
AT2 = 81920
LDS_BYTES = 114688

HP = 0
MP = 0x80000
AP = 0x100000
QPW = 0x200000
QFL = 0x300000
HFL = QFL + 0x2000
MFL = QFL + 0x3000
BFL = QFL + 0x4000
BFIN = QFL + 0x8000
WS_BYTES = 0x380000
TS_OFF = 0x380000

sK, sV, sW, sX, sWS, sDBG, sB, sO = 32, 36, 40, 44, 48, 52, 56, 60
S_W, S_B, S_H, S_ROLE, S_T1, S_T2, S_OFF, S_TMP = 64, 65, 66, 67, 68, 69, 70, 71
S_NON = 76
S_WA = 78
S_XT = 79
S_ODD, S_TWO = 80, 82
S_RL = 86
S_SELLO, S_SELHI, S_HIM = 90, 91, 92
S_TS = 94


def srd(n):
    return f"s[{n}:{n+3}]"


def vr(a, n=4):
    return f"v[{a}:{a+n-1}]"


def ar(a, n=4):
    return f"a[{a}:{a+n-1}]"


V_LANE, V_G, V_C, V_L16, V_L32, V_L8, V_ZERO = 1, 2, 3, 4, 5, 6, 7
V_MASK = 8
V_DW, V_W2K = 12, 13
V_TA, V_TB, V_TC, V_TD, V_TE, V_TF = 14, 15, 16, 17, 18, 19
V_DUPO = 20
V_X1, V_X2, V_X3 = 21, 22, 23
LP, LE, LT = 24, 32, 48
V_ACC = 28
V_Q = 24
V_DUP = 32
V_FRAG = 40
V_A = 32
V_D = 48
V_WIN = 64
DEPTH = 16
V_KV, V_DUPP, V_PDW = V_X1, V_X2, V_X3
V_M = 63
V_JOB, V_REDW, V_TA16 = V_X1, V_X2, V_X3
V_NON, V_FLG = 120, 122


class G:
    def __init__(self):
        self.L = []
        self.vm = {"C": [], "A": [], "B": []}
        self.role = "C"
        self.nlab = 0

    def e(self, s):
        for ln in s.split("\n"):
            self.L.append("  " + ln.strip())

    def lab(self, l):
        self.L.append(l + ":")

    def newlab(self, p="L"):
        self.nlab += 1
        return f"{p}_{self.nlab}"

    def nop(self, n):
        while n > 0:
            k = min(n, 16)
            self.e(f"s_nop {k-1}")
            n -= k

    def _roles(self):
        return list(self.vm.keys()) if self.role == "C" else [self.role]

    def vissue(self, instr, tag):
        worst = max(len(self.vm[r]) for r in self._roles())
        if worst >= 63:
            self._wait_n(61)
        self.e(instr)
        for r in self._roles():
            self.vm[r].append(tag)

    def _wait_n(self, n):
        self.e(f"s_waitcnt vmcnt({n})")
        for r in self._roles():
            f = self.vm[r]
            self.vm[r] = [] if n == 0 else f[-n:]

    def vwait(self, tag):
        f = self.vm[self.role]
        if tag not in f:
            return
        self._wait_n(len(f) - 1 - f.index(tag))

    def vwait_all(self):
        self._wait_n(0)

    def vm_save(self):
        return {k: list(v) for k, v in self.vm.items()}

    def vm_restore(self, s):
        self.vm = {k: list(v) for k, v in s.items()}

    def wave_reduce(self, T, op):
        for r in (8, 4, 2, 1):
            self.nop(2)
            self.e(f"v_{op}_f32_dpp v{T}, v{T}, v{T} row_ror:{r} row_mask:0xf bank_mask:0xf")
        self.nop(1)
        for i in range(4):
            self.e(f"v_readlane_b32 s{S_RL+i}, v{T}, {16*i}")
        self.nop(2)
        self.e(f"v_mov_b32 v{T}, s{S_RL}")
        for i in range(1, 4):
            self.e(f"v_{op}_f32 v{T}, s{S_RL+i}, v{T}")

    def bf16r(self, dst, src):
        self.e(f"v_cvt_pk_bf16_f32 v{dst}, v{src}, v{src}")
        self.e(f"v_lshlrev_b32 v{dst}, 16, v{dst}")

    def ln_unpack(self, P, E):
        for j in range(8):
            self.e(f"v_lshlrev_b32 v{E+2*j}, 16, v{P+j}")
            self.e(f"v_and_b32 v{E+2*j+1}, s{S_HIM}, v{P+j}")

    def ln_core(self, DST, E, T):
        e = self.e
        e(f"v_add_f32 v{T}, v{E}, v{E+1}")
        e(f"v_add_f32 v{T+1}, v{E+2}, v{E+3}")
        e(f"v_add_f32 v{T+2}, v{E+4}, v{E+5}")
        e(f"v_add_f32 v{T+3}, v{E+6}, v{E+7}")
        for j in range(4):
            e(f"v_add_f32 v{T+j}, v{T+j}, v{E+8+2*j}")
            e(f"v_add_f32 v{T+j}, v{T+j}, v{E+9+2*j}")
        e(f"v_add_f32 v{T}, v{T}, v{T+1}")
        e(f"v_add_f32 v{T+2}, v{T+2}, v{T+3}")
        e(f"v_add_f32 v{T}, v{T}, v{T+2}")
        self.wave_reduce(T, "add")
        e(f"v_mul_f32 v{T}, 0x3a800000, v{T}")
        self.bf16r(T + 1, T)
        e(f"v_mov_b32 v{T+2}, 0")
        e(f"v_mov_b32 v{T+3}, 0")
        for j in range(16):
            e(f"v_sub_f32 v{T+4+(j&1)}, v{E+j}, v{T}")
            e(f"v_fmac_f32 v{T+2+(j&1)}, v{T+4+(j&1)}, v{T+4+(j&1)}")
        e(f"v_add_f32 v{T+2}, v{T+2}, v{T+3}")
        self.wave_reduce(T + 2, "add")
        e(f"v_mul_f32 v{T+2}, 0x3a800000, v{T+2}")
        self.bf16r(T + 2, T + 2)
        e(f"v_add_f32 v{T+2}, 0x3727c5ac, v{T+2}")
        self.bf16r(T + 2, T + 2)
        e(f"v_sqrt_f32 v{T+2}, v{T+2}")
        self.nop(1)
        self.bf16r(T + 2, T + 2)
        e(f"v_rcp_f32 v{T+3}, v{T+2}")
        self.nop(1)
        for j in range(8):
            a, b = E + 2 * j, E + 2 * j + 1
            e(f"v_sub_f32 v{a}, v{a}, v{T+1}")
            e(f"v_sub_f32 v{b}, v{b}, v{T+1}")
            e(f"v_cvt_pk_bf16_f32 v{T+4}, v{a}, v{b}")
            e(f"v_lshlrev_b32 v{a}, 16, v{T+4}")
            e(f"v_and_b32 v{b}, s{S_HIM}, v{T+4}")
            e(f"v_mul_f32 v{T+4}, v{a}, v{T+3}")
            e(f"v_mul_f32 v{T+5}, v{b}, v{T+3}")
            e(f"v_fma_f32 v{T+6}, -v{T+4}, v{T+2}, v{a}")
            e(f"v_fma_f32 v{T+7}, -v{T+5}, v{T+2}, v{b}")
            e(f"v_fmac_f32 v{T+4}, v{T+6}, v{T+3}")
            e(f"v_fmac_f32 v{T+5}, v{T+7}, v{T+3}")
            e(f"v_cvt_pk_bf16_f32 v{DST+j}, v{T+4}, v{T+5}")

    def write_dup_row(self, P, E, vaddr, base):
        for j in range(8):
            self.e(f"v_perm_b32 v{E+2*j}, v{P+j}, v{P+j}, s{S_SELLO}")
            self.e(f"v_perm_b32 v{E+2*j+1}, v{P+j}, v{P+j}, s{S_SELHI}")
        for k in range(4):
            off = base + (k >> 1) * 2048 + (k & 1) * 16
            self.e(f"ds_write_b128 v{vaddr}, {vr(E+4*k)} offset:{off}")

    def frag(self, fr, dup):
        for j in range(4):
            self.e(f"v_and_b32 v{fr+j}, v{dup}, v{V_MASK+j}")

    def mfma(self, D, fr, B):
        self.e(f"v_mfma_f32_16x16x32_bf16 {vr(D)}, {vr(fr)}, {B}, {vr(D)}")

    def lds_wait_ge(self, off, target, sleep=1):
        sp = self.newlab("L_lspin")
        self.lab(sp)
        self.e(f"ds_read_b32 v{V_TF}, v{V_ZERO} offset:{off}")
        self.e("s_waitcnt lgkmcnt(0)")
        self.e(f"v_readfirstlane_b32 s72, v{V_TF}")
        self.nop(1)
        self.e(f"s_cmp_ge_u32 s72, {target}")
        self.e(f"s_cbranch_scc1 {sp}_ok")
        if sleep:
            self.e(f"s_sleep {sleep}")
        self.e(f"s_branch {sp}")
        self.lab(sp + "_ok")

    def lds_arrive(self, off):
        self.e("s_waitcnt lgkmcnt(0)")
        self.e("s_mov_b64 exec, 1")
        self.e(f"v_mov_b32 v{V_TF}, 1")
        self.e(f"ds_add_u32 v{V_ZERO}, v{V_TF} offset:{off}")
        self.e("s_mov_b64 exec, -1")

    def aux_sync(self):
        self.lds_arrive(CNT)
        self.e(f"s_add_u32 s{S_XT}, s{S_XT}, 4")
        self.lds_wait_ge(CNT, f"s{S_XT}", sleep=0)


def build(opt=None):
    o = dict(OPT)
    if opt:
        o.update(opt)
    SF, WF, WSF = o["stream_flag"], o["w_flag"], o["ws_flag"]
    APF = o["apf"]
    g = G()
    e = g.e

    def ts(i):
        if o["ts"]:
            e(f"s_memrealtime s[{S_TS+2*i}:{S_TS+2*i+1}]")

    def flag_poll(vaddr, soff, sleep):
        ok = g.newlab("L_ok")
        sp = g.newlab("L_spin")
        e("s_mov_b32 s75, 0")
        g.lab(sp)
        e(f"buffer_load_dwordx2 {vr(V_FLG,2)}, v{vaddr}, {srd(sWS)}, {soff} offen sc1")
        e("s_waitcnt vmcnt(0)")
        e(f"v_cmp_ne_u64 vcc, {vr(V_FLG,2)}, {vr(V_NON,2)}")
        e("s_add_u32 s75, s75, 1")
        e("s_cmp_ge_u32 s75, 0x40000")
        e(f"s_cbranch_scc1 {ok}")
        g.nop(2)
        e(f"s_cbranch_vccz {ok}")
        if sleep:
            e(f"s_sleep {sleep}")
        e(f"s_branch {sp}")
        g.lab(ok)

    def flag_set(soff):
        e("s_mov_b64 exec, 1")
        e(f"buffer_store_dwordx2 {vr(V_NON,2)}, v{V_ZERO}, {srd(sWS)}, {soff} offen sc1")
        e("s_mov_b64 exec, -1")

    e("s_cmp_ge_u32 s2, 256")
    e("s_cbranch_scc1 L_done")
    e("s_load_dwordx16 s[4:19], s[0:1], 0")
    e("s_load_dwordx8 s[20:27], s[0:1], 64")
    e("s_load_dwordx2 s[28:29], s[0:1], 96")
    ts(0)
    e(f"v_and_b32 v{V_LANE}, 63, v0")
    e(f"v_lshrrev_b32 v{V_TC}, 6, v0")
    e(f"v_lshrrev_b32 v{V_G}, 4, v{V_LANE}")
    e(f"v_readfirstlane_b32 s{S_W}, v{V_TC}")
    e(f"v_and_b32 v{V_C}, 15, v{V_LANE}")
    e(f"v_lshlrev_b32 v{V_L16}, 4, v{V_LANE}")
    e(f"v_lshlrev_b32 v{V_L32}, 5, v{V_LANE}")
    e(f"v_lshlrev_b32 v{V_L8}, 3, v{V_LANE}")
    e(f"v_mov_b32 v{V_ZERO}, 0")
    e(f"v_lshlrev_b32 v{V_TB}, 4, v{V_C}")
    e(f"v_lshl_add_u32 v{V_W2K}, v{V_G}, 13, v{V_TB}")
    e(f"s_and_b32 s{S_H}, s2, 31")
    e(f"s_lshr_b32 s{S_B}, s2, 5")
    e(f"s_and_b32 s{S_WA}, s{S_W}, 3")
    e(f"s_mov_b32 s{S_SELLO}, 0x01000100")
    e(f"s_mov_b32 s{S_SELHI}, 0x03020302")
    e(f"s_mov_b32 s{S_HIM}, 0xffff0000")
    e(f"s_mov_b32 s{S_ODD}, 0xaaaaaaaa")
    e(f"s_mov_b32 s{S_ODD+1}, 0xaaaaaaaa")
    e(f"s_mov_b32 s{S_TWO}, 0xcccccccc")
    e(f"s_mov_b32 s{S_TWO+1}, 0xcccccccc")
    e(f"s_mov_b32 s{S_XT}, 0")
    e("s_waitcnt lgkmcnt(0)")
    e(f"s_mov_b32 s{sX}, s4\ns_mov_b32 s{sX+1}, s5\ns_mov_b32 s{sX+2}, 16384\ns_mov_b32 s{sX+3}, 0x00020000")
    e(f"s_lshl_b32 s{S_TMP}, s{S_W}, 11")
    g.vissue(f"buffer_load_dwordx4 {vr(LP)}, v{V_L16}, {srd(sX)}, s{S_TMP} offen", "x0")
    g.vissue(f"buffer_load_dwordx4 {vr(LP+4)}, v{V_L16}, {srd(sX)}, s{S_TMP} offen offset:1024", "x1")
    e(f"s_mov_b32 s{sDBG}, s26\ns_mov_b32 s{sDBG+1}, s27\ns_mov_b32 s{sDBG+2}, 256\ns_mov_b32 s{sDBG+3}, 0x00020000")
    e(f"s_mov_b32 s{sWS}, s28\ns_mov_b32 s{sWS+1}, s29\ns_mov_b32 s{sWS+2}, {WS_BYTES}\ns_mov_b32 s{sWS+3}, 0x00020000")
    e(f"s_mov_b32 s{sW+3}, 0x00020000")
    e(f"s_cmp_ge_u32 s{S_W}, 4")
    e("s_cbranch_scc1 L_aux_pro")

    def common_consts():
        e(f"s_mov_b32 s{sO}, s24\ns_mov_b32 s{sO+1}, s25\ns_mov_b32 s{sO+2}, 16384\ns_mov_b32 s{sO+3}, 0x00020000")
        e(f"v_and_b32 v{V_TA}, 1, v{V_C}")
        e(f"v_lshlrev_b32 v{V_TA}, 4, v{V_TA}")
        e(f"v_mov_b32 v{V_TB}, 0xffff")
        e(f"v_lshlrev_b32 v{V_TB}, v{V_TA}, v{V_TB}")
        e(f"v_bfe_u32 v{V_TA}, v{V_C}, 1, 2")
        for j in range(4):
            e(f"v_cmp_eq_u32 vcc, {j}, v{V_TA}")
            g.nop(2)
            e(f"v_cndmask_b32 v{V_MASK+j}, 0, v{V_TB}, vcc")
        e(f"v_lshlrev_b32 v{V_TA}, 4, v{V_G}")
        e(f"v_lshl_add_u32 v{V_DUPO}, v{V_TC}, 9, v{V_TA}")
        e(f"v_and_b32 v{V_TB}, 1, v{V_G}")
        e(f"v_lshlrev_b32 v{V_TB}, 4, v{V_TB}")
        e(f"v_lshl_add_u32 v{V_DW}, v{V_C}, 5, v{V_TB}")

    def ln_own_row():
        e(f"s_lshl_b32 s72, s{S_W}, 12")
        e(f"s_add_u32 s72, s72, {AT}")
        e(f"v_add_u32 v{V_TD}, s72, v{V_L32}")
        g.vwait("x1")
        g.ln_unpack(LP, LE)
        g.ln_core(LP, LE, LT)
        g.write_dup_row(LP, LE, V_TD, 0)
        e("s_waitcnt lgkmcnt(0)")
        e("s_barrier")

    def wo_srd():
        e(f"s_lshl_b32 s72, s{S_H}, 18")
        e(f"s_lshl_b32 s73, s{S_W}, 8")
        e("s_add_u32 s72, s72, s73")
        e(f"s_add_u32 s{sW}, s12, s72\ns_addc_u32 s{sW+1}, s13, 0\ns_sub_u32 s{sW+2}, 0x800000, s72")

    def wo_issue(i):
        e(f"s_mov_b32 s{S_TMP}, {(16*(i>>2)+(i&3))*2048}")
        g.vissue(f"buffer_load_dwordx4 {ar(4*i)}, v{V_W2K}, {srd(sW)}, s{S_TMP} offen {WSF}", f"wo{i}")

    vm0 = g.vm_save()

    e("s_lshl_b32 s72, s2, 20")
    e(f"s_add_u32 s{sK}, s6, s72\ns_addc_u32 s{sK+1}, s7, 0\ns_mov_b32 s{sK+2}, 0x100000\ns_mov_b32 s{sK+3}, 0x00020000")
    e(f"s_add_u32 s{sV}, s8, s72\ns_addc_u32 s{sV+1}, s9, 0\ns_mov_b32 s{sV+2}, 0x100000\ns_mov_b32 s{sV+3}, 0x00020000")
    e(f"v_lshl_add_u32 v{V_KV}, v{V_TC}, 12, v{V_L16}")
    e(f"s_mov_b32 s{S_OFF}, 0")

    def dest(L):
        if L < APF:
            return ("a", 4 * L)
        return ("v", V_WIN + 4 * ((L - APF) % DEPTH))

    def stream_issue(L):
        if L >= 512:
            return
        if L == 256:
            e(f"s_mov_b32 s{S_OFF}, 0")
        sd = sK if L < 256 else sV
        k, r = dest(L)
        d = ar(r) if k == "a" else vr(r)
        g.vissue(f"buffer_load_dwordx4 {d}, v{V_KV}, {srd(sd)}, s{S_OFF} offen offset:{(L&3)*1024} {SF}", f"S{L}")
        if L & 3 == 3:
            e(f"s_add_u32 s{S_OFF}, s{S_OFF}, 16384")

    DIN = o["din"]
    for L in range(DIN):
        stream_issue(L)
    common_consts()
    lb = g.newlab("L_ci")
    e(f"s_cmp_eq_u32 s{S_W}, 0")
    e(f"s_cbranch_scc0 {lb}")
    for j in range(4):
        e(f"v_mov_b32 v{V_TA+j}, 0")
    e(f"ds_write_b128 v{V_ZERO}, {vr(V_TA)} offset:{CNT}")
    g.lab(lb)
    e(f"v_lshrrev_b32 v{V_TC}, 6, v0")
    e(f"v_lshlrev_b32 v{V_TA}, 4, v{V_G}")
    e(f"v_lshl_add_u32 v{V_DUPP}, v{V_TC}, 12, v{V_TA}")
    e(f"v_bfe_u32 v{V_TB}, v{V_C}, 1, 1")
    e(f"v_lshl_add_u32 v{V_PDW}, v{V_TB}, 7, v{V_DUPP}")
    e(f"v_and_b32 v{V_TB}, 1, v{V_C}")
    e(f"v_lshl_add_u32 v{V_PDW}, v{V_TB}, 6, v{V_PDW}")
    e(f"v_bfe_u32 v{V_TB}, v{V_C}, 2, 1")
    e(f"v_lshl_add_u32 v{V_PDW}, v{V_TB}, 3, v{V_PDW}")
    e(f"v_lshrrev_b32 v{V_TB}, 3, v{V_C}")
    e(f"v_lshl_add_u32 v{V_PDW}, v{V_TB}, 2, v{V_PDW}")
    ln_own_row()
    for L in range(DIN, APF + DEPTH):
        g.vwait(f"S{L-DIN}")
        stream_issue(L)
    g.lds_wait_ge(CNT + 8, 1, sleep=2)
    e(f"v_lshlrev_b32 v{V_TA}, 4, v{V_C}")
    e(f"ds_read_b128 {vr(V_Q)}, v{V_TA} offset:{QB}")
    e(f"v_mov_b32 v{V_M}, 0xff800000")
    e("s_waitcnt lgkmcnt(0)")
    ts(1)
    nxt_issue = APF + DEPTH
    for beta in range(16):
        for t in range(16):
            L = 16 * beta + t
            k, r = dest(L)
            g.vwait(f"S{L}")
            if k == "a":
                for j in range(4):
                    e(f"v_accvgpr_read_b32 v{V_D+j + 4*(t&1)}, a{r+j}")
                r = V_D + 4 * (t & 1)
            e(f"v_dot2_f32_bf16 v{V_A+t}, v{r}, v{V_Q}, 0")
            for j in range(1, 4):
                e(f"v_dot2_f32_bf16 v{V_A+t}, v{r+j}, v{V_Q+j}, v{V_A+t}")
            if k == "v":
                stream_issue(nxt_issue)
                nxt_issue += 1
        g.nop(3)
        A = V_A
        for p in range(8):
            e(f"v_add_f32_dpp v{A+2*p}, v{A+2*p}, v{A+2*p} row_ror:8 row_mask:0xf bank_mask:0x3")
            e(f"v_add_f32_dpp v{A+2*p}, v{A+2*p+1}, v{A+2*p+1} row_ror:8 row_mask:0xf bank_mask:0xc")
        for p in range(4):
            e(f"v_add_f32_dpp v{A+4*p}, v{A+4*p}, v{A+4*p} row_shl:4 row_mask:0xf bank_mask:0x5")
            e(f"v_add_f32_dpp v{A+4*p}, v{A+4*p+2}, v{A+4*p+2} row_shr:4 row_mask:0xf bank_mask:0xa")
        g.nop(1)
        for p in range(4):
            e(f"v_add_f32_dpp v{A+4*p}, v{A+4*p}, v{A+4*p} quad_perm:[1,0,3,2] row_mask:0xf bank_mask:0xf")
        for p in range(2):
            e(f"v_cndmask_b32 v{A+8*p}, v{A+8*p}, v{A+8*p+4}, s[{S_ODD}:{S_ODD+1}]")
        g.nop(1)
        for p in range(2):
            e(f"v_add_f32_dpp v{A+8*p}, v{A+8*p}, v{A+8*p} quad_perm:[2,3,0,1] row_mask:0xf bank_mask:0xf")
        e(f"v_cndmask_b32 v{V_TA}, v{A}, v{A+8}, s[{S_TWO}:{S_TWO+1}]")
        g.bf16r(V_TA, V_TA)
        e(f"v_mul_f32 v{V_TA}, 0x3db504f3, v{V_TA}")
        g.bf16r(V_TA, V_TA)
        e(f"v_max_f32 v{V_M}, v{V_M}, v{V_TA}")
        e(f"ds_write_b32 v{V_PDW}, v{V_TA} offset:{PD + beta*256}")
    ts(2)
    LOG2E = "0x3fb8aa3b"
    S = V_A
    for k in range(16):
        e(f"ds_read_b32 v{S+k}, v{V_PDW} offset:{PD + k*256}")
    g.wave_reduce(V_M, "max")
    e(f"v_mov_b32 v{V_TE}, 0")
    e("s_waitcnt lgkmcnt(0)")
    for k in range(16):
        t = V_TA + (k & 1)
        e(f"v_sub_f32 v{t}, v{S+k}, v{V_M}")
        e(f"v_mul_f32 v{t}, {LOG2E}, v{t}")
        e(f"v_exp_f32 v{t}, v{t}")
        g.nop(1)
        e(f"v_add_f32 v{V_TE}, v{V_TE}, v{t}")
    g.wave_reduce(V_TE, "add")
    e(f"v_mov_b32 v{V_TA}, v{V_M}")
    e(f"v_mov_b32 v{V_TB}, v{V_TE}")
    e(f"s_lshl_b32 s72, s{S_W}, 3")
    e(f"v_mov_b32 v{V_TC}, s72")
    e(f"ds_write_b64 v{V_TC}, v[{V_TA}:{V_TB}] offset:{SM}")
    g.lds_arrive(CNT + 4)
    g.lds_wait_ge(CNT + 4, 4, sleep=0)
    X = V_D
    e(f"ds_read_b128 {vr(X)}, v{V_ZERO} offset:{SM}")
    e(f"ds_read_b128 {vr(X+4)}, v{V_ZERO} offset:{SM+16}")
    e("s_waitcnt lgkmcnt(0)")
    e(f"v_max3_f32 v{V_TC}, v{X}, v{X+2}, v{X+4}")
    e(f"v_max_f32 v{V_TC}, v{V_TC}, v{X+6}")
    e(f"v_mov_b32 v{V_TE}, 0")
    for w in range(4):
        e(f"v_sub_f32 v{V_TA}, v{X+2*w}, v{V_TC}")
        e(f"v_mul_f32 v{V_TA}, {LOG2E}, v{V_TA}")
        e(f"v_exp_f32 v{V_TA}, v{V_TA}")
        g.nop(1)
        e(f"v_fmac_f32 v{V_TE}, v{V_TA}, v{X+2*w+1}")
    e(f"v_rcp_f32 v{V_TD}, v{V_TE}")
    g.nop(1)
    e(f"v_fma_f32 v{V_TA}, -v{V_TE}, v{V_TD}, 1.0")
    e(f"v_fmac_f32 v{V_TD}, v{V_TA}, v{V_TD}")
    for k in range(16):
        t = S + k
        e(f"v_sub_f32 v{t}, v{t}, v{V_TC}")
        e(f"v_mul_f32 v{t}, {LOG2E}, v{t}")
        e(f"v_exp_f32 v{t}, v{t}")
        g.nop(1)
        e(f"v_mul_f32 v{t}, v{t}, v{V_TD}")
        e(f"v_cvt_pk_bf16_f32 v{t}, v{t}, v{t}")
        e(f"ds_write_b32 v{V_PDW}, v{t} offset:{PD + k*256}")
    for j in range(4):
        e(f"v_mov_b32 v{V_ACC+j}, 0")
    wo_srd()
    e("s_waitcnt lgkmcnt(0)")
    e(f"ds_read_b128 {vr(V_DUP)}, v{V_DUPP} offset:{PD}")
    for n in range(64):
        cur = V_DUP + 4 * (n & 1)
        nxt = V_DUP + 4 * ((n + 1) & 1)
        e("s_waitcnt lgkmcnt(0)")
        if n < 63:
            e(f"ds_read_b128 {vr(nxt)}, v{V_DUPP} offset:{PD + (n+1)*64}")
        for d in range(4):
            L = 256 + 4 * n + d
            k, r = dest(L)
            fr = V_FRAG + 4 * (d & 1)
            g.frag(fr, cur + d)
            g.vwait(f"S{L}")
            g.nop(2)
            g.mfma(V_ACC, fr, vr(r))
            stream_issue(nxt_issue)
            nxt_issue += 1
        if 4 <= n < 36:
            wo_issue(n - 4)
    ts(3)
    g.nop(10)
    e(f"s_lshl_b32 s72, s{S_W}, 9")
    e(f"v_add_u32 v{V_TA}, s72, v{V_DW}")
    e(f"ds_write_b128 v{V_TA}, {vr(V_ACC)} offset:{OP}")

    g.lab("L_tail")
    e("s_waitcnt vmcnt(0) lgkmcnt(0)")
    g.vm = {"C": [], "A": [], "B": []}
    e("s_barrier")
    R = V_D
    for w in range(4):
        e(f"ds_read_b64 {vr(R+2*w,2)}, v{V_L8} offset:{OP + w*512}")
    e(f"s_lshl_b32 s72, s{S_W}, 9")
    e(f"v_add_u32 v{V_TD}, s72, v{V_L8}")
    e(f"v_add_u32 v{V_TE}, s72, v{V_DW}")
    e("s_waitcnt lgkmcnt(0)")
    for j in range(2):
        e(f"v_add_f32 v{R+j}, v{R+j}, v{R+2+j}")
        e(f"v_add_f32 v{R+4+j}, v{R+4+j}, v{R+6+j}")
        e(f"v_add_f32 v{R+j}, v{R+j}, v{R+4+j}")
        e(f"v_cvt_pk_bf16_f32 v{R+j}, v{R+j}, v{R+j}")
    e(f"ds_write_b64 v{V_TD}, {vr(R,2)} offset:{OD}")
    for j in range(4):
        e(f"v_mov_b32 v{V_ACC+j}, 0")
    e("s_waitcnt lgkmcnt(0)")
    e(f"ds_read_b128 {vr(V_DUP)}, v{V_DUPO} offset:{OD}")
    for i4 in range(8):
        cur = V_DUP + 4 * (i4 & 1)
        nxt = V_DUP + 4 * ((i4 + 1) & 1)
        e("s_waitcnt lgkmcnt(0)")
        if i4 < 7:
            e(f"ds_read_b128 {vr(nxt)}, v{V_DUPO} offset:{OD + (i4+1)*64}")
        for ii in range(4):
            i = 4 * i4 + ii
            fr = V_FRAG + 4 * (i & 1)
            g.frag(fr, cur + ii)
            g.nop(2)
            g.mfma(V_ACC, fr, ar(4 * i))
    e(f"s_lshl_b32 s{S_TMP}, s2, 12")
    e(f"s_add_u32 s{S_TMP}, s{S_TMP}, {AP}")
    e(f"v_lshlrev_b32 v{V_TD}, 3, v0")
    e(f"v_lshlrev_b32 v{V_TC}, 2, v0")
    g.nop(6)
    e("s_mov_b64 exec, 0xffffffff")
    e(f"buffer_store_dwordx4 {vr(V_ACC)}, v{V_TE}, {srd(sWS)}, s{S_TMP} offen sc1")
    e("s_mov_b64 exec, -1")
    e(f"ds_read_b64 {vr(R,2)}, v{V_TD} offset:{FB}")
    e(f"ds_read_b64 {vr(R+2,2)}, v{V_TD} offset:{FX}")
    e("s_waitcnt vmcnt(0)")
    e("s_barrier")
    lb = g.newlab("L_nat")
    e(f"s_cmp_eq_u32 s{S_W}, 0")
    e(f"s_cbranch_scc0 {lb}")
    e("s_mov_b64 exec, 1")
    e(f"v_mov_b32 v{V_TA}, 1")
    e(f"s_lshl_b32 s72, s{S_B}, 2")
    e(f"buffer_atomic_add v{V_TA}, v{V_ZERO}, {srd(sDBG)}, s72 offen offset:32 sc0")
    e("s_waitcnt vmcnt(0)")
    e(f"ds_write_b32 v{V_ZERO}, v{V_TA} offset:{CNT+12}")
    e("s_waitcnt lgkmcnt(0)")
    e("s_mov_b64 exec, -1")
    g.lab(lb)
    e("s_barrier")
    e(f"ds_read_b32 v{V_TA}, v{V_ZERO} offset:{CNT+12}")
    e("s_waitcnt lgkmcnt(0)")
    e(f"v_readfirstlane_b32 s72, v{V_TA}")
    g.nop(1)
    e("s_cmp_eq_u32 s72, 31")
    e("s_cbranch_scc0 L_fin")
    e(f"s_lshl_b32 s72, s{S_B}, 17")
    e(f"s_add_u32 s72, s72, {AP}")
    for hh in range(32):
        e(f"s_add_u32 s{S_TMP}, s72, {hh*4096}")
        g.vissue(f"buffer_load_dwordx2 {vr(V_WIN+2*hh,2)}, v{V_TD}, {srd(sWS)}, s{S_TMP} offen sc1", f"apl{hh}")
    e(f"s_lshl_b32 s73, s{S_B}, 11")
    for hh in range(1, 32):
        g.vwait(f"apl{hh}")
        for j in range(2):
            e(f"v_add_f32 v{V_WIN+j}, v{V_WIN+j}, v{V_WIN+2*hh+j}")
    for j in range(2):
        g.bf16r(V_WIN + j, V_WIN + j)
        e(f"v_add_f32 v{V_WIN+j}, v{V_WIN+j}, v{R+2+j}")
        g.bf16r(V_WIN + j, V_WIN + j)
        e(f"v_add_f32 v{V_WIN+j}, v{V_WIN+j}, v{R+j}")
    e(f"v_cvt_pk_bf16_f32 v{V_TA}, v{V_WIN}, v{V_WIN+1}")
    e(f"buffer_store_dword v{V_TA}, v{V_TC}, {srd(sO)}, s73 offen")
    g.lab("L_fin")
    if o["ts"]:
        e(f"s_memrealtime s[72:73]")
        e("s_waitcnt vmcnt(0) lgkmcnt(0)")
        for k in range(4):
            e(f"v_mov_b32 v{V_D+k}, s{S_TS+2*k}")
        e(f"v_mov_b32 v{V_D+4}, s72")
        e(f"s_mov_b32 s{sWS+2}, 0x400000")
        e(f"s_lshl_b32 s72, s2, 8\ns_lshl_b32 s73, s{S_W}, 5\ns_add_u32 s72, s72, s73\ns_add_u32 s72, s72, {TS_OFF}")
        e(f"buffer_store_dwordx4 {vr(V_D)}, v{V_ZERO}, {srd(sWS)}, s72 offen")
        e(f"buffer_store_dword v{V_D+4}, v{V_ZERO}, {srd(sWS)}, s72 offen offset:16")
    g.lab("L_done")
    e("s_endpgm")

    g.lab("L_aux_pro")
    g.vm_restore(vm0)
    e("s_setprio 2")
    e(f"v_lshl_add_u32 v{V_TE}, v{V_G}, 15, v{V_TB}")
    e(f"s_lshl_b32 s72, s{S_B}, 2")
    e(f"s_add_u32 s72, s72, s{S_WA}")
    e(f"s_lshl_b32 s72, s72, 18")
    e(f"s_lshl_b32 s73, s{S_H}, 8")
    e("s_add_u32 s72, s72, s73")
    e(f"s_add_u32 s{sW}, s10, s72\ns_addc_u32 s{sW+1}, s11, 0")
    e(f"s_sub_u32 s{sW+2}, 0x800000, s72")
    for i in range(8):
        e(f"s_mov_b32 s{S_TMP}, {(16*(i>>2)+(i&3))*8192}")
        g.vissue(f"buffer_load_dwordx4 {ar(4*i)}, v{V_TE}, {srd(sW)}, s{S_TMP} offen {WF}", f"wq{i}")
    e(f"s_or_b32 s72, s2, s{S_WA}")
    e("s_cmp_eq_u32 s72, 0")
    e("s_cbranch_scc0 L_no_nonce")
    e("s_memrealtime s[72:73]")
    e("s_waitcnt lgkmcnt(0)")
    e("s_or_b32 s72, s72, 1")
    e(f"v_mov_b32 v{V_NON}, s72")
    e(f"v_mov_b32 v{V_NON+1}, s73")
    e("s_mov_b64 exec, 1")
    e(f"buffer_store_dwordx2 {vr(V_NON,2)}, v{V_ZERO}, {srd(sDBG)}, 0 offen offset:8 sc1")
    e("s_mov_b64 exec, -1")
    g.nop(2)
    g.lab("L_no_nonce")
    g.vissue(f"buffer_load_dwordx2 {vr(V_NON,2)}, v{V_ZERO}, {srd(sDBG)}, 0 offen offset:8 sc1", "non")
    e("s_lshr_b32 s72, s2, 3")
    e("s_and_b32 s73, s2, 7")
    e("s_mul_i32 s73, s73, 14")
    e("s_add_u32 s74, s73, s72")
    e("s_sub_u32 s75, s74, 14")
    e(f"s_and_b32 s{S_T1}, s74, 3")
    e(f"s_lshr_b32 s{S_T2}, s74, 2")
    e("s_cmp_lt_u32 s72, 14")
    e(f"s_cselect_b32 s{S_ROLE}, 1, 0")
    e("s_cbranch_scc1 L_role_done")
    e("s_cmp_lt_u32 s72, 28")
    e(f"s_cselect_b32 s{S_ROLE}, 2, 0")
    e(f"s_lshr_b32 s{S_T1}, s75, 3")
    e(f"s_and_b32 s{S_T2}, s75, 7")
    g.lab("L_role_done")
    common_consts()
    e(f"v_and_b32 v{V_TC}, 3, v{V_TC}")
    e(f"v_lshlrev_b32 v{V_TA}, 4, v{V_G}")
    e(f"v_lshrrev_b32 v{V_TB}, 3, v{V_C}")
    e(f"v_lshl_add_u32 v{V_JOB}, v{V_TB}, 12, v{V_TA}")
    e(f"v_lshrrev_b32 v{V_TA}, 1, v{V_G}")
    e(f"v_lshl_add_u32 v{V_REDW}, v{V_TA}, 9, v{V_DW}")
    e(f"v_lshl_add_u32 v{V_REDW}, v{V_TC}, 12, v{V_REDW}")
    e(f"v_lshl_add_u32 v{V_TA16}, v{V_TC}, 10, v{V_L16}")
    ln_own_row()

    def tile_mfma(vaddr, nblk, abase, tagp, D):
        for j in range(16):
            e(f"v_mov_b32 v{D+j}, 0")
        seq = [(i4, pr) for i4 in range(nblk) for pr in range(4)]
        e(f"ds_read_b128 {vr(V_DUP)}, v{vaddr} offset:0")
        for n, (i4, pr) in enumerate(seq):
            cur = V_DUP + 4 * (n & 1)
            nxt = V_DUP + 4 * ((n + 1) & 1)
            e("s_waitcnt lgkmcnt(0)")
            if n + 1 < len(seq):
                i4n, prn = seq[n + 1]
                e(f"ds_read_b128 {vr(nxt)}, v{vaddr} offset:{prn*8192 + i4n*64}")
            for ii in range(4):
                i = 4 * i4 + ii
                fr = V_FRAG + 4 * (ii & 1)
                g.frag(fr, cur + ii)
                g.vwait(f"{tagp}{i}")
                g.nop(2)
                g.mfma(D + 4 * pr, fr, ar(abase + 4 * i))
        g.nop(10)
        for pr in range(4):
            e(f"ds_write_b128 v{V_REDW}, {vr(D+4*pr)} offset:{RED + pr*1024}")
        g.aux_sync()
        for w in range(4):
            e(f"ds_read_b128 {vr(D+4*w)}, v{V_TA16} offset:{RED + w*4096}")
        e("s_waitcnt lgkmcnt(0)")
        for j in range(4):
            e(f"v_add_f32 v{D+j}, v{D+j}, v{D+4+j}")
            e(f"v_add_f32 v{D+8+j}, v{D+8+j}, v{D+12+j}")
        for j in range(4):
            e(f"v_add_f32 v{D+j}, v{D+j}, v{D+8+j}")

    QD = V_WIN
    e(f"s_lshl_b32 s72, s{S_B}, 9")
    e(f"s_lshl_b32 s73, s{S_WA}, 7")
    e("s_add_u32 s72, s72, s73")
    e(f"s_add_u32 s72, s72, {AT}")
    e(f"v_add_u32 v{V_TE}, s72, v{V_JOB}")
    tile_mfma(V_TE, 2, 0, "wq", QD)
    e(f"s_lshl_b32 s72, s{S_H}, 3")
    e(f"s_add_u32 s72, s72, s{S_B}")
    e(f"s_lshl_b32 s{S_TMP}, s72, 12")
    e(f"s_add_u32 s{S_TMP}, s{S_TMP}, {QPW}")
    g.vissue(f"buffer_store_dwordx4 {vr(QD)}, v{V_TA16}, {srd(sWS)}, s{S_TMP} offen sc1", "qst")
    g.vwait("non")
    ok = g.newlab("L_ok")
    sp = g.newlab("L_spin")
    e("s_mov_b32 s73, 0")
    g.lab(sp)
    e(f"v_readfirstlane_b32 s{S_NON}, v{V_NON}")
    e(f"v_readfirstlane_b32 s{S_NON+1}, v{V_NON+1}")
    g.nop(1)
    e(f"s_cmp_lg_u32 s{S_NON}, 0")
    e(f"s_cbranch_scc1 {ok}")
    e("s_add_u32 s73, s73, 1")
    e("s_cmp_ge_u32 s73, 0x40000")
    e(f"s_cbranch_scc1 {ok}")
    e(f"buffer_load_dwordx2 {vr(V_NON,2)}, v{V_ZERO}, {srd(sDBG)}, 0 offen offset:8 sc1")
    e("s_waitcnt vmcnt(0)")
    e(f"s_branch {sp}")
    g.lab(ok)
    e(f"v_mov_b32 v{V_NON}, s{S_NON}")
    e(f"v_mov_b32 v{V_NON+1}, s{S_NON+1}")
    e(f"s_lshl_b32 s72, s{S_H}, 2")
    e(f"s_add_u32 s73, s72, s{S_WA}")
    e(f"s_lshl_b32 s73, s73, 3")
    e(f"s_add_u32 s73, s73, s{S_B}")
    e(f"s_lshl_b32 s73, s73, 3")
    e(f"s_add_u32 s73, s73, {QFL}")
    e(f"s_lshr_b32 s74, s{S_B}, 1")
    e("s_add_u32 s74, s74, s72")
    e("s_lshl_b32 s74, s74, 6")
    e(f"s_add_u32 s74, s74, {QFL}")
    e(f"v_and_b32 v{V_TA}, 7, v{V_LANE}")
    e(f"v_lshlrev_b32 v{V_TA}, 3, v{V_TA}")
    g.vwait("qst")
    flag_set("s73")
    e(f"s_cmp_eq_u32 s{S_WA}, 0")
    e("s_cbranch_scc0 L_no_gather")
    flag_poll(V_TA, "s74", 0)
    e(f"s_lshl_b32 s72, s{S_H}, 15")
    e(f"s_lshl_b32 s73, s{S_B}, 9")
    e("s_add_u32 s72, s72, s73")
    for k8 in range(8):
        e(f"s_add_u32 s{S_TMP}, s72, {QPW + k8*4096}")
        e(f"buffer_load_dwordx2 {vr(QD+2*k8,2)}, v{V_L8}, {srd(sWS)}, s{S_TMP} offen sc1")
    e(f"v_lshlrev_b32 v{V_TA}, 2, v{V_LANE}")
    e("s_waitcnt vmcnt(0)")
    for k8 in range(1, 8):
        for j in range(2):
            e(f"v_add_f32 v{QD+j}, v{QD+j}, v{QD+2*k8+j}")
    e(f"v_cvt_pk_bf16_f32 v{QD}, v{QD}, v{QD+1}")
    e(f"ds_write_b32 v{V_TA}, v{QD} offset:{QB}")
    g.lds_arrive(CNT + 8)
    g.lab("L_no_gather")
    e("s_setprio 0")
    ts(1)

    JT = 64
    D = V_D

    def job_store_signal(role, off):
        rowb = 3584 * 4 if role == "A" else 1024 * 4
        e(f"v_and_b32 v{V_TA}, 255, v0")
        e(f"v_lshrrev_b32 v{V_TA}, 5, v{V_TA}")
        e(f"v_mul_u32_u24 v{V_TA}, {rowb}, v{V_TA}")
        e(f"v_and_b32 v{V_TB}, 31, v0")
        e(f"v_lshl_add_u32 v{V_TA}, v{V_TB}, 4, v{V_TA}")
        e(f"s_mul_i32 s{S_TMP}, s{S_T1}, {8*rowb}")
        e(f"s_lshl_b32 s73, s{S_T2}, 9")
        e(f"s_add_u32 s{S_TMP}, s{S_TMP}, s73")
        e(f"s_add_u32 s{S_TMP}, s{S_TMP}, {HP if role == 'A' else MP}")
        g.vissue(f"buffer_store_dwordx4 {vr(D)}, v{V_TA}, {srd(sWS)}, s{S_TMP} offen sc1", "jst")
        g.vwait_all()
        g.aux_sync()
        lb = g.newlab("L_sig")
        e(f"s_cmp_eq_u32 s{S_WA}, 0")
        e(f"s_cbranch_scc0 {lb}")
        if role == "A":
            e(f"s_lshl_b32 s72, s{S_T2}, 5")
            e(f"s_lshl_b32 s73, s{S_T1}, 3")
            e("s_add_u32 s72, s72, s73")
            e(f"s_add_u32 s72, s72, {HFL}")
        else:
            e(f"s_lshr_b32 s72, s{S_T2}, 1")
            e("s_lshl_b32 s72, s72, 8")
            e(f"s_lshl_b32 s73, s{S_T1}, 4")
            e("s_add_u32 s72, s72, s73")
            e(f"s_and_b32 s73, s{S_T2}, 1")
            e("s_lshl_b32 s73, s73, 3")
            e("s_add_u32 s72, s72, s73")
            e(f"s_add_u32 s72, s72, {MFL}")
        flag_set("s72")
        g.lab(lb)

    e(f"s_cmp_eq_u32 s{S_ROLE}, 1")
    e("s_cbranch_scc0 L_not_a")
    g.role = "A"
    e(f"v_lshlrev_b32 v{V_TA}, 4, v{V_C}")
    e(f"v_mul_u32_u24 v{V_TE}, 28672, v{V_G}")
    e(f"v_add_u32 v{V_TE}, v{V_TE}, v{V_TA}")
    e(f"s_lshl_b32 s72, s{S_T1}, 2\ns_add_u32 s72, s72, s{S_WA}\ns_mul_i32 s72, s72, {64*7168}")
    e(f"s_lshl_b32 s73, s{S_T2}, 8\ns_add_u32 s72, s72, s73")
    e(f"s_add_u32 s{sW}, s16, s72\ns_addc_u32 s{sW+1}, s17, 0\ns_sub_u32 s{sW+2}, {1024*7168}, s72")
    for i in range(16):
        e(f"s_mov_b32 s{S_TMP}, {(16*(i>>2)+(i&3))*7168}")
        g.vissue(f"buffer_load_dwordx4 {ar(JT+4*i)}, v{V_TE}, {srd(sW)}, s{S_TMP} offen {WF}", f"jt{i}")
    e(f"s_lshl_b32 s72, s{S_WA}, 13")
    e(f"s_add_u32 s72, s72, {AT}")
    e(f"v_add_u32 v{V_TD}, s72, v{V_L32}")
    e(f"v_add_u32 v{V_TE}, {AT2-AT}, v{V_TD}")
    for rr in range(2):
        for k in range(4):
            e(f"ds_read_b128 {vr(LE+4*k)}, v{V_TD} offset:{rr*4096 + (k>>1)*2048 + (k&1)*16}")
        e("s_waitcnt lgkmcnt(0)")
        for j in range(16):
            e(f"v_and_b32 v{LE+j}, s{S_HIM}, v{LE+j}")
        g.ln_core(LP, LE, LT)
        g.write_dup_row(LP, LE, V_TE, rr * 4096)
    e(f"s_lshl_b32 s72, s{S_T1}, 10")
    e(f"s_lshl_b32 s73, s{S_WA}, 8")
    e("s_add_u32 s72, s72, s73")
    e(f"s_add_u32 s72, s72, {AT2}")
    e(f"v_add_u32 v{V_TE}, s72, v{V_JOB}")
    g.aux_sync()
    tile_mfma(V_TE, 4, JT, "jt", D)
    job_store_signal("A", 0)
    e("s_branch L_job_done")
    g.role = "C"
    g.lab("L_not_a")
    e(f"s_cmp_eq_u32 s{S_ROLE}, 2")
    e("s_cbranch_scc0 L_job_n")
    g.role = "B"
    e(f"s_lshl_b32 s72, s{S_T1}, 2\ns_add_u32 s72, s72, s{S_WA}\ns_lshl_b32 s72, s72, 17")
    e(f"s_lshl_b32 s73, s{S_T2}, 8\ns_add_u32 s72, s72, s73")
    e(f"s_add_u32 s{sW}, s20, s72\ns_addc_u32 s{sW+1}, s21, 0\ns_sub_u32 s{sW+2}, {3584*2048}, s72")
    for i in range(16):
        e(f"s_mov_b32 s{S_TMP}, {(16*(i>>2)+(i&3))*2048}")
        g.vissue(f"buffer_load_dwordx4 {ar(JT+4*i)}, v{V_W2K}, {srd(sW)}, s{S_TMP} offen {WF}", f"jt{i}")
    e(f"s_mov_b32 s{sB}, s18\ns_mov_b32 s{sB+1}, s19\ns_mov_b32 s{sB+2}, 7168\ns_mov_b32 s{sB+3}, 0x00020000")
    e(f"s_lshl_b32 s{S_TMP}, s{S_T1}, 9")
    B1 = LP
    g.vissue(f"buffer_load_dwordx2 {vr(B1,2)}, v{V_L8}, {srd(sB)}, s{S_TMP} offen", "b1")
    lb = g.newlab("L_bw")
    e(f"s_cmp_eq_u32 s{S_WA}, 0")
    e(f"s_cbranch_scc0 {lb}")
    e(f"v_and_b32 v{V_TA}, 7, v{V_LANE}")
    e(f"v_lshlrev_b32 v{V_TA}, 3, v{V_TA}")
    e(f"s_lshl_b32 s74, s{S_T1}, 6")
    e(f"s_add_u32 s74, s74, {HFL}")
    flag_poll(V_TA, "s74", 16)
    g.lab(lb)
    g.aux_sync()
    HB = V_WIN
    e(f"s_mul_i32 s72, s{S_WA}, {2*3584*4}")
    e(f"s_lshl_b32 s73, s{S_T1}, 10")
    e(f"s_add_u32 s72, s72, s73")
    for bb in range(2):
        for kq in range(4):
            e(f"s_add_u32 s{S_TMP}, s72, {HP + (kq*8+bb)*3584*4}")
            g.vissue(f"buffer_load_dwordx4 {vr(HB+(bb*4+kq)*4)}, v{V_L16}, {srd(sWS)}, s{S_TMP} offen sc1", f"hp{bb*4+kq}")
    T = LE
    g.vwait("b1")
    e(f"v_lshlrev_b32 v{T}, 16, v{B1}")
    e(f"v_and_b32 v{T+1}, s{S_HIM}, v{B1}")
    e(f"v_lshlrev_b32 v{T+2}, 16, v{B1+1}")
    e(f"v_and_b32 v{T+3}, s{S_HIM}, v{B1+1}")
    e(f"s_lshl_b32 s72, s{S_WA}, 13")
    e(f"s_add_u32 s72, s72, {AT2}")
    e(f"v_add_u32 v{V_TD}, s72, v{V_L16}")
    e(f"v_mov_b32 v{V_TA}, 0x3d372713")
    g.vwait("hp7")
    for bb in range(2):
        hb = HB + bb * 16
        for j in range(4):
            x = T + 4 + 4 * bb + j
            t = T + 12 + j
            e(f"v_add_f32 v{x}, v{hb+j}, v{hb+4+j}")
            e(f"v_add_f32 v{x}, v{x}, v{hb+8+j}")
            e(f"v_add_f32 v{x}, v{x}, v{hb+12+j}")
            g.bf16r(x, x)
            e(f"v_add_f32 v{x}, v{x}, v{T+j}")
            g.bf16r(x, x)
            e(f"v_mul_f32 v{t}, v{x}, v{x}")
            e(f"v_mul_f32 v{t}, v{t}, v{x}")
            e(f"v_fma_f32 v{t}, v{t}, v{V_TA}, v{x}")
            e(f"v_mul_f32 v{t}, 0xc0135761, v{t}")
            e(f"v_exp_f32 v{t}, v{t}")
            g.nop(1)
            e(f"v_add_f32 v{t}, 1.0, v{t}")
            e(f"v_rcp_f32 v{t}, v{t}")
            g.nop(1)
            e(f"v_mul_f32 v{x}, v{x}, v{t}")
            e(f"v_cvt_pk_bf16_f32 v{x}, v{x}, v{x}")
        e(f"ds_write_b128 v{V_TD}, {vr(T+4+4*bb)} offset:{bb*4096}")
    e(f"s_lshl_b32 s73, s{S_WA}, 8")
    e(f"s_add_u32 s72, s73, {AT2}")
    e(f"v_add_u32 v{V_TE}, s72, v{V_JOB}")
    g.aux_sync()
    tile_mfma(V_TE, 4, JT, "jt", D)
    job_store_signal("B", 4)
    e("s_branch L_job_done")
    g.role = "C"
    g.lab("L_job_n")
    e(f"s_cmp_eq_u32 s{S_WA}, 0")
    e("s_cbranch_scc0 L_job_done")
    e("s_lshr_b32 s72, s2, 3")
    e(f"s_sub_u32 s{S_T2}, s72, 28")
    e(f"s_and_b32 s{S_T1}, s2, 7")
    e(f"s_mov_b32 s{sB}, s22\ns_mov_b32 s{sB+1}, s23\ns_mov_b32 s{sB+2}, 2048\ns_mov_b32 s{sB+3}, 0x00020000")
    e(f"s_lshl_b32 s72, s{S_T2}, 9")
    B2R = LP
    e(f"buffer_load_dwordx2 {vr(B2R,2)}, v{V_L8}, {srd(sB)}, s72 offen")
    e(f"v_min_u32 v{V_TA}, 27, v{V_LANE}")
    e(f"v_lshlrev_b32 v{V_TA}, 3, v{V_TA}")
    e(f"s_lshl_b32 s74, s{S_T2}, 8")
    e(f"s_add_u32 s74, s74, {MFL}")
    flag_poll(V_TA, "s74", 16)
    e(f"s_lshl_b32 s72, s{S_T1}, 12")
    e(f"s_lshl_b32 s73, s{S_T2}, 10")
    e("s_add_u32 s72, s72, s73")
    M = V_WIN
    for ks in range(14):
        e(f"s_add_u32 s{S_TMP}, s72, {MP + ks*8*4096}")
        e(f"buffer_load_dwordx4 {vr(M+4*ks)}, v{V_L16}, {srd(sWS)}, s{S_TMP} offen sc1")
    e(f"v_lshlrev_b32 v{T}, 16, v{B2R}")
    e(f"v_and_b32 v{T+1}, s{S_HIM}, v{B2R}")
    e(f"v_lshlrev_b32 v{T+2}, 16, v{B2R+1}")
    e(f"v_and_b32 v{T+3}, s{S_HIM}, v{B2R+1}")
    e("s_waitcnt vmcnt(0)")
    for ks in range(1, 14):
        for j in range(4):
            e(f"v_add_f32 v{M+j}, v{M+j}, v{M+4*ks+j}")
    for j in range(4):
        g.bf16r(M + j, M + j)
        e(f"v_add_f32 v{M+j}, v{M+j}, v{T+j}")
        g.bf16r(M + j, M + j)
    e(f"s_add_u32 s{S_TMP}, s72, {BFIN}")
    e(f"buffer_store_dwordx4 {vr(M)}, v{V_L16}, {srd(sWS)}, s{S_TMP} offen sc1")
    e(f"s_lshl_b32 s72, s{S_T1}, 2")
    e(f"s_add_u32 s72, s72, s{S_T2}")
    e("s_lshl_b32 s72, s72, 6")
    e(f"s_add_u32 s72, s72, {BFL}")
    e("s_waitcnt vmcnt(0)")
    flag_set("s72")
    g.lab("L_job_done")
    ts(2)
    wo_srd()
    for i in range(32):
        wo_issue(i)
    e(f"v_lshrrev_b32 v{V_TD}, 1, v{V_TA16}")
    e(f"s_lshl_b32 s73, s{S_B}, 11")
    XR = LP
    g.vissue(f"buffer_load_dwordx2 {vr(XR,2)}, v{V_TD}, {srd(sX)}, s73 offen", "xf")
    e(f"s_lshl_b32 s74, s{S_B}, 2")
    e(f"s_add_u32 s74, s74, s{S_WA}")
    e("s_lshl_b32 s74, s74, 6")
    e(f"s_add_u32 s74, s74, {BFL}")
    flag_poll(V_ZERO, "s74", 64)
    g.vwait_all()
    e(f"s_lshl_b32 s72, s{S_B}, 12")
    e(f"s_add_u32 s72, s72, {BFIN}")
    g.vissue(f"buffer_load_dwordx4 {vr(M)}, v{V_TA16}, {srd(sWS)}, s72 offen sc1", "bf")
    e(f"v_lshlrev_b32 v{T+4}, 16, v{XR}")
    e(f"v_and_b32 v{T+5}, s{S_HIM}, v{XR}")
    e(f"v_lshlrev_b32 v{T+6}, 16, v{XR+1}")
    e(f"v_and_b32 v{T+7}, s{S_HIM}, v{XR+1}")
    e(f"ds_write_b128 v{V_TA16}, {vr(T+4)} offset:{FX}")
    g.vwait("bf")
    e(f"ds_write_b128 v{V_TA16}, {vr(M)} offset:{FB}")
    ts(3)
    e("s_branch L_tail")
    return g


HEADER = open("cdna_kernels/" + NAME + ".s.ref").read().split("; Override launch geometry")[0]
BLOCK = 512


def full_asm(opt=None):
    g = build(opt)
    s = HEADER
    s += "; generated by gen/gen2.py\n"
    s += f"; @launch grid=(256,1,1) block=({BLOCK},1,1) lds={LDS_BYTES}\n"
    s += '.amdgcn_target "amdgcn-amd-amdhsa--gfx950"\n.text\n'
    s += f".globl {KNAME}\n.p2align 8\n.type {KNAME},@function\n{KNAME}:\n"
    s += "\n".join(g.L) + "\n"
    s += f""".section .rodata,"a"
.p2align 6
.amdhsa_kernel {KNAME}
  .amdhsa_next_free_vgpr 256
  .amdhsa_next_free_sgpr 102
  .amdhsa_accum_offset 128
  .amdhsa_group_segment_fixed_size 0
  .amdhsa_kernarg_size 104
  .amdhsa_user_sgpr_count 2
  .amdhsa_user_sgpr_kernarg_segment_ptr 1
  .amdhsa_system_sgpr_workgroup_id_x 1
.end_amdhsa_kernel
"""
    return s


if __name__ == "__main__":
    out = "cdna_kernels/" + NAME + ".s"
    open(out, "w").write(full_asm())
    print("wrote", out, os.path.getsize(out))
```

```python
import sys, os

NAME = "parallel_sum__mha_block_cached__mixer_channel_mlp__decode"
KNAME = NAME + "_kernel"

OPT = dict(
    stream_flag="nt",
    w_flag="nt",
    ws_flag="nt",
    ts=False,
    apf=32,
    depth=16,
    auxprio=3,
    din=8,
)

PD = 0
OP = 16384
OD = 18432
FB = 22528
FX = 26624
QB = 30720
SM = 30976
CNT = 31040
RED = 32768
AT = 49152
AT2 = 81920
LDS_BYTES = 114688

HP = 0
MP = 0x80000
AP = 0x100000
QPW = 0x300000
QFL = 0x500000
HFL = QFL + 0x2000
MFL = QFL + 0x3000
BFL = QFL + 0x4000
DFL = QFL + 0x5000
BFIN = QFL + 0x8000
WS_BYTES = 0x580000
TS_OFF = 0x580000

sK, sV, sW, sX, sWS, sDBG, sB, sO = 32, 36, 40, 44, 48, 52, 56, 60
S_W, S_B, S_H, S_ROLE, S_T1, S_T2, S_OFF, S_TMP = 64, 65, 66, 67, 68, 69, 70, 71
S_NON = 76
S_WA = 78
S_XT = 79
S_ODD, S_TWO = 80, 82
S_RL = 86
S_SELLO, S_SELHI, S_HIM = 90, 91, 92
S_TS = 94
S_HI = 84


def srd(n):
    return f"s[{n}:{n+3}]"


def vr(a, n=4):
    return f"v[{a}:{a+n-1}]"


def ar(a, n=4):
    return f"a[{a}:{a+n-1}]"


V_LANE, V_G, V_C, V_L16, V_L32, V_L8, V_ZERO = 1, 2, 3, 4, 5, 6, 7
V_MASK = 8
V_DW, V_W2K = 12, 13
V_TA, V_TB, V_TC, V_TD, V_TE, V_TF = 14, 15, 16, 17, 18, 19
V_DUPO = 20
V_X1, V_X2, V_X3 = 21, 22, 23
LP, LE, LT = 24, 32, 48
V_ACC = 28
V_Q = 24
V_DUP = 32
V_FRAG = 40
V_A = 32
V_D = 48
V_WIN = 64
DEPTH = 16
V_KV, V_DUPP, V_PDW = V_X1, V_X2, V_X3
V_M = 63
V_JOB, V_REDW, V_TA16 = V_X1, V_X2, V_X3
V_NONL = 124
V_FX, V_FB = 24, 26
V_NON, V_FLG = V_TE, V_TC


class G:
    def __init__(self):
        self.L = []
        self.vm = {"C": [], "A": [], "B": []}
        self.role = "C"
        self.nlab = 0

    def e(self, s):
        for ln in s.split("\n"):
            self.L.append("  " + ln.strip())

    def lab(self, l):
        self.L.append(l + ":")

    def newlab(self, p="L"):
        self.nlab += 1
        return f"{p}_{self.nlab}"

    def nop(self, n):
        while n > 0:
            k = min(n, 16)
            self.e(f"s_nop {k-1}")
            n -= k

    def _roles(self):
        return list(self.vm.keys()) if self.role == "C" else [self.role]

    def vissue(self, instr, tag):
        worst = max(len(self.vm[r]) for r in self._roles())
        if worst >= 63:
            self._wait_n(61)
        self.e(instr)
        for r in self._roles():
            self.vm[r].append(tag)

    def _wait_n(self, n):
        self.e(f"s_waitcnt vmcnt({n})")
        for r in self._roles():
            f = self.vm[r]
            self.vm[r] = [] if n == 0 else f[-n:]

    def vwait(self, tag):
        f = self.vm[self.role]
        if tag not in f:
            return
        self._wait_n(len(f) - 1 - f.index(tag))

    def vwait_all(self):
        self._wait_n(0)

    def vm_save(self):
        return {k: list(v) for k, v in self.vm.items()}

    def vm_restore(self, s):
        self.vm = {k: list(v) for k, v in s.items()}

    def wave_reduce(self, T, op):
        for r in (8, 4, 2, 1):
            self.nop(2)
            self.e(f"v_{op}_f32_dpp v{T}, v{T}, v{T} row_ror:{r} row_mask:0xf bank_mask:0xf")
        self.nop(1)
        for i in range(4):
            self.e(f"v_readlane_b32 s{S_RL+i}, v{T}, {16*i}")
        self.nop(2)
        self.e(f"v_mov_b32 v{T}, s{S_RL}")
        for i in range(1, 4):
            self.e(f"v_{op}_f32 v{T}, s{S_RL+i}, v{T}")

    def bf16r(self, dst, src):
        self.e(f"v_cvt_pk_bf16_f32 v{dst}, v{src}, v{src}")
        self.e(f"v_lshlrev_b32 v{dst}, 16, v{dst}")

    def ln_unpack(self, P, E):
        for j in range(8):
            self.e(f"v_lshlrev_b32 v{E+2*j}, 16, v{P+j}")
            self.e(f"v_and_b32 v{E+2*j+1}, s{S_HIM}, v{P+j}")

    def ln_core(self, DST, E, T):
        e = self.e
        e(f"v_add_f32 v{T}, v{E}, v{E+1}")
        e(f"v_add_f32 v{T+1}, v{E+2}, v{E+3}")
        e(f"v_add_f32 v{T+2}, v{E+4}, v{E+5}")
        e(f"v_add_f32 v{T+3}, v{E+6}, v{E+7}")
        for j in range(4):
            e(f"v_add_f32 v{T+j}, v{T+j}, v{E+8+2*j}")
            e(f"v_add_f32 v{T+j}, v{T+j}, v{E+9+2*j}")
        e(f"v_add_f32 v{T}, v{T}, v{T+1}")
        e(f"v_add_f32 v{T+2}, v{T+2}, v{T+3}")
        e(f"v_add_f32 v{T}, v{T}, v{T+2}")
        self.wave_reduce(T, "add")
        e(f"v_mul_f32 v{T}, 0x3a800000, v{T}")
        self.bf16r(T + 1, T)
        e(f"v_mov_b32 v{T+2}, 0")
        e(f"v_mov_b32 v{T+3}, 0")
        for j in range(16):
            e(f"v_sub_f32 v{T+4+(j&1)}, v{E+j}, v{T}")
            e(f"v_fmac_f32 v{T+2+(j&1)}, v{T+4+(j&1)}, v{T+4+(j&1)}")
        e(f"v_add_f32 v{T+2}, v{T+2}, v{T+3}")
        self.wave_reduce(T + 2, "add")
        e(f"v_mul_f32 v{T+2}, 0x3a800000, v{T+2}")
        self.bf16r(T + 2, T + 2)
        e(f"v_add_f32 v{T+2}, 0x3727c5ac, v{T+2}")
        self.bf16r(T + 2, T + 2)
        e(f"v_sqrt_f32 v{T+2}, v{T+2}")
        self.nop(1)
        self.bf16r(T + 2, T + 2)
        e(f"v_rcp_f32 v{T+3}, v{T+2}")
        self.nop(1)
        for j in range(8):
            a, b = E + 2 * j, E + 2 * j + 1
            e(f"v_sub_f32 v{a}, v{a}, v{T+1}")
            e(f"v_sub_f32 v{b}, v{b}, v{T+1}")
            e(f"v_cvt_pk_bf16_f32 v{T+4}, v{a}, v{b}")
            e(f"v_lshlrev_b32 v{a}, 16, v{T+4}")
            e(f"v_and_b32 v{b}, s{S_HIM}, v{T+4}")
            e(f"v_mul_f32 v{T+4}, v{a}, v{T+3}")
            e(f"v_mul_f32 v{T+5}, v{b}, v{T+3}")
            e(f"v_fma_f32 v{T+6}, -v{T+4}, v{T+2}, v{a}")
            e(f"v_fma_f32 v{T+7}, -v{T+5}, v{T+2}, v{b}")
            e(f"v_fmac_f32 v{T+4}, v{T+6}, v{T+3}")
            e(f"v_fmac_f32 v{T+5}, v{T+7}, v{T+3}")
            e(f"v_cvt_pk_bf16_f32 v{DST+j}, v{T+4}, v{T+5}")

    def write_dup_row(self, P, E, vaddr, base):
        for j in range(8):
            self.e(f"v_perm_b32 v{E+2*j}, v{P+j}, v{P+j}, s{S_SELLO}")
            self.e(f"v_perm_b32 v{E+2*j+1}, v{P+j}, v{P+j}, s{S_SELHI}")
        for k in range(4):
            off = base + (k >> 1) * 2048 + (k & 1) * 16
            self.e(f"ds_write_b128 v{vaddr}, {vr(E+4*k)} offset:{off}")

    def frag(self, fr, dup):
        for j in range(4):
            self.e(f"v_and_b32 v{fr+j}, v{dup}, v{V_MASK+j}")

    def mfma(self, D, fr, B):
        self.e(f"v_mfma_f32_16x16x32_bf16 {vr(D)}, {vr(fr)}, {B}, {vr(D)}")

    def lds_wait_ge(self, off, target, sleep=1):
        sp = self.newlab("L_lspin")
        self.lab(sp)
        self.e(f"ds_read_b32 v{V_TF}, v{V_ZERO} offset:{off}")
        self.e("s_waitcnt lgkmcnt(0)")
        self.e(f"v_readfirstlane_b32 s72, v{V_TF}")
        self.nop(1)
        self.e(f"s_cmp_ge_u32 s72, {target}")
        self.e(f"s_cbranch_scc1 {sp}_ok")
        if sleep:
            self.e(f"s_sleep {sleep}")
        self.e(f"s_branch {sp}")
        self.lab(sp + "_ok")

    def lds_arrive(self, off):
        self.e("s_waitcnt lgkmcnt(0)")
        self.e("s_mov_b64 exec, 1")
        self.e(f"v_mov_b32 v{V_TF}, 1")
        self.e(f"ds_add_u32 v{V_ZERO}, v{V_TF} offset:{off}")
        self.e("s_mov_b64 exec, -1")

    def aux_sync(self):
        self.lds_arrive(CNT)
        self.e(f"s_add_u32 s{S_XT}, s{S_XT}, 4")
        self.lds_wait_ge(CNT, f"s{S_XT}", sleep=0)


def build(opt=None):
    o = dict(OPT)
    if opt:
        o.update(opt)
    SF, WF, WSF = o["stream_flag"], o["w_flag"], o["ws_flag"]
    APF = o["apf"]
    DEPTH = o["depth"]
    g = G()
    e = g.e

    tsv = [62]

    def ts(i):
        if not o["ts"]:
            return
        if i == 0:
            e(f"s_memrealtime s[{S_TS}:{S_TS+1}]")
            return
        e(f"s_memrealtime s[{S_TS+2}:{S_TS+3}]")
        e("s_waitcnt lgkmcnt(0)")
        e(f"v_mov_b32 v{tsv[0]}, s{S_TS+2}")
        e(f"s_mov_b32 s{sWS+2}, 0x600000")
        e(f"s_lshl_b32 s{S_TS+2}, s2, 9\ns_lshl_b32 s{S_TS+3}, s{S_W}, 6\ns_add_u32 s{S_TS+2}, s{S_TS+2}, s{S_TS+3}\ns_add_u32 s{S_TS+2}, s{S_TS+2}, {TS_OFF}")
        e(f"buffer_store_dword v{tsv[0]}, v{V_ZERO}, {srd(sWS)}, s{S_TS+2} offen offset:{4*i}")
        if i == 15:
            e(f"v_mov_b32 v{tsv[0]}, s{S_TS}")
            e(f"buffer_store_dword v{tsv[0]}, v{V_ZERO}, {srd(sWS)}, s{S_TS+2} offen offset:0")

    def flag_poll(vaddr, soff, sleep):
        ok = g.newlab("L_ok")
        sp = g.newlab("L_spin")
        e("s_mov_b32 s75, 0")
        g.lab(sp)
        e(f"buffer_load_dwordx2 {vr(V_FLG,2)}, v{vaddr}, {srd(sWS)}, {soff} offen sc1")
        e("s_waitcnt vmcnt(0)")
        e(f"v_cmp_ne_u64 vcc, s[{S_NON}:{S_NON+1}], {vr(V_FLG,2)}")
        e("s_add_u32 s75, s75, 1")
        e("s_cmp_ge_u32 s75, 0x40000")
        e(f"s_cbranch_scc1 {ok}")
        g.nop(2)
        e(f"s_cbranch_vccz {ok}")
        if sleep:
            e(f"s_sleep {sleep}")
        e(f"s_branch {sp}")
        g.lab(ok)

    def gather_poll(soff_base, stride, SA, SB, OUT):
        def issue(S):
            for k in range(8):
                e(f"s_add_u32 s{S_TMP}, {soff_base}, {k*stride}")
                e(f"buffer_load_dwordx4 {vr(S+4*k)}, v{V_L16}, {srd(sWS)}, s{S_TMP} offen sc1")

        def check(S, oklab):
            e("s_waitcnt vmcnt(8)")
            e("s_mov_b64 s[74:75], 0")
            for k in range(8):
                e(f"v_cmp_ne_u64 vcc, s[{S_NON}:{S_NON+1}], {vr(S+4*k+2,2)}")
                g.nop(1)
                e("s_or_b64 s[74:75], s[74:75], vcc")
            e("s_cmp_eq_u64 s[74:75], 0")
            e(f"s_cbranch_scc1 {oklab}")
        lp = g.newlab("L_gp")
        e("s_mov_b32 s73, 0")
        issue(SA)
        g.lab(lp)
        issue(SB)
        check(SA, lp + "_a")
        issue(SA)
        check(SB, lp + "_b")
        e("s_add_u32 s73, s73, 1")
        e("s_cmp_lt_u32 s73, 0x20000")
        e(f"s_cbranch_scc1 {lp}")
        for nm, S in (("_b", SB), ("_a", SA)):
            g.lab(lp + nm)
            e(f"v_add_f32 v{OUT}, v{S}, v{S+4}")
            e(f"v_add_f32 v{OUT+1}, v{S+1}, v{S+5}")
            for k in range(2, 8):
                e(f"v_add_f32 v{OUT}, v{OUT}, v{S+4*k}")
                e(f"v_add_f32 v{OUT+1}, v{OUT+1}, v{S+4*k+1}")
            if nm == "_b":
                e(f"s_branch {lp}_done")
        g.lab(lp + "_done")

    def flag_set(soff):
        e(f"v_mov_b32 v{V_NON}, s{S_NON}")
        e(f"v_mov_b32 v{V_NON+1}, s{S_NON+1}")
        e("s_mov_b64 exec, 1")
        e(f"buffer_store_dwordx2 {vr(V_NON,2)}, v{V_ZERO}, {srd(sWS)}, {soff} offen sc1")
        e("s_mov_b64 exec, -1")

    e("s_cmp_ge_u32 s2, 256")
    e("s_cbranch_scc1 L_done")
    e("s_load_dwordx16 s[4:19], s[0:1], 0")
    e("s_load_dwordx8 s[20:27], s[0:1], 64")
    e("s_load_dwordx2 s[28:29], s[0:1], 96")
    ts(0)
    e(f"v_and_b32 v{V_LANE}, 63, v0")
    e(f"v_lshrrev_b32 v{V_TC}, 6, v0")
    e(f"v_lshrrev_b32 v{V_G}, 4, v{V_LANE}")
    e(f"v_readfirstlane_b32 s{S_W}, v{V_TC}")
    e(f"v_and_b32 v{V_C}, 15, v{V_LANE}")
    e(f"v_lshlrev_b32 v{V_L16}, 4, v{V_LANE}")
    e(f"v_lshlrev_b32 v{V_L32}, 5, v{V_LANE}")
    e(f"v_lshlrev_b32 v{V_L8}, 3, v{V_LANE}")
    e(f"v_mov_b32 v{V_ZERO}, 0")
    e(f"v_lshlrev_b32 v{V_TB}, 4, v{V_C}")
    e(f"v_lshl_add_u32 v{V_W2K}, v{V_G}, 13, v{V_TB}")
    e(f"s_and_b32 s{S_H}, s2, 31")
    e(f"s_lshr_b32 s{S_B}, s2, 5")
    e(f"s_and_b32 s{S_WA}, s{S_W}, 3")
    e(f"s_mov_b32 s{S_SELLO}, 0x01000100")
    e(f"s_mov_b32 s{S_SELHI}, 0x03020302")
    e(f"s_mov_b32 s{S_HIM}, 0xffff0000")
    e(f"s_mov_b32 s{S_ODD}, 0xaaaaaaaa")
    e(f"s_mov_b32 s{S_ODD+1}, 0xaaaaaaaa")
    e(f"s_mov_b32 s{S_TWO}, 0xcccccccc")
    e(f"s_mov_b32 s{S_TWO+1}, 0xcccccccc")
    e(f"s_mov_b32 s{S_XT}, 0")
    e("s_waitcnt lgkmcnt(0)")
    e(f"s_mov_b32 s{sX}, s4\ns_mov_b32 s{sX+1}, s5\ns_mov_b32 s{sX+2}, 16384\ns_mov_b32 s{sX+3}, 0x00020000")
    e(f"s_lshl_b32 s{S_TMP}, s{S_W}, 11")
    g.vissue(f"buffer_load_dwordx4 {vr(LP)}, v{V_L16}, {srd(sX)}, s{S_TMP} offen", "x0")
    g.vissue(f"buffer_load_dwordx4 {vr(LP+4)}, v{V_L16}, {srd(sX)}, s{S_TMP} offen offset:1024", "x1")
    e(f"s_mov_b32 s{sDBG}, s26\ns_mov_b32 s{sDBG+1}, s27\ns_mov_b32 s{sDBG+2}, 256\ns_mov_b32 s{sDBG+3}, 0x00020000")
    e(f"s_mov_b32 s{sWS}, s28\ns_mov_b32 s{sWS+1}, s29\ns_mov_b32 s{sWS+2}, {WS_BYTES}\ns_mov_b32 s{sWS+3}, 0x00020000")
    e(f"s_mov_b32 s{sW+3}, 0x00020000")
    e(f"s_cmp_ge_u32 s{S_W}, 4")
    e("s_cbranch_scc1 L_aux_pro")

    def common_consts():
        e(f"s_mov_b32 s{sO}, s24\ns_mov_b32 s{sO+1}, s25\ns_mov_b32 s{sO+2}, 16384\ns_mov_b32 s{sO+3}, 0x00020000")
        e(f"v_and_b32 v{V_TA}, 1, v{V_C}")
        e(f"v_lshlrev_b32 v{V_TA}, 4, v{V_TA}")
        e(f"v_mov_b32 v{V_TB}, 0xffff")
        e(f"v_lshlrev_b32 v{V_TB}, v{V_TA}, v{V_TB}")
        e(f"v_bfe_u32 v{V_TA}, v{V_C}, 1, 2")
        for j in range(4):
            e(f"v_cmp_eq_u32 vcc, {j}, v{V_TA}")
            g.nop(2)
            e(f"v_cndmask_b32 v{V_MASK+j}, 0, v{V_TB}, vcc")
        e(f"v_lshlrev_b32 v{V_TA}, 4, v{V_G}")
        e(f"v_lshl_add_u32 v{V_DUPO}, v{V_TC}, 9, v{V_TA}")
        e(f"v_and_b32 v{V_TB}, 1, v{V_G}")
        e(f"v_lshlrev_b32 v{V_TB}, 4, v{V_TB}")
        e(f"v_lshl_add_u32 v{V_DW}, v{V_C}, 5, v{V_TB}")

    def ln_own_row():
        e(f"s_lshl_b32 s72, s{S_W}, 12")
        e(f"s_add_u32 s72, s72, {AT}")
        e(f"v_add_u32 v{V_TD}, s72, v{V_L32}")
        g.vwait("x1")
        g.ln_unpack(LP, LE)
        g.ln_core(LP, LE, LT)
        g.write_dup_row(LP, LE, V_TD, 0)
        e("s_waitcnt lgkmcnt(0)")
        e("s_barrier")

    def wo_srd():
        e(f"s_lshl_b32 s72, s{S_H}, 18")
        e(f"s_lshl_b32 s73, s{S_W}, 8")
        e("s_add_u32 s72, s72, s73")
        e(f"s_add_u32 s{sW}, s12, s72\ns_addc_u32 s{sW+1}, s13, 0\ns_sub_u32 s{sW+2}, 0x800000, s72")

    def wo_issue(i):
        e(f"s_mov_b32 s{S_TMP}, {(16*(i>>2)+(i&3))*2048}")
        g.vissue(f"buffer_load_dwordx4 {ar(4*i)}, v{V_W2K}, {srd(sW)}, s{S_TMP} offen {WSF}", f"wo{i}")

    vm0 = g.vm_save()

    e("s_lshl_b32 s72, s2, 20")
    e(f"s_add_u32 s{sK}, s6, s72\ns_addc_u32 s{sK+1}, s7, 0\ns_mov_b32 s{sK+2}, 0x100000\ns_mov_b32 s{sK+3}, 0x00020000")
    e(f"s_add_u32 s{sV}, s8, s72\ns_addc_u32 s{sV+1}, s9, 0\ns_mov_b32 s{sV+2}, 0x100000\ns_mov_b32 s{sV+3}, 0x00020000")
    e(f"v_lshl_add_u32 v{V_KV}, v{V_TC}, 12, v{V_L16}")
    e(f"s_mov_b32 s{S_OFF}, 0")

    def dest(L):
        if L < APF:
            return ("a", 4 * L)
        return ("v", V_WIN + 4 * ((L - APF) % DEPTH))

    def stream_issue(L):
        if L >= 512:
            return
        if L == 256:
            e(f"s_mov_b32 s{S_OFF}, 0")
        sd = sK if L < 256 else sV
        k, r = dest(L)
        d = ar(r) if k == "a" else vr(r)
        g.vissue(f"buffer_load_dwordx4 {d}, v{V_KV}, {srd(sd)}, s{S_OFF} offen offset:{(L&3)*1024} {SF}", f"S{L}")
        if L & 3 == 3:
            e(f"s_add_u32 s{S_OFF}, s{S_OFF}, 16384")

    DIN = o["din"]
    for L in range(DIN):
        stream_issue(L)
    common_consts()
    lb = g.newlab("L_ci")
    e(f"s_cmp_eq_u32 s{S_W}, 0")
    e(f"s_cbranch_scc0 {lb}")
    for j in range(4):
        e(f"v_mov_b32 v{V_TA+j}, 0")
    e(f"ds_write_b128 v{V_ZERO}, {vr(V_TA)} offset:{CNT}")
    g.lab(lb)
    e(f"v_lshrrev_b32 v{V_TC}, 6, v0")
    e(f"v_lshlrev_b32 v{V_TA}, 4, v{V_G}")
    e(f"v_lshl_add_u32 v{V_DUPP}, v{V_TC}, 12, v{V_TA}")
    e(f"v_bfe_u32 v{V_TB}, v{V_C}, 1, 1")
    e(f"v_lshl_add_u32 v{V_PDW}, v{V_TB}, 7, v{V_DUPP}")
    e(f"v_and_b32 v{V_TB}, 1, v{V_C}")
    e(f"v_lshl_add_u32 v{V_PDW}, v{V_TB}, 6, v{V_PDW}")
    e(f"v_bfe_u32 v{V_TB}, v{V_C}, 2, 1")
    e(f"v_lshl_add_u32 v{V_PDW}, v{V_TB}, 3, v{V_PDW}")
    e(f"v_lshrrev_b32 v{V_TB}, 3, v{V_C}")
    e(f"v_lshl_add_u32 v{V_PDW}, v{V_TB}, 2, v{V_PDW}")
    ln_own_row()
    for L in range(DIN, APF + DEPTH):
        g.vwait(f"S{L-DIN}")
        stream_issue(L)
    g.lds_wait_ge(CNT + 8, 1, sleep=2)
    e(f"v_lshlrev_b32 v{V_TA}, 4, v{V_C}")
    e(f"ds_read_b128 {vr(V_Q)}, v{V_TA} offset:{QB}")
    e(f"v_mov_b32 v{V_M}, 0xff800000")
    e("s_waitcnt lgkmcnt(0)")
    ts(1)
    nxt_issue = APF + DEPTH
    for beta in range(16):
        for t in range(16):
            L = 16 * beta + t
            k, r = dest(L)
            g.vwait(f"S{L}")
            if k == "a":
                for j in range(4):
                    e(f"v_accvgpr_read_b32 v{V_D+j + 4*(t&1)}, a{r+j}")
                r = V_D + 4 * (t & 1)
            e(f"v_dot2_f32_bf16 v{V_A+t}, v{r}, v{V_Q}, 0")
            for j in range(1, 4):
                e(f"v_dot2_f32_bf16 v{V_A+t}, v{r+j}, v{V_Q+j}, v{V_A+t}")
            if k == "v":
                stream_issue(nxt_issue)
                nxt_issue += 1
        g.nop(3)
        A = V_A
        for p in range(8):
            e(f"v_add_f32_dpp v{A+2*p}, v{A+2*p}, v{A+2*p} row_ror:8 row_mask:0xf bank_mask:0x3")
            e(f"v_add_f32_dpp v{A+2*p}, v{A+2*p+1}, v{A+2*p+1} row_ror:8 row_mask:0xf bank_mask:0xc")
        for p in range(4):
            e(f"v_add_f32_dpp v{A+4*p}, v{A+4*p}, v{A+4*p} row_shl:4 row_mask:0xf bank_mask:0x5")
            e(f"v_add_f32_dpp v{A+4*p}, v{A+4*p+2}, v{A+4*p+2} row_shr:4 row_mask:0xf bank_mask:0xa")
        g.nop(1)
        for p in range(4):
            e(f"v_add_f32_dpp v{A+4*p}, v{A+4*p}, v{A+4*p} quad_perm:[1,0,3,2] row_mask:0xf bank_mask:0xf")
        for p in range(2):
            e(f"v_cndmask_b32 v{A+8*p}, v{A+8*p}, v{A+8*p+4}, s[{S_ODD}:{S_ODD+1}]")
        g.nop(1)
        for p in range(2):
            e(f"v_add_f32_dpp v{A+8*p}, v{A+8*p}, v{A+8*p} quad_perm:[2,3,0,1] row_mask:0xf bank_mask:0xf")
        e(f"v_cndmask_b32 v{V_TA}, v{A}, v{A+8}, s[{S_TWO}:{S_TWO+1}]")
        g.bf16r(V_TA, V_TA)
        e(f"v_mul_f32 v{V_TA}, 0x3db504f3, v{V_TA}")
        g.bf16r(V_TA, V_TA)
        e(f"v_max_f32 v{V_M}, v{V_M}, v{V_TA}")
        e(f"ds_write_b32 v{V_PDW}, v{V_TA} offset:{PD + beta*256}")
        if beta == 3:
            wo_srd()
        if 4 <= beta < 12:
            for k in range(4):
                wo_issue(4 * (beta - 4) + k)
    ts(2)
    LOG2E = "0x3fb8aa3b"
    S = V_A
    for k in range(16):
        e(f"ds_read_b32 v{S+k}, v{V_PDW} offset:{PD + k*256}")
    g.wave_reduce(V_M, "max")
    e(f"v_mov_b32 v{V_TE}, 0")
    e("s_waitcnt lgkmcnt(0)")
    for k in range(16):
        t = V_TA + (k & 1)
        e(f"v_sub_f32 v{t}, v{S+k}, v{V_M}")
        e(f"v_mul_f32 v{t}, {LOG2E}, v{t}")
        e(f"v_exp_f32 v{t}, v{t}")
        g.nop(1)
        e(f"v_add_f32 v{V_TE}, v{V_TE}, v{t}")
    g.wave_reduce(V_TE, "add")
    e(f"v_mov_b32 v{V_TA}, v{V_M}")
    e(f"v_mov_b32 v{V_TB}, v{V_TE}")
    e(f"s_lshl_b32 s72, s{S_W}, 3")
    e(f"v_mov_b32 v{V_TC}, s72")
    e(f"ds_write_b64 v{V_TC}, v[{V_TA}:{V_TB}] offset:{SM}")
    g.lds_arrive(CNT + 4)
    g.lds_wait_ge(CNT + 4, 4, sleep=0)
    X = V_D
    e(f"ds_read_b128 {vr(X)}, v{V_ZERO} offset:{SM}")
    e(f"ds_read_b128 {vr(X+4)}, v{V_ZERO} offset:{SM+16}")
    e("s_waitcnt lgkmcnt(0)")
    e(f"v_max3_f32 v{V_TC}, v{X}, v{X+2}, v{X+4}")
    e(f"v_max_f32 v{V_TC}, v{V_TC}, v{X+6}")
    e(f"v_mov_b32 v{V_TE}, 0")
    for w in range(4):
        e(f"v_sub_f32 v{V_TA}, v{X+2*w}, v{V_TC}")
        e(f"v_mul_f32 v{V_TA}, {LOG2E}, v{V_TA}")
        e(f"v_exp_f32 v{V_TA}, v{V_TA}")
        g.nop(1)
        e(f"v_fmac_f32 v{V_TE}, v{V_TA}, v{X+2*w+1}")
    e(f"v_rcp_f32 v{V_TD}, v{V_TE}")
    g.nop(1)
    e(f"v_fma_f32 v{V_TA}, -v{V_TE}, v{V_TD}, 1.0")
    e(f"v_fmac_f32 v{V_TD}, v{V_TA}, v{V_TD}")
    for k in range(16):
        t = S + k
        e(f"v_sub_f32 v{t}, v{t}, v{V_TC}")
        e(f"v_mul_f32 v{t}, {LOG2E}, v{t}")
        e(f"v_exp_f32 v{t}, v{t}")
        g.nop(1)
        e(f"v_mul_f32 v{t}, v{t}, v{V_TD}")
        e(f"v_cvt_pk_bf16_f32 v{t}, v{t}, v{t}")
        e(f"ds_write_b32 v{V_PDW}, v{t} offset:{PD + k*256}")
    for j in range(4):
        e(f"v_mov_b32 v{V_ACC+j}, 0")
    e("s_waitcnt lgkmcnt(0)")
    e(f"ds_read_b128 {vr(V_DUP)}, v{V_DUPP} offset:{PD}")
    for n in range(64):
        cur = V_DUP + 4 * (n & 1)
        nxt = V_DUP + 4 * ((n + 1) & 1)
        e("s_waitcnt lgkmcnt(0)")
        if n < 63:
            e(f"ds_read_b128 {vr(nxt)}, v{V_DUPP} offset:{PD + (n+1)*64}")
        for d in range(4):
            L = 256 + 4 * n + d
            k, r = dest(L)
            fr = V_FRAG + 4 * (d & 1)
            g.frag(fr, cur + d)
            g.vwait(f"S{L}")
            g.nop(2)
            g.mfma(V_ACC, fr, vr(r))
            stream_issue(nxt_issue)
            nxt_issue += 1
    ts(3)
    g.nop(10)
    e(f"s_lshl_b32 s72, s{S_W}, 9")
    e(f"v_add_u32 v{V_TA}, s72, v{V_DW}")
    e(f"ds_write_b128 v{V_TA}, {vr(V_ACC)} offset:{OP}")

    g.lab("L_tail")
    e("s_waitcnt vmcnt(0) lgkmcnt(0)")
    g.vm = {"C": [], "A": [], "B": []}
    e("s_barrier")
    R = V_D
    for w in range(4):
        e(f"ds_read_b64 {vr(R+2*w,2)}, v{V_L8} offset:{OP + w*512}")
    e(f"ds_read_b64 {vr(R+8,2)}, v{V_ZERO} offset:{CNT+16}")
    e(f"s_lshl_b32 s72, s{S_W}, 9")
    e(f"v_add_u32 v{V_TD}, s72, v{V_L8}")
    lb = g.newlab("L_pf")
    e(f"s_cmp_eq_u32 s{S_W}, 4")
    e(f"s_cbranch_scc0 {lb}")
    e("s_lshl_b32 s72, s2, 3")
    e(f"s_add_u32 s72, s72, {DFL}")
    flag_set("s72")
    g.lab(lb)
    e("s_waitcnt lgkmcnt(0)")
    for j in range(2):
        e(f"v_add_f32 v{R+j}, v{R+j}, v{R+2+j}")
        e(f"v_add_f32 v{R+4+j}, v{R+4+j}, v{R+6+j}")
        e(f"v_add_f32 v{R+j}, v{R+j}, v{R+4+j}")
        e(f"v_cvt_pk_bf16_f32 v{R+j}, v{R+j}, v{R+j}")
    e(f"ds_write_b64 v{V_TD}, {vr(R,2)} offset:{OD}")
    for j in range(4):
        e(f"v_mov_b32 v{V_ACC+j}, 0")
    e("s_waitcnt lgkmcnt(0)")
    e(f"ds_read_b128 {vr(V_DUP)}, v{V_DUPO} offset:{OD}")
    e(f"v_lshrrev_b32 v{V_TA}, 2, v{V_C}")
    e(f"s_lshl_b32 s72, s{S_W}, 2")
    e(f"v_add_u32 v{V_TA}, s72, v{V_TA}")
    e(f"v_lshlrev_b32 v{V_TA}, 13, v{V_TA}")
    e(f"v_and_b32 v{V_TB}, 3, v{V_C}")
    e(f"v_lshl_add_u32 v{V_TA}, v{V_TB}, 6, v{V_TA}")
    e(f"v_and_b32 v{V_TB}, 1, v{V_G}")
    e(f"v_lshl_add_u32 v{V_TA}, v{V_TB}, 5, v{V_TA}")
    e(f"v_lshrrev_b32 v{V_TB}, 1, v{V_G}")
    e(f"v_lshl_add_u32 v{V_TA}, v{V_TB}, 4, v{V_TA}")
    e(f"s_lshl_b32 s{S_TMP}, s{S_B}, 18")
    e(f"s_lshl_b32 s72, s{S_H}, 8")
    e(f"s_add_u32 s{S_TMP}, s{S_TMP}, s72")
    e(f"s_add_u32 s{S_TMP}, s{S_TMP}, {AP}")
    e(f"s_mov_b32 s{S_HI}, 0")
    e(f"s_mov_b32 s{S_HI+1}, -1")
    for i4 in range(8):
        cur = V_DUP + 4 * (i4 & 1)
        nxt = V_DUP + 4 * ((i4 + 1) & 1)
        e("s_waitcnt lgkmcnt(0)")
        if i4 < 7:
            e(f"ds_read_b128 {vr(nxt)}, v{V_DUPO} offset:{OD + (i4+1)*64}")
        for ii in range(4):
            i = 4 * i4 + ii
            fr = V_FRAG + 4 * (i & 1)
            g.frag(fr, cur + ii)
            g.nop(2)
            g.mfma(V_ACC, fr, ar(4 * i))
    g.nop(10)
    e(f"v_cndmask_b32 v{R+6}, v{V_ACC}, v{V_ACC+2}, s[{S_HI}:{S_HI+1}]")
    e(f"v_cndmask_b32 v{R+7}, v{V_ACC+1}, v{V_ACC+3}, s[{S_HI}:{S_HI+1}]")
    e(f"buffer_store_dwordx4 {vr(R+6)}, v{V_TA}, {srd(sWS)}, s{S_TMP} offen sc1")
    e(f"s_cmp_eq_u32 s{S_W}, 4")
    e("s_cbranch_scc0 L_fin")
    e(f"v_and_b32 v{V_TA}, 31, v{V_LANE}")
    e(f"v_lshlrev_b32 v{V_TA}, 3, v{V_TA}")
    e(f"s_lshl_b32 s74, s{S_B}, 8")
    e(f"s_add_u32 s74, s74, {DFL}")
    flag_poll(V_TA, "s74", 12)
    ts(11)
    e("s_lshl_b32 s72, s2, 13")
    e(f"s_add_u32 s72, s72, {AP}")
    O = V_TA
    gather_poll("s72", 1024, V_WIN, V_WIN + 32, O)
    for sw in ("v_permlane32_swap_b32", "v_permlane16_swap_b32"):
        for j in range(2):
            e(f"v_mov_b32 v{V_TC+j}, v{O+j}")
        g.nop(2)
        for j in range(2):
            e(f"{sw} v{O+j}, v{V_TC+j}")
        g.nop(1)
        for j in range(2):
            e(f"v_add_f32 v{O+j}, v{O+j}, v{V_TC+j}")
    for j in range(2):
        g.bf16r(O + j, O + j)
        e(f"v_add_f32 v{O+j}, v{O+j}, v{V_FX+j}")
        g.bf16r(O + j, O + j)
        e(f"v_add_f32 v{O+j}, v{O+j}, v{V_FB+j}")
    e(f"v_cvt_pk_bf16_f32 v{O}, v{O}, v{O+1}")
    e(f"v_lshlrev_b32 v{V_TC}, 2, v{V_C}")
    e("s_lshl_b32 s73, s2, 6")
    e("s_mov_b64 exec, 0xffff")
    e(f"buffer_store_dword v{O}, v{V_TC}, {srd(sO)}, s73 offen")
    e("s_mov_b64 exec, -1")
    g.lab("L_fin")
    ts(15)
    g.lab("L_done")
    e("s_endpgm")

    g.lab("L_aux_pro")
    tsv[0] = 127
    g.vm_restore(vm0)
    e("s_setprio 3")
    e(f"v_lshl_add_u32 v{V_TE}, v{V_G}, 15, v{V_TB}")
    e(f"s_lshl_b32 s72, s{S_B}, 2")
    e(f"s_add_u32 s72, s72, s{S_WA}")
    e(f"s_lshl_b32 s72, s72, 18")
    e(f"s_lshl_b32 s73, s{S_H}, 8")
    e("s_add_u32 s72, s72, s73")
    e(f"s_add_u32 s{sW}, s10, s72\ns_addc_u32 s{sW+1}, s11, 0")
    e(f"s_sub_u32 s{sW+2}, 0x800000, s72")
    for i in range(8):
        e(f"s_mov_b32 s{S_TMP}, {(16*(i>>2)+(i&3))*8192}")
        g.vissue(f"buffer_load_dwordx4 {ar(4*i)}, v{V_TE}, {srd(sW)}, s{S_TMP} offen {WF}", f"wq{i}")
    e(f"s_or_b32 s72, s2, s{S_WA}")
    e("s_cmp_eq_u32 s72, 0")
    e("s_cbranch_scc0 L_no_nonce")
    e("s_memrealtime s[72:73]")
    e("s_waitcnt lgkmcnt(0)")
    e("s_or_b32 s72, s72, 1")
    e(f"v_mov_b32 v{V_NONL}, s72")
    e(f"v_mov_b32 v{V_NONL+1}, s73")
    e("s_mov_b64 exec, 1")
    e(f"buffer_store_dwordx2 {vr(V_NONL,2)}, v{V_ZERO}, {srd(sDBG)}, 0 offen offset:8 sc1")
    e("s_mov_b64 exec, -1")
    g.nop(2)
    g.lab("L_no_nonce")
    g.vissue(f"buffer_load_dwordx2 {vr(V_NONL,2)}, v{V_ZERO}, {srd(sDBG)}, 0 offen offset:8 sc1", "non")
    e("s_lshr_b32 s72, s2, 3")
    e("s_and_b32 s73, s2, 7")
    e("s_mul_i32 s73, s73, 14")
    e("s_add_u32 s74, s73, s72")
    e("s_sub_u32 s75, s74, 14")
    e(f"s_and_b32 s{S_T1}, s74, 3")
    e(f"s_lshr_b32 s{S_T2}, s74, 2")
    e("s_cmp_lt_u32 s72, 14")
    e(f"s_cselect_b32 s{S_ROLE}, 1, 0")
    e("s_cbranch_scc1 L_role_done")
    e("s_cmp_lt_u32 s72, 28")
    e(f"s_cselect_b32 s{S_ROLE}, 2, 0")
    e(f"s_lshr_b32 s{S_T1}, s75, 3")
    e(f"s_and_b32 s{S_T2}, s75, 7")
    g.lab("L_role_done")
    common_consts()
    e(f"v_and_b32 v{V_TC}, 3, v{V_TC}")
    e(f"v_lshlrev_b32 v{V_TA}, 4, v{V_G}")
    e(f"v_lshrrev_b32 v{V_TB}, 3, v{V_C}")
    e(f"v_lshl_add_u32 v{V_JOB}, v{V_TB}, 12, v{V_TA}")
    e(f"v_lshrrev_b32 v{V_TA}, 1, v{V_G}")
    e(f"v_lshl_add_u32 v{V_REDW}, v{V_TA}, 9, v{V_DW}")
    e(f"v_lshl_add_u32 v{V_REDW}, v{V_TC}, 12, v{V_REDW}")
    e(f"v_lshl_add_u32 v{V_TA16}, v{V_TC}, 10, v{V_L16}")
    ln_own_row()

    def tile_mfma(vaddr, nblk, abase, tagp, D):
        for j in range(16):
            e(f"v_mov_b32 v{D+j}, 0")
        seq = [(i4, pr) for i4 in range(nblk) for pr in range(4)]
        e(f"ds_read_b128 {vr(V_DUP)}, v{vaddr} offset:0")
        for n, (i4, pr) in enumerate(seq):
            cur = V_DUP + 4 * (n & 1)
            nxt = V_DUP + 4 * ((n + 1) & 1)
            e("s_waitcnt lgkmcnt(0)")
            if n + 1 < len(seq):
                i4n, prn = seq[n + 1]
                e(f"ds_read_b128 {vr(nxt)}, v{vaddr} offset:{prn*8192 + i4n*64}")
            for ii in range(4):
                i = 4 * i4 + ii
                fr = V_FRAG + 4 * (ii & 1)
                g.frag(fr, cur + ii)
                g.vwait(f"{tagp}{i}")
                g.nop(2)
                g.mfma(D + 4 * pr, fr, ar(abase + 4 * i))
        g.nop(10)
        for pr in range(4):
            e(f"ds_write_b128 v{V_REDW}, {vr(D+4*pr)} offset:{RED + pr*1024}")
        g.aux_sync()
        for w in range(4):
            e(f"ds_read_b128 {vr(D+4*w)}, v{V_TA16} offset:{RED + w*4096}")
        e("s_waitcnt lgkmcnt(0)")
        for j in range(4):
            e(f"v_add_f32 v{D+j}, v{D+j}, v{D+4+j}")
            e(f"v_add_f32 v{D+8+j}, v{D+8+j}, v{D+12+j}")
        for j in range(4):
            e(f"v_add_f32 v{D+j}, v{D+j}, v{D+8+j}")

    ts(4)
    g.vwait("non")
    ok = g.newlab("L_ok")
    sp = g.newlab("L_spin")
    e("s_mov_b32 s73, 0")
    g.lab(sp)
    e(f"v_readfirstlane_b32 s{S_NON}, v{V_NONL}")
    e(f"v_readfirstlane_b32 s{S_NON+1}, v{V_NONL+1}")
    g.nop(1)
    e(f"s_cmp_lg_u32 s{S_NON}, 0")
    e(f"s_cbranch_scc1 {ok}")
    e("s_add_u32 s73, s73, 1")
    e("s_cmp_ge_u32 s73, 0x40000")
    e(f"s_cbranch_scc1 {ok}")
    e(f"buffer_load_dwordx2 {vr(V_NONL,2)}, v{V_ZERO}, {srd(sDBG)}, 0 offen offset:8 sc1")
    e("s_waitcnt vmcnt(0)")
    e(f"s_branch {sp}")
    g.lab(ok)
    QD = V_WIN
    e(f"s_lshl_b32 s72, s{S_B}, 9")
    e(f"s_lshl_b32 s73, s{S_WA}, 7")
    e("s_add_u32 s72, s72, s73")
    e(f"s_add_u32 s72, s72, {AT}")
    e(f"v_add_u32 v{V_TE}, s72, v{V_JOB}")
    tile_mfma(V_TE, 2, 0, "wq", QD)
    ts(5)
    e(f"s_lshl_b32 s72, s{S_H}, 3")
    e(f"s_add_u32 s72, s72, s{S_B}")
    e(f"s_lshl_b32 s{S_TMP}, s72, 13")
    e(f"s_add_u32 s{S_TMP}, s{S_TMP}, {QPW}")
    e(f"v_mov_b32 v{QD+4}, v{QD+2}")
    e(f"v_mov_b32 v{QD+5}, v{QD+3}")
    e(f"v_mov_b32 v{QD+2}, s{S_NON}")
    e(f"v_mov_b32 v{QD+3}, s{S_NON+1}")
    e(f"v_mov_b32 v{QD+6}, s{S_NON}")
    e(f"v_mov_b32 v{QD+7}, s{S_NON+1}")
    e(f"v_lshlrev_b32 v{V_TA}, 1, v{V_TA16}")
    g.vissue(f"buffer_store_dwordx4 {vr(QD)}, v{V_TA}, {srd(sWS)}, s{S_TMP} offen sc1", "qst0")
    g.vissue(f"buffer_store_dwordx4 {vr(QD+4)}, v{V_TA}, {srd(sWS)}, s{S_TMP} offen offset:16 sc1", "qst1")
    ts(6)
    e(f"s_cmp_eq_u32 s{S_WA}, 0")
    e("s_cbranch_scc0 L_no_gather")
    e(f"ds_write_b64 v{V_ZERO}, {vr(QD+2,2)} offset:{CNT+16}")
    e(f"s_lshl_b32 s72, s{S_H}, 16")
    e(f"s_lshl_b32 s73, s{S_B}, 10")
    e("s_add_u32 s72, s72, s73")
    e(f"s_add_u32 s72, s72, {QPW}")
    gather_poll("s72", 8192, V_WIN, V_WIN + 32, V_TA)
    e(f"v_cvt_pk_bf16_f32 v{V_TA}, v{V_TA}, v{V_TA+1}")
    e(f"v_lshlrev_b32 v{V_TB}, 2, v{V_LANE}")
    e(f"ds_write_b32 v{V_TB}, v{V_TA} offset:{QB}")
    g.lds_arrive(CNT + 8)
    e("s_waitcnt vmcnt(0)")
    g.lab("L_no_gather")
    e(f"s_setprio {o['auxprio']}")
    ts(1)

    JT = 64
    D = V_D

    def job_store_signal(role, off):
        rowb = 3584 * 4 if role == "A" else 1024 * 4
        e(f"v_and_b32 v{V_TA}, 255, v0")
        e(f"v_lshrrev_b32 v{V_TA}, 5, v{V_TA}")
        e(f"v_mul_u32_u24 v{V_TA}, {rowb}, v{V_TA}")
        e(f"v_and_b32 v{V_TB}, 31, v0")
        e(f"v_lshl_add_u32 v{V_TA}, v{V_TB}, 4, v{V_TA}")
        e(f"s_mul_i32 s{S_TMP}, s{S_T1}, {8*rowb}")
        e(f"s_lshl_b32 s73, s{S_T2}, 9")
        e(f"s_add_u32 s{S_TMP}, s{S_TMP}, s73")
        e(f"s_add_u32 s{S_TMP}, s{S_TMP}, {HP if role == 'A' else MP}")
        g.vissue(f"buffer_store_dwordx4 {vr(D)}, v{V_TA}, {srd(sWS)}, s{S_TMP} offen sc1", "jst")
        g.vwait_all()
        g.aux_sync()
        lb = g.newlab("L_sig")
        e(f"s_cmp_eq_u32 s{S_WA}, 0")
        e(f"s_cbranch_scc0 {lb}")
        if role == "A":
            e(f"s_lshl_b32 s72, s{S_T2}, 5")
            e(f"s_lshl_b32 s73, s{S_T1}, 3")
            e("s_add_u32 s72, s72, s73")
            e(f"s_add_u32 s72, s72, {HFL}")
        else:
            e(f"s_lshr_b32 s72, s{S_T2}, 1")
            e("s_lshl_b32 s72, s72, 8")
            e(f"s_lshl_b32 s73, s{S_T1}, 4")
            e("s_add_u32 s72, s72, s73")
            e(f"s_and_b32 s73, s{S_T2}, 1")
            e("s_lshl_b32 s73, s73, 3")
            e("s_add_u32 s72, s72, s73")
            e(f"s_add_u32 s72, s72, {MFL}")
        flag_set("s72")
        g.lab(lb)

    e(f"s_cmp_eq_u32 s{S_ROLE}, 1")
    e("s_cbranch_scc0 L_not_a")
    g.role = "A"
    e(f"v_lshlrev_b32 v{V_TA}, 4, v{V_C}")
    e(f"v_mul_u32_u24 v{V_TE}, 28672, v{V_G}")
    e(f"v_add_u32 v{V_TE}, v{V_TE}, v{V_TA}")
    e(f"s_lshl_b32 s72, s{S_T1}, 2\ns_add_u32 s72, s72, s{S_WA}\ns_mul_i32 s72, s72, {64*7168}")
    e(f"s_lshl_b32 s73, s{S_T2}, 8\ns_add_u32 s72, s72, s73")
    e(f"s_add_u32 s{sW}, s16, s72\ns_addc_u32 s{sW+1}, s17, 0\ns_sub_u32 s{sW+2}, {1024*7168}, s72")
    for i in range(16):
        e(f"s_mov_b32 s{S_TMP}, {(16*(i>>2)+(i&3))*7168}")
        g.vissue(f"buffer_load_dwordx4 {ar(JT+4*i)}, v{V_TE}, {srd(sW)}, s{S_TMP} offen {WF}", f"jt{i}")
    e(f"s_lshl_b32 s72, s{S_WA}, 13")
    e(f"s_add_u32 s72, s72, {AT}")
    e(f"v_add_u32 v{V_TD}, s72, v{V_L32}")
    e(f"v_add_u32 v{V_TE}, {AT2-AT}, v{V_TD}")
    for rr in range(2):
        for k in range(4):
            e(f"ds_read_b128 {vr(LE+4*k)}, v{V_TD} offset:{rr*4096 + (k>>1)*2048 + (k&1)*16}")
        e("s_waitcnt lgkmcnt(0)")
        for j in range(16):
            e(f"v_and_b32 v{LE+j}, s{S_HIM}, v{LE+j}")
        g.ln_core(LP, LE, LT)
        g.write_dup_row(LP, LE, V_TE, rr * 4096)
    e(f"s_lshl_b32 s72, s{S_T1}, 10")
    e(f"s_lshl_b32 s73, s{S_WA}, 8")
    e("s_add_u32 s72, s72, s73")
    e(f"s_add_u32 s72, s72, {AT2}")
    e(f"v_add_u32 v{V_TE}, s72, v{V_JOB}")
    g.aux_sync()
    tile_mfma(V_TE, 4, JT, "jt", D)
    job_store_signal("A", 0)
    e("s_branch L_job_done")
    g.role = "C"
    g.lab("L_not_a")
    e(f"s_cmp_eq_u32 s{S_ROLE}, 2")
    e("s_cbranch_scc0 L_job_n")
    g.role = "B"
    e(f"s_lshl_b32 s72, s{S_T1}, 2\ns_add_u32 s72, s72, s{S_WA}\ns_lshl_b32 s72, s72, 17")
    e(f"s_lshl_b32 s73, s{S_T2}, 8\ns_add_u32 s72, s72, s73")
    e(f"s_add_u32 s{sW}, s20, s72\ns_addc_u32 s{sW+1}, s21, 0\ns_sub_u32 s{sW+2}, {3584*2048}, s72")
    for i in range(16):
        e(f"s_mov_b32 s{S_TMP}, {(16*(i>>2)+(i&3))*2048}")
        g.vissue(f"buffer_load_dwordx4 {ar(JT+4*i)}, v{V_W2K}, {srd(sW)}, s{S_TMP} offen {WF}", f"jt{i}")
    e(f"s_mov_b32 s{sB}, s18\ns_mov_b32 s{sB+1}, s19\ns_mov_b32 s{sB+2}, 7168\ns_mov_b32 s{sB+3}, 0x00020000")
    e(f"s_lshl_b32 s{S_TMP}, s{S_T1}, 9")
    B1 = LP
    g.vissue(f"buffer_load_dwordx2 {vr(B1,2)}, v{V_L8}, {srd(sB)}, s{S_TMP} offen", "b1")
    lb = g.newlab("L_bw")
    e(f"s_cmp_eq_u32 s{S_WA}, 0")
    e(f"s_cbranch_scc0 {lb}")
    e(f"v_and_b32 v{V_TA}, 7, v{V_LANE}")
    e(f"v_lshlrev_b32 v{V_TA}, 3, v{V_TA}")
    e(f"s_lshl_b32 s74, s{S_T1}, 6")
    e(f"s_add_u32 s74, s74, {HFL}")
    flag_poll(V_TA, "s74", 16)
    g.lab(lb)
    g.aux_sync()
    ts(8)
    HB = V_WIN
    e(f"s_mul_i32 s72, s{S_WA}, {2*3584*4}")
    e(f"s_lshl_b32 s73, s{S_T1}, 10")
    e(f"s_add_u32 s72, s72, s73")
    for bb in range(2):
        for kq in range(4):
            e(f"s_add_u32 s{S_TMP}, s72, {HP + (kq*8+bb)*3584*4}")
            g.vissue(f"buffer_load_dwordx4 {vr(HB+(bb*4+kq)*4)}, v{V_L16}, {srd(sWS)}, s{S_TMP} offen sc1", f"hp{bb*4+kq}")
    T = LE
    g.vwait("b1")
    e(f"v_lshlrev_b32 v{T}, 16, v{B1}")
    e(f"v_and_b32 v{T+1}, s{S_HIM}, v{B1}")
    e(f"v_lshlrev_b32 v{T+2}, 16, v{B1+1}")
    e(f"v_and_b32 v{T+3}, s{S_HIM}, v{B1+1}")
    e(f"s_lshl_b32 s72, s{S_WA}, 13")
    e(f"s_add_u32 s72, s72, {AT2}")
    e(f"v_add_u32 v{V_TD}, s72, v{V_L16}")
    e(f"v_mov_b32 v{V_TA}, 0x3d372713")
    g.vwait("hp7")
    for bb in range(2):
        hb = HB + bb * 16
        for j in range(4):
            x = T + 4 + 4 * bb + j
            t = T + 12 + j
            e(f"v_add_f32 v{x}, v{hb+j}, v{hb+4+j}")
            e(f"v_add_f32 v{x}, v{x}, v{hb+8+j}")
            e(f"v_add_f32 v{x}, v{x}, v{hb+12+j}")
            g.bf16r(x, x)
            e(f"v_add_f32 v{x}, v{x}, v{T+j}")
            g.bf16r(x, x)
            e(f"v_mul_f32 v{t}, v{x}, v{x}")
            e(f"v_mul_f32 v{t}, v{t}, v{x}")
            e(f"v_fma_f32 v{t}, v{t}, v{V_TA}, v{x}")
            e(f"v_mul_f32 v{t}, 0xc0135761, v{t}")
            e(f"v_exp_f32 v{t}, v{t}")
            g.nop(1)
            e(f"v_add_f32 v{t}, 1.0, v{t}")
            e(f"v_rcp_f32 v{t}, v{t}")
            g.nop(1)
            e(f"v_mul_f32 v{x}, v{x}, v{t}")
            e(f"v_cvt_pk_bf16_f32 v{x}, v{x}, v{x}")
        e(f"ds_write_b128 v{V_TD}, {vr(T+4+4*bb)} offset:{bb*4096}")
    e(f"s_lshl_b32 s73, s{S_WA}, 8")
    e(f"s_add_u32 s72, s73, {AT2}")
    e(f"v_add_u32 v{V_TE}, s72, v{V_JOB}")
    g.aux_sync()
    tile_mfma(V_TE, 4, JT, "jt", D)
    job_store_signal("B", 4)
    e("s_branch L_job_done")
    g.role = "C"
    g.lab("L_job_n")
    e(f"s_cmp_eq_u32 s{S_WA}, 0")
    e("s_cbranch_scc0 L_job_done")
    e("s_lshr_b32 s72, s2, 3")
    e(f"s_sub_u32 s{S_T2}, s72, 28")
    e(f"s_and_b32 s{S_T1}, s2, 7")
    e(f"s_mov_b32 s{sB}, s22\ns_mov_b32 s{sB+1}, s23\ns_mov_b32 s{sB+2}, 2048\ns_mov_b32 s{sB+3}, 0x00020000")
    e(f"s_lshl_b32 s72, s{S_T2}, 9")
    B2R = LP
    e(f"buffer_load_dwordx2 {vr(B2R,2)}, v{V_L8}, {srd(sB)}, s72 offen")
    e(f"v_min_u32 v{V_TA}, 27, v{V_LANE}")
    e(f"v_lshlrev_b32 v{V_TA}, 3, v{V_TA}")
    e(f"s_lshl_b32 s74, s{S_T2}, 8")
    e(f"s_add_u32 s74, s74, {MFL}")
    flag_poll(V_TA, "s74", 16)
    ts(9)
    e(f"s_lshl_b32 s72, s{S_T1}, 12")
    e(f"s_lshl_b32 s73, s{S_T2}, 10")
    e("s_add_u32 s72, s72, s73")
    M = V_WIN
    for ks in range(14):
        e(f"s_add_u32 s{S_TMP}, s72, {MP + ks*8*4096}")
        e(f"buffer_load_dwordx4 {vr(M+4*ks)}, v{V_L16}, {srd(sWS)}, s{S_TMP} offen sc1")
    e(f"v_lshlrev_b32 v{T}, 16, v{B2R}")
    e(f"v_and_b32 v{T+1}, s{S_HIM}, v{B2R}")
    e(f"v_lshlrev_b32 v{T+2}, 16, v{B2R+1}")
    e(f"v_and_b32 v{T+3}, s{S_HIM}, v{B2R+1}")
    e("s_waitcnt vmcnt(0)")
    for ks in range(1, 14):
        for j in range(4):
            e(f"v_add_f32 v{M+j}, v{M+j}, v{M+4*ks+j}")
    for j in range(4):
        g.bf16r(M + j, M + j)
        e(f"v_add_f32 v{M+j}, v{M+j}, v{T+j}")
        g.bf16r(M + j, M + j)
    e(f"s_add_u32 s{S_TMP}, s72, {BFIN}")
    e(f"buffer_store_dwordx4 {vr(M)}, v{V_L16}, {srd(sWS)}, s{S_TMP} offen sc1")
    e(f"s_lshl_b32 s72, s{S_T1}, 2")
    e(f"s_add_u32 s72, s72, s{S_T2}")
    e("s_lshl_b32 s72, s72, 6")
    e(f"s_add_u32 s72, s72, {BFL}")
    e("s_waitcnt vmcnt(0)")
    flag_set("s72")
    g.lab("L_job_done")
    ts(2)
    wo_srd()
    for i in range(32):
        wo_issue(i)
    e(f"s_cmp_eq_u32 s{S_WA}, 0")
    e("s_cbranch_scc0 L_tail")
    e(f"v_lshlrev_b32 v{V_TA}, 2, v{V_C}")
    e("s_lshl_b32 s73, s2, 6")
    e(f"buffer_load_dword v{V_FB}, v{V_TA}, {srd(sX)}, s73 offen")
    e(f"s_lshl_b32 s74, s{S_B}, 2")
    e(f"s_lshr_b32 s72, s{S_H}, 3")
    e("s_add_u32 s74, s74, s72")
    e("s_lshl_b32 s74, s74, 6")
    e(f"s_add_u32 s74, s74, {BFL}")
    e("s_waitcnt vmcnt(0)")
    ts(10)
    e(f"v_lshlrev_b32 v{V_FX}, 16, v{V_FB}")
    e(f"v_and_b32 v{V_FX+1}, s{S_HIM}, v{V_FB}")
    flag_poll(V_ZERO, "s74", 64)
    e(f"v_lshlrev_b32 v{V_TA}, 3, v{V_C}")
    e("s_lshl_b32 s72, s2, 7")
    e(f"s_add_u32 s72, s72, {BFIN}")
    e(f"buffer_load_dwordx2 {vr(V_FB,2)}, v{V_TA}, {srd(sWS)}, s72 offen sc1")
    ts(3)
    e("s_branch L_tail")
    return g


HEADER = open("cdna_kernels/" + NAME + ".s.ref").read().split("; Override launch geometry")[0]
BLOCK = 512


def full_asm(opt=None):
    g = build(opt)
    s = HEADER
    s += "; generated by gen/gen3.py\n"
    s += f"; @launch grid=(256,1,1) block=({BLOCK},1,1) lds={LDS_BYTES}\n"
    s += '.amdgcn_target "amdgcn-amd-amdhsa--gfx950"\n.text\n'
    s += f".globl {KNAME}\n.p2align 8\n.type {KNAME},@function\n{KNAME}:\n"
    s += "\n".join(g.L) + "\n"
    s += f""".section .rodata,"a"
.p2align 6
.amdhsa_kernel {KNAME}
  .amdhsa_next_free_vgpr 256
  .amdhsa_next_free_sgpr 102
  .amdhsa_accum_offset 128
  .amdhsa_group_segment_fixed_size 0
  .amdhsa_kernarg_size 104
  .amdhsa_user_sgpr_count 2
  .amdhsa_user_sgpr_kernarg_segment_ptr 1
  .amdhsa_system_sgpr_workgroup_id_x 1
.end_amdhsa_kernel
"""
    return s


if __name__ == "__main__":
    out = "cdna_kernels/" + NAME + ".s"
    open(out, "w").write(full_asm())
    print("wrote", out, os.path.getsize(out))
```

```python
import sys, json
sys.path.insert(0,'gen')
import gen3 as gen
from common import *
def mk(name, opt):
    s = gen.full_asm(opt)
    s += meta([(gen.KNAME, 102, 256, gen.BLOCK)])
    build(s, name)
    return f"{name},{gen.KNAME},256,{gen.BLOCK},{gen.LDS_BYTES}"
if __name__=='__main__':
    variants = json.loads(sys.argv[1])
    specs=[mk(n+'.co', o) for n,o in variants.items()]
    open('specs.txt','w').write(' '.join(specs))
    print(json.dumps(["bench/bench","bench/specs.txt"]+["bench/"+s.split(',')[0] for s in specs]))
    print(json.dumps(["bench/"+s.split(',')[0]+".ts" for s in specs]))
```

```python
import sys, os

NAME = "parallel_sum__mha_block_cached__mixer_channel_mlp__decode"
KNAME = NAME + "_kernel"

OPT = dict(
    stream_flag="nt",
    w_flag="nt",
    ws_flag="nt",
    ts=False,
    apf=32,
    depth=16,
    wo_in="K",
    fast=False,
    bal=True,
    chunk_ticks=440,
    mstone=4,
    park=False,
    auxprio=3,
    din=12,
)

PD = 0
OP = 16384
OD = 18432
PD2 = 22528
OP2 = 26624
OPX = 28672
PLAN = 29184
QB = 30720
SM = 30976
CNT = 31040
RED = 32768
AT = 49152
AT2 = 81920
LDS_BYTES = 114688

HP = 0
MP = 0x80000
AP = 0x100000
QPW = 0x300000
QPL = 0x500000
QFL = 0x700000
HFL = QFL + 0x2000
MFL = QFL + 0x3000
BFL = QFL + 0x4000
DFL = QFL + 0x5000
TKG = QFL + 0x6000
PXW = 0x500000
OXW = 0x600000
BFIN = QFL + 0x8000
WS_BYTES = 0x780000
TS_OFF = 0x780000

sK, sV, sW, sX, sWS, sDBG, sB, sO = 32, 36, 40, 44, 48, 52, 56, 60
S_W, S_B, S_H, S_ROLE, S_T1, S_T2, S_OFF, S_TMP = 64, 65, 66, 67, 68, 69, 70, 71
S_NON = 76
S_WA = 78
S_XT = 79
S_ODD, S_TWO = 80, 82
S_RL = 86
S_SELLO, S_SELHI, S_HIM = 90, 91, 92
S_TS = 94
S_J, S_NIN, S_TOT, S_E1, S_POFF, S_OWN = 98, 99, 100, 101, 30, 31
S_HI = 84


def srd(n):
    return f"s[{n}:{n+3}]"


def vr(a, n=4):
    return f"v[{a}:{a+n-1}]"


def ar(a, n=4):
    return f"a[{a}:{a+n-1}]"


V_LANE, V_G, V_C, V_L16, V_L32, V_L8, V_ZERO = 1, 2, 3, 4, 5, 6, 7
V_MASK = 8
V_DW, V_W2K = 12, 13
V_TA, V_TB, V_TC, V_TD, V_TE, V_TF = 14, 15, 16, 17, 18, 19
V_DUPO = 20
V_X1, V_X2, V_X3 = 21, 22, 23
LP, LE, LT = 24, 32, 48
V_ACC = 28
V_Q = 24
V_DUP = 32
V_FRAG = 40
V_A = 32
V_D = 48
V_WIN = 64
DEPTH = 16
V_KV, V_DUPP, V_PDW = V_X1, V_X2, V_X3
V_M = 63
V_JOB, V_REDW, V_TA16 = V_X1, V_X2, V_X3
V_NONL = 120
V_FX, V_FB = 24, 26
V_NON, V_FLG = V_TE, V_TC


class G:
    def __init__(self):
        self.L = []
        self.vm = {"C": [], "A": [], "B": []}
        self.role = "C"
        self.nlab = 0

    def e(self, s):
        for ln in s.split("\n"):
            self.L.append("  " + ln.strip())

    def lab(self, l):
        self.L.append(l + ":")

    def newlab(self, p="L"):
        self.nlab += 1
        return f"{p}_{self.nlab}"

    def nop(self, n):
        while n > 0:
            k = min(n, 16)
            self.e(f"s_nop {k-1}")
            n -= k

    def _roles(self):
        return list(self.vm.keys()) if self.role == "C" else [self.role]

    def vissue(self, instr, tag):
        worst = max(len(self.vm[r]) for r in self._roles())
        if worst >= 63:
            self._wait_n(61)
        self.e(instr)
        for r in self._roles():
            self.vm[r].append(tag)

    def _wait_n(self, n):
        self.e(f"s_waitcnt vmcnt({n})")
        for r in self._roles():
            f = self.vm[r]
            self.vm[r] = [] if n == 0 else f[-n:]

    def vwait(self, tag):
        f = self.vm[self.role]
        if tag not in f:
            return
        self._wait_n(len(f) - 1 - f.index(tag))

    def vwait_all(self):
        self._wait_n(0)

    def vm_save(self):
        return {k: list(v) for k, v in self.vm.items()}

    def vm_restore(self, s):
        self.vm = {k: list(v) for k, v in s.items()}

    def wave_reduce(self, T, op):
        for r in (8, 4, 2, 1):
            self.nop(2)
            self.e(f"v_{op}_f32_dpp v{T}, v{T}, v{T} row_ror:{r} row_mask:0xf bank_mask:0xf")
        self.nop(1)
        for i in range(4):
            self.e(f"v_readlane_b32 s{S_RL+i}, v{T}, {16*i}")
        self.nop(2)
        self.e(f"v_mov_b32 v{T}, s{S_RL}")
        for i in range(1, 4):
            self.e(f"v_{op}_f32 v{T}, s{S_RL+i}, v{T}")

    def bf16r(self, dst, src):
        self.e(f"v_cvt_pk_bf16_f32 v{dst}, v{src}, v{src}")
        self.e(f"v_lshlrev_b32 v{dst}, 16, v{dst}")

    def ln_unpack(self, P, E):
        for j in range(8):
            self.e(f"v_lshlrev_b32 v{E+2*j}, 16, v{P+j}")
            self.e(f"v_and_b32 v{E+2*j+1}, s{S_HIM}, v{P+j}")

    def ln_core(self, DST, E, T):
        e = self.e
        e(f"v_add_f32 v{T}, v{E}, v{E+1}")
        e(f"v_add_f32 v{T+1}, v{E+2}, v{E+3}")
        e(f"v_add_f32 v{T+2}, v{E+4}, v{E+5}")
        e(f"v_add_f32 v{T+3}, v{E+6}, v{E+7}")
        for j in range(4):
            e(f"v_add_f32 v{T+j}, v{T+j}, v{E+8+2*j}")
            e(f"v_add_f32 v{T+j}, v{T+j}, v{E+9+2*j}")
        e(f"v_add_f32 v{T}, v{T}, v{T+1}")
        e(f"v_add_f32 v{T+2}, v{T+2}, v{T+3}")
        e(f"v_add_f32 v{T}, v{T}, v{T+2}")
        self.wave_reduce(T, "add")
        e(f"v_mul_f32 v{T}, 0x3a800000, v{T}")
        self.bf16r(T + 1, T)
        e(f"v_mov_b32 v{T+2}, 0")
        e(f"v_mov_b32 v{T+3}, 0")
        for j in range(16):
            e(f"v_sub_f32 v{T+4+(j&1)}, v{E+j}, v{T}")
            e(f"v_fmac_f32 v{T+2+(j&1)}, v{T+4+(j&1)}, v{T+4+(j&1)}")
        e(f"v_add_f32 v{T+2}, v{T+2}, v{T+3}")
        self.wave_reduce(T + 2, "add")
        e(f"v_mul_f32 v{T+2}, 0x3a800000, v{T+2}")
        self.bf16r(T + 2, T + 2)
        e(f"v_add_f32 v{T+2}, 0x3727c5ac, v{T+2}")
        self.bf16r(T + 2, T + 2)
        e(f"v_sqrt_f32 v{T+2}, v{T+2}")
        self.nop(1)
        self.bf16r(T + 2, T + 2)
        e(f"v_rcp_f32 v{T+3}, v{T+2}")
        self.nop(1)
        for j in range(8):
            a, b = E + 2 * j, E + 2 * j + 1
            e(f"v_sub_f32 v{a}, v{a}, v{T+1}")
            e(f"v_sub_f32 v{b}, v{b}, v{T+1}")
            e(f"v_cvt_pk_bf16_f32 v{T+4}, v{a}, v{b}")
            e(f"v_lshlrev_b32 v{a}, 16, v{T+4}")
            e(f"v_and_b32 v{b}, s{S_HIM}, v{T+4}")
            e(f"v_mul_f32 v{T+4}, v{a}, v{T+3}")
            e(f"v_mul_f32 v{T+5}, v{b}, v{T+3}")
            e(f"v_fma_f32 v{T+6}, -v{T+4}, v{T+2}, v{a}")
            e(f"v_fma_f32 v{T+7}, -v{T+5}, v{T+2}, v{b}")
            e(f"v_fmac_f32 v{T+4}, v{T+6}, v{T+3}")
            e(f"v_fmac_f32 v{T+5}, v{T+7}, v{T+3}")
            e(f"v_cvt_pk_bf16_f32 v{DST+j}, v{T+4}, v{T+5}")

    def write_dup_row(self, P, E, vaddr, base):
        for j in range(8):
            self.e(f"v_perm_b32 v{E+2*j}, v{P+j}, v{P+j}, s{S_SELLO}")
            self.e(f"v_perm_b32 v{E+2*j+1}, v{P+j}, v{P+j}, s{S_SELHI}")
        for k in range(4):
            off = base + (k >> 1) * 2048 + (k & 1) * 16
            self.e(f"ds_write_b128 v{vaddr}, {vr(E+4*k)} offset:{off}")

    def frag(self, fr, dup):
        for j in range(4):
            self.e(f"v_and_b32 v{fr+j}, v{dup}, v{V_MASK+j}")

    def mfma(self, D, fr, B):
        self.e(f"v_mfma_f32_16x16x32_bf16 {vr(D)}, {vr(fr)}, {B}, {vr(D)}")

    def lds_wait_ge(self, off, target, sleep=1):
        sp = self.newlab("L_lspin")
        self.lab(sp)
        self.e(f"ds_read_b32 v{V_TF}, v{V_ZERO} offset:{off}")
        self.e("s_waitcnt lgkmcnt(0)")
        self.e(f"v_readfirstlane_b32 s72, v{V_TF}")
        self.nop(1)
        self.e(f"s_cmp_ge_u32 s72, {target}")
        self.e(f"s_cbranch_scc1 {sp}_ok")
        if sleep:
            self.e(f"s_sleep {sleep}")
        self.e(f"s_branch {sp}")
        self.lab(sp + "_ok")

    def lds_arrive(self, off):
        self.e("s_waitcnt lgkmcnt(0)")
        self.e("s_mov_b64 exec, 1")
        self.e(f"v_mov_b32 v{V_TF}, 1")
        self.e(f"ds_add_u32 v{V_ZERO}, v{V_TF} offset:{off}")
        self.e("s_mov_b64 exec, -1")

    def aux_sync(self):
        self.lds_arrive(CNT)
        self.e(f"s_add_u32 s{S_XT}, s{S_XT}, 4")
        self.lds_wait_ge(CNT, f"s{S_XT}", sleep=0)


def build(opt=None):
    o = dict(OPT)
    if opt:
        o.update(opt)
    SF, WF, WSF = o["stream_flag"], o["w_flag"], o["ws_flag"]
    APF = o["apf"]
    DEPTH = o["depth"]
    g = G()
    e = g.e

    tsv = [62]

    def ts(i):
        if not o["ts"]:
            return
        if i == 0:
            e(f"s_memrealtime s[{S_TS}:{S_TS+1}]")
            return
        e(f"s_memrealtime s[{S_TS+2}:{S_TS+3}]")
        e("s_waitcnt lgkmcnt(0)")
        e(f"v_mov_b32 v{tsv[0]}, s{S_TS+2}")
        e(f"s_mov_b32 s{sWS+2}, 0x800000")
        e(f"s_lshl_b32 s{S_TS+2}, s2, 9\ns_lshl_b32 s{S_TS+3}, s{S_W}, 6\ns_add_u32 s{S_TS+2}, s{S_TS+2}, s{S_TS+3}\ns_add_u32 s{S_TS+2}, s{S_TS+2}, {TS_OFF}")
        e(f"buffer_store_dword v{tsv[0]}, v{V_ZERO}, {srd(sWS)}, s{S_TS+2} offen offset:{4*i}")
        if i == 15:
            e(f"v_mov_b32 v{tsv[0]}, s{S_TS}")
            e(f"buffer_store_dword v{tsv[0]}, v{V_ZERO}, {srd(sWS)}, s{S_TS+2} offen offset:0")

    def flag_poll(vaddr, soff, sleep):
        ok = g.newlab("L_ok")
        sp = g.newlab("L_spin")
        e("s_mov_b32 s75, 0")
        g.lab(sp)
        e(f"buffer_load_dwordx2 {vr(V_FLG,2)}, v{vaddr}, {srd(sWS)}, {soff} offen sc1")
        e("s_waitcnt vmcnt(0)")
        e(f"v_cmp_ne_u64 vcc, s[{S_NON}:{S_NON+1}], {vr(V_FLG,2)}")
        e("s_add_u32 s75, s75, 1")
        e("s_cmp_ge_u32 s75, 0x40000")
        e(f"s_cbranch_scc1 {ok}")
        g.nop(2)
        e(f"s_cbranch_vccz {ok}")
        if sleep:
            e(f"s_sleep {sleep}")
        e(f"s_branch {sp}")
        g.lab(ok)

    def gather_poll(soff_base, stride, SA, SB, OUT, boff=0):
        def issue(S, off):
            for k in range(8):
                e(f"s_add_u32 s{S_TMP}, {soff_base}, {k*stride + off}")
                e(f"buffer_load_dwordx4 {vr(S+4*k)}, v{V_L16}, {srd(sWS)}, s{S_TMP} offen sc1")

        def check(S, oklab):
            e("s_waitcnt vmcnt(8)")
            e("s_mov_b64 s[74:75], 0")
            for k in range(8):
                e(f"v_cmp_ne_u64 vcc, s[{S_NON}:{S_NON+1}], {vr(S+4*k+2,2)}")
                g.nop(1)
                e("s_or_b64 s[74:75], s[74:75], vcc")
            e("s_cmp_eq_u64 s[74:75], 0")
            e(f"s_cbranch_scc1 {oklab}")
        lp = g.newlab("L_gp")
        e("s_mov_b32 s73, 0")
        issue(SA, 0)
        g.lab(lp)
        issue(SB, 0)
        check(SA, lp + "_a")
        issue(SA, 0)
        check(SB, lp + "_b")
        if boff:
            issue(SB, boff)
            check(SA, lp + "_a")
            issue(SA, 0)
            check(SB, lp + "_b")
        e("s_add_u32 s73, s73, 1")
        e("s_cmp_lt_u32 s73, 0x20000")
        e(f"s_cbranch_scc1 {lp}")
        for nm, S in (("_b", SB), ("_a", SA)):
            g.lab(lp + nm)
            e(f"v_add_f32 v{OUT}, v{S}, v{S+4}")
            e(f"v_add_f32 v{OUT+1}, v{S+1}, v{S+5}")
            for k in range(2, 8):
                e(f"v_add_f32 v{OUT}, v{OUT}, v{S+4*k}")
                e(f"v_add_f32 v{OUT+1}, v{OUT+1}, v{S+4*k+1}")
            if nm == "_b":
                e(f"s_branch {lp}_done")
        g.lab(lp + "_done")

    def flag_set(soff):
        e(f"v_mov_b32 v{V_NON}, s{S_NON}")
        e(f"v_mov_b32 v{V_NON+1}, s{S_NON+1}")
        e("s_mov_b64 exec, 1")
        e(f"buffer_store_dwordx2 {vr(V_NON,2)}, v{V_ZERO}, {srd(sWS)}, {soff} offen sc1")
        e("s_mov_b64 exec, -1")

    e("s_cmp_ge_u32 s2, 256")
    e("s_cbranch_scc1 L_done")
    e("s_load_dwordx16 s[4:19], s[0:1], 0")
    e("s_load_dwordx8 s[20:27], s[0:1], 64")
    e("s_load_dwordx2 s[28:29], s[0:1], 96")
    ts(0)
    e(f"v_and_b32 v{V_LANE}, 63, v0")
    e(f"v_lshrrev_b32 v{V_TC}, 6, v0")
    e(f"v_lshrrev_b32 v{V_G}, 4, v{V_LANE}")
    e(f"v_readfirstlane_b32 s{S_W}, v{V_TC}")
    e(f"v_and_b32 v{V_C}, 15, v{V_LANE}")
    e(f"v_lshlrev_b32 v{V_L16}, 4, v{V_LANE}")
    e(f"v_lshlrev_b32 v{V_L32}, 5, v{V_LANE}")
    e(f"v_lshlrev_b32 v{V_L8}, 3, v{V_LANE}")
    e(f"v_mov_b32 v{V_ZERO}, 0")
    e(f"v_lshlrev_b32 v{V_TB}, 4, v{V_C}")
    e(f"v_lshl_add_u32 v{V_W2K}, v{V_G}, 13, v{V_TB}")
    e(f"s_and_b32 s{S_H}, s2, 31")
    e(f"s_lshr_b32 s{S_B}, s2, 5")
    e(f"s_and_b32 s{S_WA}, s{S_W}, 3")
    e(f"s_mov_b32 s{S_SELLO}, 0x01000100")
    e(f"s_mov_b32 s{S_SELHI}, 0x03020302")
    e(f"s_mov_b32 s{S_HIM}, 0xffff0000")
    e(f"s_mov_b32 s{S_ODD}, 0xaaaaaaaa")
    e(f"s_mov_b32 s{S_ODD+1}, 0xaaaaaaaa")
    e(f"s_mov_b32 s{S_TWO}, 0xcccccccc")
    e(f"s_mov_b32 s{S_TWO+1}, 0xcccccccc")
    e(f"s_mov_b32 s{S_XT}, 0")
    e("s_waitcnt lgkmcnt(0)")
    e(f"s_mov_b32 s{sX}, s4\ns_mov_b32 s{sX+1}, s5\ns_mov_b32 s{sX+2}, 16384\ns_mov_b32 s{sX+3}, 0x00020000")
    e(f"s_lshl_b32 s{S_TMP}, s{S_W}, 11")
    g.vissue(f"buffer_load_dwordx4 {vr(LP)}, v{V_L16}, {srd(sX)}, s{S_TMP} offen", "x0")
    g.vissue(f"buffer_load_dwordx4 {vr(LP+4)}, v{V_L16}, {srd(sX)}, s{S_TMP} offen offset:1024", "x1")
    e(f"s_mov_b32 s{sDBG}, s26\ns_mov_b32 s{sDBG+1}, s27\ns_mov_b32 s{sDBG+2}, 256\ns_mov_b32 s{sDBG+3}, 0x00020000")
    e(f"s_mov_b32 s{sWS}, s28\ns_mov_b32 s{sWS+1}, s29\ns_mov_b32 s{sWS+2}, {WS_BYTES}\ns_mov_b32 s{sWS+3}, 0x00020000")
    e(f"s_mov_b32 s{sW+3}, 0x00020000")
    e(f"s_cmp_ge_u32 s{S_W}, 4")
    e("s_cbranch_scc1 L_aux_pro")

    def common_consts():
        e(f"s_mov_b32 s{sO}, s24\ns_mov_b32 s{sO+1}, s25\ns_mov_b32 s{sO+2}, 16384\ns_mov_b32 s{sO+3}, 0x00020000")
        e(f"v_and_b32 v{V_TA}, 1, v{V_C}")
        e(f"v_lshlrev_b32 v{V_TA}, 4, v{V_TA}")
        e(f"v_mov_b32 v{V_TB}, 0xffff")
        e(f"v_lshlrev_b32 v{V_TB}, v{V_TA}, v{V_TB}")
        e(f"v_bfe_u32 v{V_TA}, v{V_C}, 1, 2")
        for j in range(4):
            e(f"v_cmp_eq_u32 vcc, {j}, v{V_TA}")
            g.nop(2)
            e(f"v_cndmask_b32 v{V_MASK+j}, 0, v{V_TB}, vcc")
        e(f"v_lshlrev_b32 v{V_TA}, 4, v{V_G}")
        e(f"v_lshl_add_u32 v{V_DUPO}, v{V_TC}, 9, v{V_TA}")
        e(f"v_and_b32 v{V_TB}, 1, v{V_G}")
        e(f"v_lshlrev_b32 v{V_TB}, 4, v{V_TB}")
        e(f"v_lshl_add_u32 v{V_DW}, v{V_C}, 5, v{V_TB}")

    def ln_own_row(aux=False):
        e(f"s_lshl_b32 s72, s{S_W}, 12")
        e(f"s_add_u32 s72, s72, {AT}")
        e(f"v_add_u32 v{V_TD}, s72, v{V_L32}")
        g.vwait("x1")
        if aux:
            g.vissue(f"buffer_load_dwordx2 {vr(V_NONL+2,2)}, v{V_ZERO}, {srd(sDBG)}, 0 offen offset:8 sc1", "non2")
        g.ln_unpack(LP, LE)
        g.ln_core(LP, LE, LT)
        g.write_dup_row(LP, LE, V_TD, 0)
        e("s_waitcnt lgkmcnt(0)")
        e("s_barrier")

    def wo_srd():
        e(f"s_lshl_b32 s72, s{S_H}, 18")
        e(f"s_lshl_b32 s73, s{S_W}, 8")
        e("s_add_u32 s72, s72, s73")
        e(f"s_add_u32 s{sW}, s12, s72\ns_addc_u32 s{sW+1}, s13, 0\ns_sub_u32 s{sW+2}, 0x800000, s72")

    def wo_issue(i):
        e(f"s_mov_b32 s{S_TMP}, {(16*(i>>2)+(i&3))*2048}")
        g.vissue(f"buffer_load_dwordx4 {ar(4*i)}, v{V_W2K}, {srd(sW)}, s{S_TMP} offen {WSF}", f"wo{i}")

    vm0 = g.vm_save()

    e("s_lshl_b32 s72, s2, 20")
    e(f"s_add_u32 s{sK}, s6, s72\ns_addc_u32 s{sK+1}, s7, 0\ns_mov_b32 s{sK+2}, 0x100000\ns_mov_b32 s{sK+3}, 0x00020000")
    e(f"s_mov_b32 s{sV}, s8\ns_mov_b32 s{sV+1}, s9\ns_mov_b32 s{sV+2}, 0x10000000\ns_mov_b32 s{sV+3}, 0x00020000")
    e(f"s_mov_b32 s{S_OWN}, s72")
    e(f"v_lshl_add_u32 v{V_KV}, v{V_TC}, 12, v{V_L16}")
    e(f"s_mov_b32 s{S_OFF}, 0")

    def dest(L):
        if L < APF:
            return ("a", 4 * L)
        return ("v", V_WIN + 4 * ((L - APF) % DEPTH))

    def stream_issue(L):
        if L >= 512:
            return
        if L == 256:
            e(f"s_mov_b32 s{S_OFF}, s{S_OWN}")
        sd = sK if L < 256 else sV
        k, r = dest(L)
        d = ar(r) if k == "a" else vr(r)
        g.vissue(f"buffer_load_dwordx4 {d}, v{V_KV}, {srd(sd)}, s{S_OFF} offen offset:{(L&3)*1024} {SF}", f"S{L}")
        if L & 3 == 3:
            e(f"s_add_u32 s{S_OFF}, s{S_OFF}, 16384")

    DIN = o["din"]
    for L in range(DIN):
        stream_issue(L)
    common_consts()
    lb = g.newlab("L_ci")
    e(f"s_cmp_eq_u32 s{S_W}, 0")
    e(f"s_cbranch_scc0 {lb}")
    for j in range(4):
        e(f"v_mov_b32 v{V_TA+j}, 0")
    e(f"ds_write_b128 v{V_ZERO}, {vr(V_TA)} offset:{CNT}")
    e(f"ds_write_b128 v{V_ZERO}, {vr(V_TA)} offset:{CNT+16}")
    e(f"ds_write_b128 v{V_ZERO}, {vr(V_TA)} offset:{CNT+32}")
    g.lab(lb)
    e(f"v_lshrrev_b32 v{V_TC}, 6, v0")
    e(f"v_lshlrev_b32 v{V_TA}, 4, v{V_G}")
    e(f"v_lshl_add_u32 v{V_DUPP}, v{V_TC}, 12, v{V_TA}")
    e(f"v_bfe_u32 v{V_TB}, v{V_C}, 1, 1")
    e(f"v_lshl_add_u32 v{V_PDW}, v{V_TB}, 7, v{V_DUPP}")
    e(f"v_and_b32 v{V_TB}, 1, v{V_C}")
    e(f"v_lshl_add_u32 v{V_PDW}, v{V_TB}, 6, v{V_PDW}")
    e(f"v_bfe_u32 v{V_TB}, v{V_C}, 2, 1")
    e(f"v_lshl_add_u32 v{V_PDW}, v{V_TB}, 3, v{V_PDW}")
    e(f"v_lshrrev_b32 v{V_TB}, 3, v{V_C}")
    e(f"v_lshl_add_u32 v{V_PDW}, v{V_TB}, 2, v{V_PDW}")
    ln_own_row()
    for L in range(DIN, APF + DEPTH):
        g.vwait(f"S{L-DIN}")
        stream_issue(L)
    g.lds_wait_ge(CNT + 8, 1, sleep=2)
    e(f"v_lshlrev_b32 v{V_TA}, 4, v{V_C}")
    e(f"ds_read_b128 {vr(V_Q)}, v{V_TA} offset:{QB}")
    e(f"v_mov_b32 v{V_M}, 0xff800000")
    e("s_waitcnt lgkmcnt(0)")
    ts(1)
    nxt_issue = APF + DEPTH
    for beta in range(16):
        for t in range(16):
            L = 16 * beta + t
            k, r = dest(L)
            g.vwait(f"S{L}")
            if k == "a":
                for j in range(4):
                    e(f"v_accvgpr_read_b32 v{V_D+j + 4*(t&1)}, a{r+j}")
                r = V_D + 4 * (t & 1)
            e(f"v_dot2_f32_bf16 v{V_A+t}, v{r}, v{V_Q}, 0")
            for j in range(1, 4):
                e(f"v_dot2_f32_bf16 v{V_A+t}, v{r+j}, v{V_Q+j}, v{V_A+t}")
            if k == "v":
                stream_issue(nxt_issue)
                nxt_issue += 1
        g.nop(3)
        A = V_A
        for p in range(8):
            e(f"v_add_f32_dpp v{A+2*p}, v{A+2*p}, v{A+2*p} row_ror:8 row_mask:0xf bank_mask:0x3")
            e(f"v_add_f32_dpp v{A+2*p}, v{A+2*p+1}, v{A+2*p+1} row_ror:8 row_mask:0xf bank_mask:0xc")
        for p in range(4):
            e(f"v_add_f32_dpp v{A+4*p}, v{A+4*p}, v{A+4*p} row_shl:4 row_mask:0xf bank_mask:0x5")
            e(f"v_add_f32_dpp v{A+4*p}, v{A+4*p+2}, v{A+4*p+2} row_shr:4 row_mask:0xf bank_mask:0xa")
        g.nop(1)
        for p in range(4):
            e(f"v_add_f32_dpp v{A+4*p}, v{A+4*p}, v{A+4*p} quad_perm:[1,0,3,2] row_mask:0xf bank_mask:0xf")
        for p in range(2):
            e(f"v_cndmask_b32 v{A+8*p}, v{A+8*p}, v{A+8*p+4}, s[{S_ODD}:{S_ODD+1}]")
        g.nop(1)
        for p in range(2):
            e(f"v_add_f32_dpp v{A+8*p}, v{A+8*p}, v{A+8*p} quad_perm:[2,3,0,1] row_mask:0xf bank_mask:0xf")
        e(f"v_cndmask_b32 v{V_TA}, v{A}, v{A+8}, s[{S_TWO}:{S_TWO+1}]")
        g.bf16r(V_TA, V_TA)
        e(f"v_mul_f32 v{V_TA}, 0x3db504f3, v{V_TA}")
        g.bf16r(V_TA, V_TA)
        e(f"v_max_f32 v{V_M}, v{V_M}, v{V_TA}")
        e(f"ds_write_b32 v{V_PDW}, v{V_TA} offset:{PD + beta*256}")
        if beta == 3:
            wo_srd()
        if 4 <= beta < 12 and o["wo_in"] == "K":
            for k in range(4):
                wo_issue(4 * (beta - 4) + k)
    ts(2)
    LOG2E = "0x3fb8aa3b"
    S = V_A
    for k in range(16):
        e(f"ds_read_b32 v{S+k}, v{V_PDW} offset:{PD + k*256}")
    g.wave_reduce(V_M, "max")
    e(f"v_mov_b32 v{V_TE}, 0")
    e("s_waitcnt lgkmcnt(0)")
    for k in range(16):
        t = V_TA + (k & 1)
        e(f"v_sub_f32 v{t}, v{S+k}, v{V_M}")
        e(f"v_mul_f32 v{t}, {LOG2E}, v{t}")
        e(f"v_exp_f32 v{t}, v{t}")
        g.nop(1)
        e(f"v_add_f32 v{V_TE}, v{V_TE}, v{t}")
    g.wave_reduce(V_TE, "add")
    e(f"v_mov_b32 v{V_TA}, v{V_M}")
    e(f"v_mov_b32 v{V_TB}, v{V_TE}")
    e(f"s_lshl_b32 s72, s{S_W}, 3")
    e(f"v_mov_b32 v{V_TC}, s72")
    e(f"ds_write_b64 v{V_TC}, v[{V_TA}:{V_TB}] offset:{SM}")
    g.lds_arrive(CNT + 4)
    g.lds_wait_ge(CNT + 4, 4, sleep=0)
    X = V_D
    e(f"ds_read_b128 {vr(X)}, v{V_ZERO} offset:{SM}")
    e(f"ds_read_b128 {vr(X+4)}, v{V_ZERO} offset:{SM+16}")
    e("s_waitcnt lgkmcnt(0)")
    e(f"v_max3_f32 v{V_TC}, v{X}, v{X+2}, v{X+4}")
    e(f"v_max_f32 v{V_TC}, v{V_TC}, v{X+6}")
    e(f"v_mov_b32 v{V_TE}, 0")
    for w in range(4):
        e(f"v_sub_f32 v{V_TA}, v{X+2*w}, v{V_TC}")
        e(f"v_mul_f32 v{V_TA}, {LOG2E}, v{V_TA}")
        e(f"v_exp_f32 v{V_TA}, v{V_TA}")
        g.nop(1)
        e(f"v_fmac_f32 v{V_TE}, v{V_TA}, v{X+2*w+1}")
    e(f"v_rcp_f32 v{V_TD}, v{V_TE}")
    g.nop(1)
    e(f"v_fma_f32 v{V_TA}, -v{V_TE}, v{V_TD}, 1.0")
    e(f"v_fmac_f32 v{V_TD}, v{V_TA}, v{V_TD}")
    for k in range(16):
        t = S + k
        e(f"v_sub_f32 v{t}, v{t}, v{V_TC}")
        e(f"v_mul_f32 v{t}, {LOG2E}, v{t}")
        e(f"v_exp_f32 v{t}, v{t}")
        g.nop(1)
        e(f"v_mul_f32 v{t}, v{t}, v{V_TD}")
        e(f"v_cvt_pk_bf16_f32 v{t}, v{t}, v{t}")
        e(f"ds_write_b32 v{V_PDW}, v{t} offset:{PD + k*256}")
    for j in range(4):
        e(f"v_mov_b32 v{V_ACC+j}, 0")
    g.lds_arrive(CNT + 40)
    assert DEPTH == 16 and nxt_issue == 272
    V_PC, V_SAV = V_TD, V_D + 8
    e(f"v_mov_b32 v{V_PC}, v{V_DUPP}")
    e(f"s_mov_b32 s{S_J}, 0")
    e(f"s_mov_b32 s{S_NIN}, 0")
    e(f"s_mov_b32 s{S_TOT}, 16")
    e(f"s_mov_b32 s{S_E1}, 99")
    g.vwait("S256")
    g.lab("L_vloop")
    e(f"s_cmp_eq_u32 s{S_J}, {o['mstone']}")
    e("s_cbranch_scc0 L_v1")
    g.lds_arrive(CNT + 24)
    g.lab("L_v1")
    e(f"s_cmp_eq_u32 s{S_J}, 11")
    e("s_cbranch_scc0 L_v2")
    g.lds_wait_ge(CNT + 28, 1, sleep=2)
    e(f"ds_read_b128 {vr(V_D)}, v{V_ZERO} offset:{PLAN}")
    e("s_waitcnt lgkmcnt(0)")
    e(f"v_readfirstlane_b32 s{S_NIN}, v{V_D}")
    e(f"v_readfirstlane_b32 s72, v{V_D+1}")
    e(f"v_readfirstlane_b32 s{S_POFF}, v{V_D+2}")
    g.nop(1)
    e(f"s_add_u32 s{S_TOT}, s{S_NIN}, 16")
    e(f"s_sub_u32 s{S_TOT}, s{S_TOT}, s72")
    e(f"s_cmp_eq_u32 s{S_NIN}, 0")
    e("s_cbranch_scc1 L_v2")
    e(f"s_add_u32 s{S_E1}, s{S_NIN}, 12")
    e(f"s_mov_b32 s{S_OFF}, s{S_POFF}")
    g.lab("L_v2")
    e(f"s_cmp_eq_u32 s{S_J}, 12")
    e("s_cbranch_scc0 L_v3")
    e(f"s_cmp_eq_u32 s{S_NIN}, 0")
    e("s_cbranch_scc1 L_v3")
    g.lds_wait_ge(CNT + 32, 1, sleep=2)
    g.nop(8)
    for j in range(4):
        e(f"v_mov_b32 v{V_SAV+j}, v{V_ACC+j}")
        e(f"v_mov_b32 v{V_ACC+j}, 0")
    e(f"s_lshl_b32 s72, s{S_W}, 10")
    e(f"s_lshl_b32 s73, s{S_NIN}, 8")
    e("s_sub_u32 s72, s72, s73")
    e(f"s_add_u32 s72, s72, {PD2 + 1024}")
    e(f"v_lshlrev_b32 v{V_PC}, 4, v{V_G}")
    e(f"v_add_u32 v{V_PC}, s72, v{V_PC}")
    g.lab("L_v3")
    e(f"s_cmp_eq_u32 s{S_J}, s{S_E1}")
    e("s_cbranch_scc0 L_v4")
    g.nop(8)
    e(f"s_lshl_b32 s72, s{S_W}, 9")
    e(f"v_add_u32 v{V_TA}, s72, v{V_DW}")
    e(f"ds_write_b128 v{V_TA}, {vr(V_ACC)} offset:{OP2}")
    g.lds_arrive(CNT + 36)
    for j in range(4):
        e(f"v_mov_b32 v{V_ACC+j}, v{V_SAV+j}")
    e(f"v_add_u32 v{V_PC}, {12*256}, v{V_DUPP}")
    g.lab("L_v4")
    e(f"s_add_u32 s72, s{S_J}, 1")
    e(f"s_cmp_eq_u32 s72, s{S_E1}")
    e("s_cbranch_scc0 L_v5")
    e(f"s_add_u32 s{S_OFF}, s{S_OWN}, {12*65536}")
    g.lab("L_v5")
    e(f"s_cmp_eq_u32 s72, s{S_TOT}")
    e("s_cbranch_scc0 L_v6")
    e(f"s_mov_b32 s{S_OFF}, 0x20000000")
    g.lab("L_v6")
    e(f"ds_read_b128 {vr(V_DUP)}, v{V_PC} offset:{PD}")
    for n in range(4):
        cur = V_DUP + 4 * (n & 1)
        nxt = V_DUP + 4 * ((n + 1) & 1)
        e("s_waitcnt lgkmcnt(0)")
        if n < 3:
            e(f"ds_read_b128 {vr(nxt)}, v{V_PC} offset:{PD + (n+1)*64}")
        for d in range(4):
            L = 256 + 4 * n + d
            k, r = dest(L)
            fr = V_FRAG + 4 * (d & 1)
            g.frag(fr, cur + d)
            e("s_waitcnt vmcnt(15)")
            g.nop(1)
            g.mfma(V_ACC, fr, vr(r))
            e(f"buffer_load_dwordx4 {vr(r)}, v{V_KV}, {srd(sV)}, s{S_OFF} offen offset:{d*1024} {SF}")
        e(f"s_add_u32 s{S_OFF}, s{S_OFF}, 16384")
    e(f"v_add_u32 v{V_PC}, 256, v{V_PC}")
    e(f"s_add_u32 s{S_J}, s{S_J}, 1")
    e(f"s_cmp_lt_u32 s{S_J}, s{S_TOT}")
    e("s_cbranch_scc1 L_vloop")
    ts(3)
    g.nop(10)
    e(f"s_lshl_b32 s72, s{S_W}, 9")
    e(f"v_add_u32 v{V_TA}, s72, v{V_DW}")
    e(f"ds_write_b128 v{V_TA}, {vr(V_ACC)} offset:{OP}")

    g.lab("L_tail")
    e("s_waitcnt vmcnt(0) lgkmcnt(0)")
    g.vm = {"C": [], "A": [], "B": []}
    e("s_barrier")
    R = V_D
    for w in range(4):
        e(f"ds_read_b64 {vr(R+2*w,2)}, v{V_L8} offset:{OP + w*512}")
    e(f"ds_read_b64 {vr(R+8,2)}, v{V_ZERO} offset:{CNT+16}")
    e(f"ds_read_b64 {vr(R+10,2)}, v{V_L8} offset:{OPX}")
    e(f"s_lshl_b32 s72, s{S_W}, 9")
    e(f"v_add_u32 v{V_TD}, s72, v{V_L8}")
    lb = g.newlab("L_pf")
    e(f"s_cmp_eq_u32 s{S_W}, 4")
    e(f"s_cbranch_scc0 {lb}")
    e("s_lshl_b32 s72, s2, 3")
    e(f"s_add_u32 s72, s72, {DFL}")
    flag_set("s72")
    g.lab(lb)
    e("s_waitcnt lgkmcnt(0)")
    for j in range(2):
        e(f"v_add_f32 v{R+j}, v{R+j}, v{R+2+j}")
        e(f"v_add_f32 v{R+4+j}, v{R+4+j}, v{R+6+j}")
        e(f"v_add_f32 v{R+j}, v{R+j}, v{R+4+j}")
        e(f"v_add_f32 v{R+j}, v{R+j}, v{R+10+j}")
        e(f"v_cvt_pk_bf16_f32 v{R+j}, v{R+j}, v{R+j}")
    e(f"ds_write_b64 v{V_TD}, {vr(R,2)} offset:{OD}")
    for j in range(4):
        e(f"v_mov_b32 v{V_ACC+j}, 0")
    e("s_waitcnt lgkmcnt(0)")
    e(f"ds_read_b128 {vr(V_DUP)}, v{V_DUPO} offset:{OD}")
    e(f"v_lshrrev_b32 v{V_TA}, 2, v{V_C}")
    e(f"s_lshl_b32 s72, s{S_W}, 2")
    e(f"v_add_u32 v{V_TA}, s72, v{V_TA}")
    e(f"v_lshlrev_b32 v{V_TA}, 13, v{V_TA}")
    e(f"v_and_b32 v{V_TB}, 3, v{V_C}")
    e(f"v_lshl_add_u32 v{V_TA}, v{V_TB}, 6, v{V_TA}")
    e(f"v_and_b32 v{V_TB}, 1, v{V_G}")
    e(f"v_lshl_add_u32 v{V_TA}, v{V_TB}, 5, v{V_TA}")
    e(f"v_lshrrev_b32 v{V_TB}, 1, v{V_G}")
    e(f"v_lshl_add_u32 v{V_TA}, v{V_TB}, 4, v{V_TA}")
    e(f"s_lshl_b32 s{S_TMP}, s{S_B}, 18")
    e(f"s_lshl_b32 s72, s{S_H}, 8")
    e(f"s_add_u32 s{S_TMP}, s{S_TMP}, s72")
    e(f"s_add_u32 s{S_TMP}, s{S_TMP}, {AP}")
    e(f"s_mov_b32 s{S_HI}, 0")
    e(f"s_mov_b32 s{S_HI+1}, -1")
    for i4 in range(8):
        cur = V_DUP + 4 * (i4 & 1)
        nxt = V_DUP + 4 * ((i4 + 1) & 1)
        e("s_waitcnt lgkmcnt(0)")
        if i4 < 7:
            e(f"ds_read_b128 {vr(nxt)}, v{V_DUPO} offset:{OD + (i4+1)*64}")
        for ii in range(4):
            i = 4 * i4 + ii
            fr = V_FRAG + 4 * (i & 1)
            g.frag(fr, cur + ii)
            g.nop(2)
            g.mfma(V_ACC, fr, ar(4 * i))
    g.nop(10)
    e(f"v_cndmask_b32 v{R+6}, v{V_ACC}, v{V_ACC+2}, s[{S_HI}:{S_HI+1}]")
    e(f"v_cndmask_b32 v{R+7}, v{V_ACC+1}, v{V_ACC+3}, s[{S_HI}:{S_HI+1}]")
    e(f"buffer_store_dwordx4 {vr(R+6)}, v{V_TA}, {srd(sWS)}, s{S_TMP} offen sc1")
    e(f"s_cmp_eq_u32 s{S_W}, 4")
    e("s_cbranch_scc0 L_fin")
    e(f"v_and_b32 v{V_TA}, 31, v{V_LANE}")
    e(f"v_lshlrev_b32 v{V_TA}, 3, v{V_TA}")
    e(f"s_lshl_b32 s74, s{S_B}, 8")
    e(f"s_add_u32 s74, s74, {DFL}")
    flag_poll(V_TA, "s74", 12)
    ts(11)
    e("s_lshl_b32 s72, s2, 13")
    e(f"s_add_u32 s72, s72, {AP}")
    O = V_TA
    gather_poll("s72", 1024, V_WIN, V_WIN + 32, O)
    for sw in ("v_permlane32_swap_b32", "v_permlane16_swap_b32"):
        for j in range(2):
            e(f"v_mov_b32 v{V_TC+j}, v{O+j}")
        g.nop(2)
        for j in range(2):
            e(f"{sw} v{O+j}, v{V_TC+j}")
        g.nop(1)
        for j in range(2):
            e(f"v_add_f32 v{O+j}, v{O+j}, v{V_TC+j}")
    for j in range(2):
        g.bf16r(O + j, O + j)
        e(f"v_add_f32 v{O+j}, v{O+j}, v{V_FX+j}")
        g.bf16r(O + j, O + j)
        e(f"v_add_f32 v{O+j}, v{O+j}, v{V_FB+j}")
    e(f"v_cvt_pk_bf16_f32 v{O}, v{O}, v{O+1}")
    e(f"v_lshlrev_b32 v{V_TC}, 2, v{V_C}")
    e("s_lshl_b32 s73, s2, 6")
    e("s_mov_b64 exec, 0xffff")
    e(f"buffer_store_dword v{O}, v{V_TC}, {srd(sO)}, s73 offen")
    e("s_mov_b64 exec, -1")
    g.lab("L_fin")
    ts(15)
    g.lab("L_done")
    e("s_endpgm")

    g.lab("L_aux_pro")
    tsv[0] = 127
    g.vm_restore(vm0)
    e("s_setprio 3")
    e(f"s_or_b32 s72, s2, s{S_WA}")
    e("s_cmp_eq_u32 s72, 0")
    e("s_cbranch_scc0 L_no_nonce")
    e("s_memrealtime s[72:73]")
    e("s_waitcnt lgkmcnt(0)")
    e("s_or_b32 s72, s72, 1")
    e(f"v_mov_b32 v{V_NONL}, s72")
    e(f"v_mov_b32 v{V_NONL+1}, s73")
    e("s_mov_b64 exec, 1")
    e(f"buffer_store_dwordx2 {vr(V_NONL,2)}, v{V_ZERO}, {srd(sDBG)}, 0 offen offset:8 sc1")
    e("s_mov_b64 exec, -1")
    g.nop(2)
    g.lab("L_no_nonce")
    e(f"v_lshl_add_u32 v{V_TE}, v{V_G}, 15, v{V_TB}")
    e(f"s_lshl_b32 s72, s{S_B}, 2")
    e(f"s_add_u32 s72, s72, s{S_WA}")
    e(f"s_lshl_b32 s72, s72, 18")
    e(f"s_lshl_b32 s73, s{S_H}, 8")
    e("s_add_u32 s72, s72, s73")
    e(f"s_add_u32 s{sW}, s10, s72\ns_addc_u32 s{sW+1}, s11, 0")
    e(f"s_sub_u32 s{sW+2}, 0x800000, s72")
    for i in range(8):
        e(f"s_mov_b32 s{S_TMP}, {(16*(i>>2)+(i&3))*8192}")
        g.vissue(f"buffer_load_dwordx4 {ar(4*i)}, v{V_TE}, {srd(sW)}, s{S_TMP} offen {WF}", f"wq{i}")
    g.vissue(f"buffer_load_dwordx2 {vr(V_NONL,2)}, v{V_ZERO}, {srd(sDBG)}, 0 offen offset:8 sc1", "non")
    e("s_lshr_b32 s72, s2, 3")
    e("s_and_b32 s73, s2, 7")
    e("s_mul_i32 s73, s73, 14")
    e("s_add_u32 s74, s73, s72")
    e("s_sub_u32 s75, s74, 14")
    e(f"s_and_b32 s{S_T1}, s74, 3")
    e(f"s_lshr_b32 s{S_T2}, s74, 2")
    e("s_cmp_lt_u32 s72, 14")
    e(f"s_cselect_b32 s{S_ROLE}, 1, 0")
    e("s_cbranch_scc1 L_role_done")
    e("s_cmp_lt_u32 s72, 28")
    e(f"s_cselect_b32 s{S_ROLE}, 2, 0")
    e(f"s_lshr_b32 s{S_T1}, s75, 3")
    e(f"s_and_b32 s{S_T2}, s75, 7")
    g.lab("L_role_done")
    common_consts()
    e(f"v_and_b32 v{V_TC}, 3, v{V_TC}")
    e(f"v_lshlrev_b32 v{V_TA}, 4, v{V_G}")
    e(f"v_lshrrev_b32 v{V_TB}, 3, v{V_C}")
    e(f"v_lshl_add_u32 v{V_JOB}, v{V_TB}, 12, v{V_TA}")
    e(f"v_lshrrev_b32 v{V_TA}, 1, v{V_G}")
    e(f"v_lshl_add_u32 v{V_REDW}, v{V_TA}, 9, v{V_DW}")
    e(f"v_lshl_add_u32 v{V_REDW}, v{V_TC}, 12, v{V_REDW}")
    e(f"v_lshl_add_u32 v{V_TA16}, v{V_TC}, 10, v{V_L16}")
    ln_own_row(aux=True)

    def tile_mfma(vaddr, nblk, abase, tagp, D):
        for j in range(16):
            e(f"v_mov_b32 v{D+j}, 0")
        seq = [(i4, pr) for i4 in range(nblk) for pr in range(4)]
        e(f"ds_read_b128 {vr(V_DUP)}, v{vaddr} offset:0")
        for n, (i4, pr) in enumerate(seq):
            cur = V_DUP + 4 * (n & 1)
            nxt = V_DUP + 4 * ((n + 1) & 1)
            e("s_waitcnt lgkmcnt(0)")
            if n + 1 < len(seq):
                i4n, prn = seq[n + 1]
                e(f"ds_read_b128 {vr(nxt)}, v{vaddr} offset:{prn*8192 + i4n*64}")
            for ii in range(4):
                i = 4 * i4 + ii
                fr = V_FRAG + 4 * (ii & 1)
                g.frag(fr, cur + ii)
                g.vwait(f"{tagp}{i}")
                g.nop(2)
                g.mfma(D + 4 * pr, fr, ar(abase + 4 * i))
        g.nop(10)
        for pr in range(4):
            e(f"ds_write_b128 v{V_REDW}, {vr(D+4*pr)} offset:{RED + pr*1024}")
        g.aux_sync()
        for w in range(4):
            e(f"ds_read_b128 {vr(D+4*w)}, v{V_TA16} offset:{RED + w*4096}")
        e("s_waitcnt lgkmcnt(0)")
        for j in range(4):
            e(f"v_add_f32 v{D+j}, v{D+j}, v{D+4+j}")
            e(f"v_add_f32 v{D+8+j}, v{D+8+j}, v{D+12+j}")
        for j in range(4):
            e(f"v_add_f32 v{D+j}, v{D+j}, v{D+8+j}")

    ts(4)
    QD = V_WIN
    e(f"s_lshl_b32 s72, s{S_B}, 9")
    e(f"s_lshl_b32 s73, s{S_WA}, 7")
    e("s_add_u32 s72, s72, s73")
    e(f"s_add_u32 s72, s72, {AT}")
    e(f"v_add_u32 v{V_TE}, s72, v{V_JOB}")
    tile_mfma(V_TE, 2, 0, "wq", QD)
    ts(5)
    g.vwait("non2")
    e(f"v_or_b32 v{V_NONL}, v{V_NONL}, v{V_NONL+2}")
    e(f"v_or_b32 v{V_NONL+1}, v{V_NONL+1}, v{V_NONL+3}")
    g.nop(1)
    ok = g.newlab("L_ok")
    sp = g.newlab("L_spin")
    e("s_mov_b32 s73, 0")
    g.lab(sp)
    e(f"v_readfirstlane_b32 s{S_NON}, v{V_NONL}")
    e(f"v_readfirstlane_b32 s{S_NON+1}, v{V_NONL+1}")
    g.nop(1)
    e(f"s_cmp_lg_u32 s{S_NON}, 0")
    e(f"s_cbranch_scc1 {ok}")
    e("s_add_u32 s73, s73, 1")
    e("s_cmp_ge_u32 s73, 0x40000")
    e(f"s_cbranch_scc1 {ok}")
    e(f"buffer_load_dwordx2 {vr(V_NONL,2)}, v{V_ZERO}, {srd(sDBG)}, 0 offen offset:8 sc1")
    e("s_waitcnt vmcnt(0)")
    e(f"s_branch {sp}")
    g.lab(ok)
    e(f"s_lshl_b32 s72, s{S_H}, 3")
    e(f"s_add_u32 s72, s72, s{S_B}")
    e(f"s_lshl_b32 s{S_TMP}, s72, 13")
    e(f"s_add_u32 s{S_TMP}, s{S_TMP}, {QPW}")
    e(f"v_mov_b32 v{QD+4}, v{QD+2}")
    e(f"v_mov_b32 v{QD+5}, v{QD+3}")
    e(f"v_mov_b32 v{QD+2}, s{S_NON}")
    e(f"v_mov_b32 v{QD+3}, s{S_NON+1}")
    e(f"v_mov_b32 v{QD+6}, s{S_NON}")
    e(f"v_mov_b32 v{QD+7}, s{S_NON+1}")
    e(f"v_lshlrev_b32 v{V_TA}, 1, v{V_TA16}")
    e(f"s_add_u32 s72, s{S_TMP}, {QPL-QPW}")
    if o["fast"]:
        g.vissue(f"buffer_store_dwordx4 {vr(QD)}, v{V_TA}, {srd(sWS)}, s72 offen", "qsl0")
        g.vissue(f"buffer_store_dwordx4 {vr(QD+4)}, v{V_TA}, {srd(sWS)}, s72 offen offset:16", "qsl1")
    g.vissue(f"buffer_store_dwordx4 {vr(QD)}, v{V_TA}, {srd(sWS)}, s{S_TMP} offen sc1", "qst0")
    g.vissue(f"buffer_store_dwordx4 {vr(QD+4)}, v{V_TA}, {srd(sWS)}, s{S_TMP} offen offset:16 sc1", "qst1")
    ts(6)
    e(f"s_cmp_eq_u32 s{S_WA}, 0")
    e("s_cbranch_scc0 L_no_gather")
    e(f"ds_write_b64 v{V_ZERO}, {vr(QD+2,2)} offset:{CNT+16}")
    e(f"s_lshl_b32 s72, s{S_H}, 16")
    e(f"s_lshl_b32 s73, s{S_B}, 10")
    e("s_add_u32 s72, s72, s73")
    e(f"s_add_u32 s72, s72, {QPL if o['fast'] else QPW}")
    gather_poll("s72", 8192, V_WIN, V_WIN + 32, V_TA, boff=(QPW - QPL) if o['fast'] else 0)
    e(f"v_cvt_pk_bf16_f32 v{V_TA}, v{V_TA}, v{V_TA+1}")
    e(f"v_lshlrev_b32 v{V_TB}, 2, v{V_LANE}")
    e(f"ds_write_b32 v{V_TB}, v{V_TA} offset:{QB}")
    g.lds_arrive(CNT + 8)
    ts(7)
    e("s_waitcnt vmcnt(0)")
    g.lab("L_no_gather")
    e(f"s_setprio {o['auxprio']}")
    ts(1)

    JT = 64
    D = V_D

    def job_store_signal(role, off):
        rowb = 3584 * 4 if role == "A" else 1024 * 4
        e(f"v_and_b32 v{V_TA}, 255, v0")
        e(f"v_lshrrev_b32 v{V_TA}, 5, v{V_TA}")
        e(f"v_mul_u32_u24 v{V_TA}, {rowb}, v{V_TA}")
        e(f"v_and_b32 v{V_TB}, 31, v0")
        e(f"v_lshl_add_u32 v{V_TA}, v{V_TB}, 4, v{V_TA}")
        e(f"s_mul_i32 s{S_TMP}, s{S_T1}, {8*rowb}")
        e(f"s_lshl_b32 s73, s{S_T2}, 9")
        e(f"s_add_u32 s{S_TMP}, s{S_TMP}, s73")
        e(f"s_add_u32 s{S_TMP}, s{S_TMP}, {HP if role == 'A' else MP}")
        g.vissue(f"buffer_store_dwordx4 {vr(D)}, v{V_TA}, {srd(sWS)}, s{S_TMP} offen sc1", "jst")
        g.vwait_all()
        g.aux_sync()
        lb = g.newlab("L_sig")
        e(f"s_cmp_eq_u32 s{S_WA}, 0")
        e(f"s_cbranch_scc0 {lb}")
        if role == "A":
            e(f"s_lshl_b32 s72, s{S_T2}, 5")
            e(f"s_lshl_b32 s73, s{S_T1}, 3")
            e("s_add_u32 s72, s72, s73")
            e(f"s_add_u32 s72, s72, {HFL}")
        else:
            e(f"s_lshr_b32 s72, s{S_T2}, 1")
            e("s_lshl_b32 s72, s72, 8")
            e(f"s_lshl_b32 s73, s{S_T1}, 4")
            e("s_add_u32 s72, s72, s73")
            e(f"s_and_b32 s73, s{S_T2}, 1")
            e("s_lshl_b32 s73, s73, 3")
            e("s_add_u32 s72, s72, s73")
            e(f"s_add_u32 s72, s72, {MFL}")
        flag_set("s72")
        g.lab(lb)

    e(f"s_cmp_eq_u32 s{S_ROLE}, 1")
    e("s_cbranch_scc0 L_not_a")
    g.role = "A"
    e(f"v_lshlrev_b32 v{V_TA}, 4, v{V_C}")
    e(f"v_mul_u32_u24 v{V_TE}, 28672, v{V_G}")
    e(f"v_add_u32 v{V_TE}, v{V_TE}, v{V_TA}")
    e(f"s_lshl_b32 s72, s{S_T1}, 2\ns_add_u32 s72, s72, s{S_WA}\ns_mul_i32 s72, s72, {64*7168}")
    e(f"s_lshl_b32 s73, s{S_T2}, 8\ns_add_u32 s72, s72, s73")
    e(f"s_add_u32 s{sW}, s16, s72\ns_addc_u32 s{sW+1}, s17, 0\ns_sub_u32 s{sW+2}, {1024*7168}, s72")
    for i in range(16):
        e(f"s_mov_b32 s{S_TMP}, {(16*(i>>2)+(i&3))*7168}")
        g.vissue(f"buffer_load_dwordx4 {ar(JT+4*i)}, v{V_TE}, {srd(sW)}, s{S_TMP} offen {WF}", f"jt{i}")
    e(f"s_lshl_b32 s72, s{S_WA}, 13")
    e(f"s_add_u32 s72, s72, {AT}")
    e(f"v_add_u32 v{V_TD}, s72, v{V_L32}")
    e(f"v_add_u32 v{V_TE}, {AT2-AT}, v{V_TD}")
    for rr in range(2):
        for k in range(4):
            e(f"ds_read_b128 {vr(LE+4*k)}, v{V_TD} offset:{rr*4096 + (k>>1)*2048 + (k&1)*16}")
        e("s_waitcnt lgkmcnt(0)")
        for j in range(16):
            e(f"v_and_b32 v{LE+j}, s{S_HIM}, v{LE+j}")
        g.ln_core(LP, LE, LT)
        g.write_dup_row(LP, LE, V_TE, rr * 4096)
    e(f"s_lshl_b32 s72, s{S_T1}, 10")
    e(f"s_lshl_b32 s73, s{S_WA}, 8")
    e("s_add_u32 s72, s72, s73")
    e(f"s_add_u32 s72, s72, {AT2}")
    e(f"v_add_u32 v{V_TE}, s72, v{V_JOB}")
    g.aux_sync()
    tile_mfma(V_TE, 4, JT, "jt", D)
    job_store_signal("A", 0)
    e("s_branch L_job_done")
    g.role = "C"
    g.lab("L_not_a")
    e(f"s_cmp_eq_u32 s{S_ROLE}, 2")
    e("s_cbranch_scc0 L_job_n")
    g.role = "B"
    e(f"s_lshl_b32 s72, s{S_T1}, 2\ns_add_u32 s72, s72, s{S_WA}\ns_lshl_b32 s72, s72, 17")
    e(f"s_lshl_b32 s73, s{S_T2}, 8\ns_add_u32 s72, s72, s73")
    e(f"s_add_u32 s{sW}, s20, s72\ns_addc_u32 s{sW+1}, s21, 0\ns_sub_u32 s{sW+2}, {3584*2048}, s72")
    for i in range(16):
        e(f"s_mov_b32 s{S_TMP}, {(16*(i>>2)+(i&3))*2048}")
        g.vissue(f"buffer_load_dwordx4 {ar(JT+4*i)}, v{V_W2K}, {srd(sW)}, s{S_TMP} offen {WF}", f"jt{i}")
    e(f"s_mov_b32 s{sB}, s18\ns_mov_b32 s{sB+1}, s19\ns_mov_b32 s{sB+2}, 7168\ns_mov_b32 s{sB+3}, 0x00020000")
    e(f"s_lshl_b32 s{S_TMP}, s{S_T1}, 9")
    B1 = LP
    g.vissue(f"buffer_load_dwordx2 {vr(B1,2)}, v{V_L8}, {srd(sB)}, s{S_TMP} offen", "b1")
    lb = g.newlab("L_bw")
    e(f"s_cmp_eq_u32 s{S_WA}, 0")
    e(f"s_cbranch_scc0 {lb}")
    e(f"v_and_b32 v{V_TA}, 7, v{V_LANE}")
    e(f"v_lshlrev_b32 v{V_TA}, 3, v{V_TA}")
    e(f"s_lshl_b32 s74, s{S_T1}, 6")
    e(f"s_add_u32 s74, s74, {HFL}")
    flag_poll(V_TA, "s74", 16)
    g.lab(lb)
    g.aux_sync()
    ts(8)
    HB = V_WIN
    e(f"s_mul_i32 s72, s{S_WA}, {2*3584*4}")
    e(f"s_lshl_b32 s73, s{S_T1}, 10")
    e(f"s_add_u32 s72, s72, s73")
    for bb in range(2):
        for kq in range(4):
            e(f"s_add_u32 s{S_TMP}, s72, {HP + (kq*8+bb)*3584*4}")
            g.vissue(f"buffer_load_dwordx4 {vr(HB+(bb*4+kq)*4)}, v{V_L16}, {srd(sWS)}, s{S_TMP} offen sc1", f"hp{bb*4+kq}")
    T = LE
    g.vwait("b1")
    e(f"v_lshlrev_b32 v{T}, 16, v{B1}")
    e(f"v_and_b32 v{T+1}, s{S_HIM}, v{B1}")
    e(f"v_lshlrev_b32 v{T+2}, 16, v{B1+1}")
    e(f"v_and_b32 v{T+3}, s{S_HIM}, v{B1+1}")
    e(f"s_lshl_b32 s72, s{S_WA}, 13")
    e(f"s_add_u32 s72, s72, {AT2}")
    e(f"v_add_u32 v{V_TD}, s72, v{V_L16}")
    e(f"v_mov_b32 v{V_TA}, 0x3d372713")
    g.vwait("hp7")
    for bb in range(2):
        hb = HB + bb * 16
        for j in range(4):
            x = T + 4 + 4 * bb + j
            t = T + 12 + j
            e(f"v_add_f32 v{x}, v{hb+j}, v{hb+4+j}")
            e(f"v_add_f32 v{x}, v{x}, v{hb+8+j}")
            e(f"v_add_f32 v{x}, v{x}, v{hb+12+j}")
            g.bf16r(x, x)
            e(f"v_add_f32 v{x}, v{x}, v{T+j}")
            g.bf16r(x, x)
            e(f"v_mul_f32 v{t}, v{x}, v{x}")
            e(f"v_mul_f32 v{t}, v{t}, v{x}")
            e(f"v_fma_f32 v{t}, v{t}, v{V_TA}, v{x}")
            e(f"v_mul_f32 v{t}, 0xc0135761, v{t}")
            e(f"v_exp_f32 v{t}, v{t}")
            g.nop(1)
            e(f"v_add_f32 v{t}, 1.0, v{t}")
            e(f"v_rcp_f32 v{t}, v{t}")
            g.nop(1)
            e(f"v_mul_f32 v{x}, v{x}, v{t}")
            e(f"v_cvt_pk_bf16_f32 v{x}, v{x}, v{x}")
        e(f"ds_write_b128 v{V_TD}, {vr(T+4+4*bb)} offset:{bb*4096}")
    e(f"s_lshl_b32 s73, s{S_WA}, 8")
    e(f"s_add_u32 s72, s73, {AT2}")
    e(f"v_add_u32 v{V_TE}, s72, v{V_JOB}")
    g.aux_sync()
    tile_mfma(V_TE, 4, JT, "jt", D)
    job_store_signal("B", 4)
    e("s_branch L_job_done")
    g.role = "C"
    g.lab("L_job_n")
    e(f"s_cmp_eq_u32 s{S_WA}, 0")
    e("s_cbranch_scc0 L_job_done")
    e("s_lshr_b32 s72, s2, 3")
    e(f"s_sub_u32 s{S_T2}, s72, 28")
    e(f"s_and_b32 s{S_T1}, s2, 7")
    e(f"s_mov_b32 s{sB}, s22\ns_mov_b32 s{sB+1}, s23\ns_mov_b32 s{sB+2}, 2048\ns_mov_b32 s{sB+3}, 0x00020000")
    e(f"s_lshl_b32 s72, s{S_T2}, 9")
    B2R = LP
    e(f"buffer_load_dwordx2 {vr(B2R,2)}, v{V_L8}, {srd(sB)}, s72 offen")
    e(f"v_min_u32 v{V_TA}, 27, v{V_LANE}")
    e(f"v_lshlrev_b32 v{V_TA}, 3, v{V_TA}")
    e(f"s_lshl_b32 s74, s{S_T2}, 8")
    e(f"s_add_u32 s74, s74, {MFL}")
    flag_poll(V_TA, "s74", 16)
    ts(9)
    e(f"s_lshl_b32 s72, s{S_T1}, 12")
    e(f"s_lshl_b32 s73, s{S_T2}, 10")
    e("s_add_u32 s72, s72, s73")
    M = V_WIN
    for ks in range(14):
        e(f"s_add_u32 s{S_TMP}, s72, {MP + ks*8*4096}")
        e(f"buffer_load_dwordx4 {vr(M+4*ks)}, v{V_L16}, {srd(sWS)}, s{S_TMP} offen sc1")
    e(f"v_lshlrev_b32 v{T}, 16, v{B2R}")
    e(f"v_and_b32 v{T+1}, s{S_HIM}, v{B2R}")
    e(f"v_lshlrev_b32 v{T+2}, 16, v{B2R+1}")
    e(f"v_and_b32 v{T+3}, s{S_HIM}, v{B2R+1}")
    e("s_waitcnt vmcnt(0)")
    for ks in range(1, 14):
        for j in range(4):
            e(f"v_add_f32 v{M+j}, v{M+j}, v{M+4*ks+j}")
    for j in range(4):
        g.bf16r(M + j, M + j)
        e(f"v_add_f32 v{M+j}, v{M+j}, v{T+j}")
        g.bf16r(M + j, M + j)
    e(f"s_add_u32 s{S_TMP}, s72, {BFIN}")
    e(f"buffer_store_dwordx4 {vr(M)}, v{V_L16}, {srd(sWS)}, s{S_TMP} offen sc1")
    e(f"s_lshl_b32 s72, s{S_T1}, 2")
    e(f"s_add_u32 s72, s72, s{S_T2}")
    e("s_lshl_b32 s72, s72, 6")
    e(f"s_add_u32 s72, s72, {BFL}")
    e("s_waitcnt vmcnt(0)")
    flag_set("s72")
    g.lab("L_job_done")
    ts(2)
    wo_srd()
    for i in range(32):
        wo_issue(i)
    if o["park"]:
        e("s_setprio 0")
    e(f"s_cmp_eq_u32 s{S_WA}, 1")
    e("s_cbranch_scc1 L_bal")
    e(f"s_cmp_eq_u32 s{S_WA}, 0")
    e("s_cbranch_scc0 L_tail")
    e(f"v_lshlrev_b32 v{V_TA}, 2, v{V_C}")
    e("s_lshl_b32 s73, s2, 6")
    e(f"buffer_load_dword v{V_FB}, v{V_TA}, {srd(sX)}, s73 offen")
    e(f"s_lshl_b32 s74, s{S_B}, 2")
    e(f"s_lshr_b32 s72, s{S_H}, 3")
    e("s_add_u32 s74, s74, s72")
    e("s_lshl_b32 s74, s74, 6")
    e(f"s_add_u32 s74, s74, {BFL}")
    e("s_waitcnt vmcnt(0)")
    ts(10)
    e(f"v_lshlrev_b32 v{V_FX}, 16, v{V_FB}")
    e(f"v_and_b32 v{V_FX+1}, s{S_HIM}, v{V_FB}")
    flag_poll(V_ZERO, "s74", 64)
    e(f"v_lshlrev_b32 v{V_TA}, 3, v{V_C}")
    e("s_lshl_b32 s72, s2, 7")
    e(f"s_add_u32 s72, s72, {BFIN}")
    e(f"buffer_load_dwordx2 {vr(V_FB,2)}, v{V_TA}, {srd(sWS)}, s72 offen sc1")
    ts(3)
    e("s_branch L_tail")

    g.lab("L_bal")
    W = V_WIN
    g.lds_wait_ge(CNT + 40, 4, sleep=16)
    for w in range(4):
        e(f"ds_read_b128 {vr(W+4*w)}, v{V_L16} offset:{PD + w*4096 + 3072}")
    e("s_lshl_b32 s72, s2, 12")
    e(f"s_add_u32 s72, s72, {PXW}")
    e("s_waitcnt lgkmcnt(0)")
    for w in range(4):
        e(f"buffer_store_dwordx4 {vr(W+4*w)}, v{V_L16}, {srd(sWS)}, s72 offen offset:{w*1024} sc1")
    g.lds_wait_ge(CNT + 24, 4, sleep=16)
    e("s_memrealtime s[72:73]")
    e("s_waitcnt vmcnt(0) lgkmcnt(0)")
    e(f"s_sub_u32 s72, s72, s{S_NON}")
    e(f"v_mov_b32 v{W}, s72")
    e(f"v_mov_b32 v{W+1}, 0")
    e(f"v_mov_b32 v{W+2}, s{S_NON}")
    e(f"v_mov_b32 v{W+3}, s{S_NON+1}")
    e("s_lshl_b32 s73, s2, 4")
    e(f"s_add_u32 s73, s73, {TKG}")
    e("s_mov_b64 exec, 1")
    e(f"buffer_store_dwordx4 {vr(W)}, v{V_ZERO}, {srd(sWS)}, s73 offen sc1")
    e("s_mov_b64 exec, -1")
    e(f"v_and_b32 v{V_TB}, 7, v{V_LANE}")
    e(f"v_lshlrev_b32 v{V_TA}, 4, v{V_TB}")
    e("s_and_b32 s74, s73, 0xffffff80")
    e("s_mov_b32 s75, 0")
    g.lab("L_bal_poll")
    e(f"buffer_load_dwordx4 {vr(W+4)}, v{V_TA}, {srd(sWS)}, s74 offen sc1")
    e("s_waitcnt vmcnt(0)")
    e(f"v_cmp_ne_u64 vcc, s[{S_NON}:{S_NON+1}], {vr(W+6,2)}")
    e("s_add_u32 s75, s75, 1")
    e("s_cmp_ge_u32 s75, 0x40000")
    e("s_cbranch_scc1 L_bal_got")
    g.nop(2)
    e("s_cbranch_vccz L_bal_got")
    e("s_sleep 16")
    e("s_branch L_bal_poll")
    g.lab("L_bal_got")
    e(f"v_lshl_add_u32 v{W}, v{W+4}, 3, v{V_TB}")
    e(f"v_mov_b32 v{W+1}, 0")
    g.nop(1)
    for k in range(8):
        e(f"v_readlane_b32 s72, v{W}, {k}")
        g.nop(2)
        e(f"v_cmp_lt_u32 vcc, s72, v{W}")
        g.nop(2)
        e(f"v_addc_co_u32 v{W+1}, vcc, 0, v{W+1}, vcc")
    e("s_and_b32 s73, s2, 7")
    g.nop(4)
    e(f"v_readlane_b32 s74, v{W+1}, s73")
    e(f"v_readlane_b32 s75, v{W+4}, s73")
    g.nop(1)
    e("s_sub_u32 s72, 7, s74")
    e(f"v_cmp_eq_u32 vcc, s72, v{W+1}")
    g.nop(4)
    e("s_ff1_i32_b64 s73, vcc")
    g.nop(4)
    e(f"v_readlane_b32 s72, v{W+4}, s73")
    g.nop(1)
    e("s_sub_u32 s72, s72, s75")
    e("s_abs_i32 s72, s72")
    CH = o["chunk_ticks"]
    e(f"s_mov_b32 s{S_T1}, 0")
    if o["bal"]:
        for k in range(1, 5):
            e(f"s_cmp_ge_u32 s72, {int(CH*(k-0.4))}")
            e(f"s_addc_u32 s{S_T1}, s{S_T1}, 0")
    e("s_and_b32 s72, s2, 0xf8")
    e(f"s_or_b32 s{S_T2}, s72, s73")
    e("s_cmp_lt_u32 s74, 4")
    e(f"s_cselect_b32 s72, s{S_T1}, 0")
    e(f"s_cselect_b32 s73, 0, s{S_T1}")
    e(f"s_sub_u32 s74, 16, s72")
    e("s_lshl_b32 s74, s74, 16")
    e(f"s_lshl_b32 s75, s{S_T2}, 20")
    e("s_add_u32 s74, s74, s75")
    e(f"v_mov_b32 v{W}, s72")
    e(f"v_mov_b32 v{W+1}, s73")
    e(f"v_mov_b32 v{W+2}, s74")
    e(f"v_mov_b32 v{W+3}, 0")
    e(f"ds_write_b128 v{V_ZERO}, {vr(W)} offset:{PLAN}")
    e(f"s_mov_b32 s{S_NIN}, s72")
    e(f"s_mov_b32 s{S_TOT}, s73")
    g.lds_arrive(CNT + 28)
    ts(12)
    e(f"v_mov_b32 v{V_TA}, 0")
    e(f"v_mov_b32 v{V_TB}, 0")
    e(f"s_cmp_eq_u32 s{S_NIN}, 0")
    e("s_cbranch_scc1 L_bal_noin")
    e(f"s_lshl_b32 s73, s{S_T2}, 12")
    e(f"s_add_u32 s73, s73, {PXW}")
    for w in range(4):
        e(f"buffer_load_dwordx4 {vr(W+4*w)}, v{V_L16}, {srd(sWS)}, s73 offen offset:{w*1024} sc1")
    e("s_waitcnt vmcnt(0)")
    for w in range(4):
        e(f"ds_write_b128 v{V_L16}, {vr(W+4*w)} offset:{PD2 + w*1024}")
    g.lds_arrive(CNT + 32)
    g.lds_wait_ge(CNT + 36, 4, sleep=8)
    for w in range(4):
        e(f"ds_read_b64 {vr(W+4+2*w,2)}, v{V_L8} offset:{OP2 + w*512}")
    e(f"v_mov_b32 v{W+2}, s{S_NON}")
    e(f"v_mov_b32 v{W+3}, s{S_NON+1}")
    e(f"s_lshl_b32 s73, s{S_T2}, 10")
    e(f"s_add_u32 s73, s73, {OXW}")
    e("s_waitcnt lgkmcnt(0)")
    for j in range(2):
        e(f"v_add_f32 v{W+j}, v{W+4+j}, v{W+6+j}")
        e(f"v_add_f32 v{W+8+j}, v{W+8+j}, v{W+10+j}")
        e(f"v_add_f32 v{W+j}, v{W+j}, v{W+8+j}")
    e(f"buffer_store_dwordx4 {vr(W)}, v{V_L16}, {srd(sWS)}, s73 offen sc1")
    g.lab("L_bal_noin")
    e(f"s_cmp_eq_u32 s{S_TOT}, 0")
    e("s_cbranch_scc1 L_bal_fin")
    e("s_lshl_b32 s74, s2, 10")
    e(f"s_add_u32 s74, s74, {OXW}")
    e("s_mov_b32 s75, 0")
    g.lab("L_bal_poll2")
    e("s_sleep 16")
    e(f"buffer_load_dwordx4 {vr(W)}, v{V_L16}, {srd(sWS)}, s74 offen sc1")
    e("s_waitcnt vmcnt(0)")
    e(f"v_cmp_ne_u64 vcc, s[{S_NON}:{S_NON+1}], {vr(W+2,2)}")
    e("s_add_u32 s75, s75, 1")
    e("s_cmp_ge_u32 s75, 0x40000")
    e("s_cbranch_scc1 L_bal_got2")
    g.nop(2)
    e("s_cbranch_vccnz L_bal_poll2")
    g.lab("L_bal_got2")
    e(f"v_mov_b32 v{V_TA}, v{W}")
    e(f"v_mov_b32 v{V_TB}, v{W+1}")
    g.lab("L_bal_fin")
    e(f"ds_write_b64 v{V_L8}, v[{V_TA}:{V_TB}] offset:{OPX}")
    ts(13)
    e("s_branch L_tail")
    return g


HEADER = open("cdna_kernels/" + NAME + ".s.ref").read().split("; Override launch geometry")[0]
BLOCK = 512


def full_asm(opt=None):
    g = build(opt)
    s = HEADER
    s += "; generated by gen/gen4.py\n"
    s += f"; @launch grid=(256,1,1) block=({BLOCK},1,1) lds={LDS_BYTES}\n"
    s += '.amdgcn_target "amdgcn-amd-amdhsa--gfx950"\n.text\n'
    s += f".globl {KNAME}\n.p2align 8\n.type {KNAME},@function\n{KNAME}:\n"
    s += "\n".join(g.L) + "\n"
    s += f""".section .rodata,"a"
.p2align 6
.amdhsa_kernel {KNAME}
  .amdhsa_next_free_vgpr 256
  .amdhsa_next_free_sgpr 102
  .amdhsa_accum_offset 128
  .amdhsa_group_segment_fixed_size 0
  .amdhsa_kernarg_size 104
  .amdhsa_user_sgpr_count 2
  .amdhsa_user_sgpr_kernarg_segment_ptr 1
  .amdhsa_system_sgpr_workgroup_id_x 1
.end_amdhsa_kernel
"""
    return s


if __name__ == "__main__":
    out = "cdna_kernels/" + NAME + ".s"
    open(out, "w").write(full_asm())
    print("wrote", out, os.path.getsize(out))
```

```python
import sys, json
sys.path.insert(0,'gen')
import gen4 as gen
from common import *
def mk(name, opt):
    s = gen.full_asm(opt)
    s += meta([(gen.KNAME, 102, 256, gen.BLOCK)])
    build(s, name)
    return f"{name},{gen.KNAME},256,{gen.BLOCK},{gen.LDS_BYTES}"
if __name__=='__main__':
    variants = json.loads(sys.argv[1])
    specs=[mk(n+'.co', o) for n,o in variants.items()]
    open('specs.txt','w').write(' '.join(specs))
    print(json.dumps(["bench/bench","bench/specs.txt"]+["bench/"+s.split(',')[0] for s in specs]))
    print(json.dumps(["bench/"+s.split(',')[0]+".ts" for s in specs]))
```

```python
import sys, os

NAME = "parallel_sum__mha_block_cached__mixer_channel_mlp__decode"
KNAME = NAME + "_kernel"

OPT = dict(
    stream_flag="nt",
    w_flag="nt",
    ws_flag="nt",
    ts=False,
    apf=32,
    depth=16,
    auxprio=3,
    late=True,
    contig=True,
    wosync=True,
    qflag1=True,
    abl='',
    jsleep=64,
    spread=True,
    din=8,
)

PD = 0
OP = 16384
OD = 18432
FB = 22528
FX = 26624
QB = 30720
SM = 30976
CNT = 31040
RED = 32768
AT = 49152
AT2 = 81920
LDS_BYTES = 114688

HP = 0
MP = 0x80000
AP = 0x100000
QPW = 0x200000
QFL = 0x300000
HFL = QFL + 0x2000
MFL = QFL + 0x3000
BFL = QFL + 0x4000
BFIN = QFL + 0x8000
WS_BYTES = 0x380000
TS_OFF = 0x380000

sK, sV, sW, sX, sWS, sDBG, sB, sO = 32, 36, 40, 44, 48, 52, 56, 60
S_W, S_B, S_H, S_ROLE, S_T1, S_T2, S_OFF, S_TMP = 64, 65, 66, 67, 68, 69, 70, 71
S_NON = 76
S_WA = 78
S_XT = 79
S_ODD, S_TWO = 80, 82
S_RL = 86
S_SELLO, S_SELHI, S_HIM = 90, 91, 92
S_TS = 94


def srd(n):
    return f"s[{n}:{n+3}]"


def vr(a, n=4):
    return f"v[{a}:{a+n-1}]"


def ar(a, n=4):
    return f"a[{a}:{a+n-1}]"


V_LANE, V_G, V_C, V_L16, V_L32, V_L8, V_ZERO = 1, 2, 3, 4, 5, 6, 7
V_MASK = 8
V_DW, V_W2K = 12, 13
V_TA, V_TB, V_TC, V_TD, V_TE, V_TF = 14, 15, 16, 17, 18, 19
V_DUPO = 20
V_X1, V_X2, V_X3 = 21, 22, 23
LP, LE, LT = 24, 32, 48
V_ACC = 28
V_Q = 24
V_DUP = 32
V_FRAG = 40
V_A = 32
V_D = 48
V_WIN = 64
DEPTH = 16
V_KV, V_DUPP, V_PDW = V_X1, V_X2, V_X3
V_M = 63
V_JOB, V_REDW, V_TA16 = V_X1, V_X2, V_X3
V_NON, V_FLG = 120, 122


class G:
    def __init__(self):
        self.L = []
        self.vm = {"C": [], "A": [], "B": []}
        self.role = "C"
        self.nlab = 0

    def e(self, s):
        for ln in s.split("\n"):
            self.L.append("  " + ln.strip())

    def lab(self, l):
        self.L.append(l + ":")

    def newlab(self, p="L"):
        self.nlab += 1
        return f"{p}_{self.nlab}"

    def nop(self, n):
        while n > 0:
            k = min(n, 16)
            self.e(f"s_nop {k-1}")
            n -= k

    def _roles(self):
        return list(self.vm.keys()) if self.role == "C" else [self.role]

    def vissue(self, instr, tag):
        worst = max(len(self.vm[r]) for r in self._roles())
        if worst >= 63:
            self._wait_n(61)
        self.e(instr)
        for r in self._roles():
            self.vm[r].append(tag)

    def _wait_n(self, n):
        self.e(f"s_waitcnt vmcnt({n})")
        for r in self._roles():
            f = self.vm[r]
            self.vm[r] = [] if n == 0 else f[-n:]

    def vwait(self, tag):
        f = self.vm[self.role]
        if tag not in f:
            return
        self._wait_n(len(f) - 1 - f.index(tag))

    def vwait_all(self):
        self._wait_n(0)

    def vm_save(self):
        return {k: list(v) for k, v in self.vm.items()}

    def vm_restore(self, s):
        self.vm = {k: list(v) for k, v in s.items()}

    def wave_reduce(self, T, op):
        for r in (8, 4, 2, 1):
            self.nop(2)
            self.e(f"v_{op}_f32_dpp v{T}, v{T}, v{T} row_ror:{r} row_mask:0xf bank_mask:0xf")
        self.nop(1)
        for i in range(4):
            self.e(f"v_readlane_b32 s{S_RL+i}, v{T}, {16*i}")
        self.nop(2)
        self.e(f"v_mov_b32 v{T}, s{S_RL}")
        for i in range(1, 4):
            self.e(f"v_{op}_f32 v{T}, s{S_RL+i}, v{T}")

    def bf16r(self, dst, src):
        self.e(f"v_cvt_pk_bf16_f32 v{dst}, v{src}, v{src}")
        self.e(f"v_lshlrev_b32 v{dst}, 16, v{dst}")

    def ln_unpack(self, P, E):
        for j in range(8):
            self.e(f"v_lshlrev_b32 v{E+2*j}, 16, v{P+j}")
            self.e(f"v_and_b32 v{E+2*j+1}, s{S_HIM}, v{P+j}")

    def ln_core(self, DST, E, T):
        e = self.e
        e(f"v_add_f32 v{T}, v{E}, v{E+1}")
        e(f"v_add_f32 v{T+1}, v{E+2}, v{E+3}")
        e(f"v_add_f32 v{T+2}, v{E+4}, v{E+5}")
        e(f"v_add_f32 v{T+3}, v{E+6}, v{E+7}")
        for j in range(4):
            e(f"v_add_f32 v{T+j}, v{T+j}, v{E+8+2*j}")
            e(f"v_add_f32 v{T+j}, v{T+j}, v{E+9+2*j}")
        e(f"v_add_f32 v{T}, v{T}, v{T+1}")
        e(f"v_add_f32 v{T+2}, v{T+2}, v{T+3}")
        e(f"v_add_f32 v{T}, v{T}, v{T+2}")
        self.wave_reduce(T, "add")
        e(f"v_mul_f32 v{T}, 0x3a800000, v{T}")
        self.bf16r(T + 1, T)
        e(f"v_mov_b32 v{T+2}, 0")
        e(f"v_mov_b32 v{T+3}, 0")
        for j in range(16):
            e(f"v_sub_f32 v{T+4+(j&1)}, v{E+j}, v{T}")
            e(f"v_fmac_f32 v{T+2+(j&1)}, v{T+4+(j&1)}, v{T+4+(j&1)}")
        e(f"v_add_f32 v{T+2}, v{T+2}, v{T+3}")
        self.wave_reduce(T + 2, "add")
        e(f"v_mul_f32 v{T+2}, 0x3a800000, v{T+2}")
        self.bf16r(T + 2, T + 2)
        e(f"v_add_f32 v{T+2}, 0x3727c5ac, v{T+2}")
        self.bf16r(T + 2, T + 2)
        e(f"v_sqrt_f32 v{T+2}, v{T+2}")
        self.nop(1)
        self.bf16r(T + 2, T + 2)
        e(f"v_rcp_f32 v{T+3}, v{T+2}")
        self.nop(1)
        for j in range(8):
            a, b = E + 2 * j, E + 2 * j + 1
            e(f"v_sub_f32 v{a}, v{a}, v{T+1}")
            e(f"v_sub_f32 v{b}, v{b}, v{T+1}")
            e(f"v_cvt_pk_bf16_f32 v{T+4}, v{a}, v{b}")
            e(f"v_lshlrev_b32 v{a}, 16, v{T+4}")
            e(f"v_and_b32 v{b}, s{S_HIM}, v{T+4}")
            e(f"v_mul_f32 v{T+4}, v{a}, v{T+3}")
            e(f"v_mul_f32 v{T+5}, v{b}, v{T+3}")
            e(f"v_fma_f32 v{T+6}, -v{T+4}, v{T+2}, v{a}")
            e(f"v_fma_f32 v{T+7}, -v{T+5}, v{T+2}, v{b}")
            e(f"v_fmac_f32 v{T+4}, v{T+6}, v{T+3}")
            e(f"v_fmac_f32 v{T+5}, v{T+7}, v{T+3}")
            e(f"v_cvt_pk_bf16_f32 v{DST+j}, v{T+4}, v{T+5}")

    def write_dup_row(self, P, E, vaddr, base):
        for j in range(8):
            self.e(f"v_perm_b32 v{E+2*j}, v{P+j}, v{P+j}, s{S_SELLO}")
            self.e(f"v_perm_b32 v{E+2*j+1}, v{P+j}, v{P+j}, s{S_SELHI}")
        for k in range(4):
            off = base + (k >> 1) * 2048 + (k & 1) * 16
            self.e(f"ds_write_b128 v{vaddr}, {vr(E+4*k)} offset:{off}")

    def frag(self, fr, dup):
        for j in range(4):
            self.e(f"v_and_b32 v{fr+j}, v{dup}, v{V_MASK+j}")

    def mfma(self, D, fr, B):
        self.e(f"v_mfma_f32_16x16x32_bf16 {vr(D)}, {vr(fr)}, {B}, {vr(D)}")

    def lds_wait_ge(self, off, target, sleep=1):
        sp = self.newlab("L_lspin")
        self.lab(sp)
        self.e(f"ds_read_b32 v{V_TF}, v{V_ZERO} offset:{off}")
        self.e("s_waitcnt lgkmcnt(0)")
        self.e(f"v_readfirstlane_b32 s72, v{V_TF}")
        self.nop(1)
        self.e(f"s_cmp_ge_u32 s72, {target}")
        self.e(f"s_cbranch_scc1 {sp}_ok")
        if sleep:
            self.e(f"s_sleep {sleep}")
        self.e(f"s_branch {sp}")
        self.lab(sp + "_ok")

    def lds_arrive(self, off):
        self.e("s_waitcnt lgkmcnt(0)")
        self.e("s_mov_b64 exec, 1")
        self.e(f"v_mov_b32 v{V_TF}, 1")
        self.e(f"ds_add_u32 v{V_ZERO}, v{V_TF} offset:{off}")
        self.e("s_mov_b64 exec, -1")

    def aux_sync(self):
        self.lds_arrive(CNT)
        self.e(f"s_add_u32 s{S_XT}, s{S_XT}, 4")
        self.lds_wait_ge(CNT, f"s{S_XT}", sleep=0)


def build(opt=None):
    o = dict(OPT)
    if opt:
        o.update(opt)
    SF, WF, WSF = o["stream_flag"], o["w_flag"], o["ws_flag"]
    APF = o["apf"]
    DEPTH = o["depth"]
    g = G()
    e = g.e

    tsv = [62]

    def ts(i):
        if not o["ts"]:
            return
        if i == 0:
            e(f"s_memrealtime s[{S_TS}:{S_TS+1}]")
            return
        e(f"s_memrealtime s[{S_TS+2}:{S_TS+3}]")
        e("s_waitcnt lgkmcnt(0)")
        e(f"v_mov_b32 v{tsv[0]}, s{S_TS+2}")
        e(f"s_mov_b32 s{sWS+2}, 0x400000")
        e(f"s_lshl_b32 s{S_TS+2}, s2, 9\ns_lshl_b32 s{S_TS+3}, s{S_W}, 6\ns_add_u32 s{S_TS+2}, s{S_TS+2}, s{S_TS+3}\ns_add_u32 s{S_TS+2}, s{S_TS+2}, {TS_OFF}")
        e(f"buffer_store_dword v{tsv[0]}, v{V_ZERO}, {srd(sWS)}, s{S_TS+2} offen offset:{4*i}")
        if i == 15:
            e(f"v_mov_b32 v{tsv[0]}, s{S_TS}")
            e(f"buffer_store_dword v{tsv[0]}, v{V_ZERO}, {srd(sWS)}, s{S_TS+2} offen offset:0")

    def flag_poll(vaddr, soff, sleep):
        ok = g.newlab("L_ok")
        sp = g.newlab("L_spin")
        e("s_mov_b32 s75, 0")
        g.lab(sp)
        e(f"buffer_load_dwordx2 {vr(V_FLG,2)}, v{vaddr}, {srd(sWS)}, {soff} offen sc1")
        e("s_waitcnt vmcnt(0)")
        e(f"v_cmp_ne_u64 vcc, {vr(V_FLG,2)}, {vr(V_NON,2)}")
        e("s_add_u32 s75, s75, 1")
        e("s_cmp_ge_u32 s75, 0x40000")
        e(f"s_cbranch_scc1 {ok}")
        g.nop(2)
        e(f"s_cbranch_vccz {ok}")
        if sleep:
            e(f"s_sleep {sleep}")
        e(f"s_branch {sp}")
        g.lab(ok)

    def flag_set(soff):
        e("s_mov_b64 exec, 1")
        e(f"buffer_store_dwordx2 {vr(V_NON,2)}, v{V_ZERO}, {srd(sWS)}, {soff} offen sc1")
        e("s_mov_b64 exec, -1")

    e("s_cmp_ge_u32 s2, 256")
    e("s_cbranch_scc1 L_done")
    e("s_load_dwordx16 s[4:19], s[0:1], 0")
    e("s_load_dwordx8 s[20:27], s[0:1], 64")
    e("s_load_dwordx2 s[28:29], s[0:1], 96")
    ts(0)
    e(f"v_and_b32 v{V_LANE}, 63, v0")
    e(f"v_lshrrev_b32 v{V_TC}, 6, v0")
    e(f"v_lshrrev_b32 v{V_G}, 4, v{V_LANE}")
    e(f"v_readfirstlane_b32 s{S_W}, v{V_TC}")
    e(f"v_and_b32 v{V_C}, 15, v{V_LANE}")
    e(f"v_lshlrev_b32 v{V_L16}, 4, v{V_LANE}")
    e(f"v_lshlrev_b32 v{V_L32}, 5, v{V_LANE}")
    e(f"v_lshlrev_b32 v{V_L8}, 3, v{V_LANE}")
    e(f"v_mov_b32 v{V_ZERO}, 0")
    e(f"v_lshlrev_b32 v{V_TB}, 4, v{V_C}")
    e(f"v_lshl_add_u32 v{V_W2K}, v{V_G}, 13, v{V_TB}")
    e(f"s_and_b32 s{S_H}, s2, 31")
    e(f"s_lshr_b32 s{S_B}, s2, 5")
    e(f"s_and_b32 s{S_WA}, s{S_W}, 3")
    e(f"s_mov_b32 s{S_SELLO}, 0x01000100")
    e(f"s_mov_b32 s{S_SELHI}, 0x03020302")
    e(f"s_mov_b32 s{S_HIM}, 0xffff0000")
    e(f"s_mov_b32 s{S_ODD}, 0xaaaaaaaa")
    e(f"s_mov_b32 s{S_ODD+1}, 0xaaaaaaaa")
    e(f"s_mov_b32 s{S_TWO}, 0xcccccccc")
    e(f"s_mov_b32 s{S_TWO+1}, 0xcccccccc")
    e(f"s_mov_b32 s{S_XT}, 0")
    e("s_waitcnt lgkmcnt(0)")
    e(f"s_mov_b32 s{sX}, s4\ns_mov_b32 s{sX+1}, s5\ns_mov_b32 s{sX+2}, 16384\ns_mov_b32 s{sX+3}, 0x00020000")
    e(f"s_lshl_b32 s{S_TMP}, s{S_W}, 11")
    g.vissue(f"buffer_load_dwordx4 {vr(LP)}, v{V_L16}, {srd(sX)}, s{S_TMP} offen", "x0")
    g.vissue(f"buffer_load_dwordx4 {vr(LP+4)}, v{V_L16}, {srd(sX)}, s{S_TMP} offen offset:1024", "x1")
    e(f"s_mov_b32 s{sDBG}, s26\ns_mov_b32 s{sDBG+1}, s27\ns_mov_b32 s{sDBG+2}, 256\ns_mov_b32 s{sDBG+3}, 0x00020000")
    e(f"s_mov_b32 s{sWS}, s28\ns_mov_b32 s{sWS+1}, s29\ns_mov_b32 s{sWS+2}, {WS_BYTES}\ns_mov_b32 s{sWS+3}, 0x00020000")
    e(f"s_mov_b32 s{sW+3}, 0x00020000")
    e(f"s_cmp_ge_u32 s{S_W}, 4")
    e("s_cbranch_scc1 L_aux_pro")

    def common_consts():
        e(f"s_mov_b32 s{sO}, s24\ns_mov_b32 s{sO+1}, s25\ns_mov_b32 s{sO+2}, 16384\ns_mov_b32 s{sO+3}, 0x00020000")
        e(f"v_and_b32 v{V_TA}, 1, v{V_C}")
        e(f"v_lshlrev_b32 v{V_TA}, 4, v{V_TA}")
        e(f"v_mov_b32 v{V_TB}, 0xffff")
        e(f"v_lshlrev_b32 v{V_TB}, v{V_TA}, v{V_TB}")
        e(f"v_bfe_u32 v{V_TA}, v{V_C}, 1, 2")
        for j in range(4):
            e(f"v_cmp_eq_u32 vcc, {j}, v{V_TA}")
            g.nop(2)
            e(f"v_cndmask_b32 v{V_MASK+j}, 0, v{V_TB}, vcc")
        e(f"v_lshlrev_b32 v{V_TA}, 4, v{V_G}")
        e(f"v_lshl_add_u32 v{V_DUPO}, v{V_TC}, 9, v{V_TA}")
        e(f"v_and_b32 v{V_TB}, 1, v{V_G}")
        e(f"v_lshlrev_b32 v{V_TB}, 4, v{V_TB}")
        e(f"v_lshl_add_u32 v{V_DW}, v{V_C}, 5, v{V_TB}")

    def ln_own_row():
        e(f"s_lshl_b32 s72, s{S_W}, 12")
        e(f"s_add_u32 s72, s72, {AT}")
        e(f"v_add_u32 v{V_TD}, s72, v{V_L32}")
        g.vwait("x1")
        g.ln_unpack(LP, LE)
        g.ln_core(LP, LE, LT)
        g.write_dup_row(LP, LE, V_TD, 0)
        e("s_waitcnt lgkmcnt(0)")
        e("s_barrier")

    def wo_srd():
        e(f"s_lshl_b32 s72, s{S_H}, 18")
        e(f"s_lshl_b32 s73, s{S_W}, 8")
        e("s_add_u32 s72, s72, s73")
        e(f"s_add_u32 s{sW}, s12, s72\ns_addc_u32 s{sW+1}, s13, 0\ns_sub_u32 s{sW+2}, 0x800000, s72")

    def wo_issue(i):
        if 'w' in o['abl']:
            return
        e(f"s_mov_b32 s{S_TMP}, {(16*(i>>2)+(i&3))*2048}")
        g.vissue(f"buffer_load_dwordx4 {ar(4*i)}, v{V_W2K}, {srd(sW)}, s{S_TMP} offen {WSF}", f"wo{i}")

    vm0 = g.vm_save()

    e("s_lshl_b32 s72, s2, 20")
    e(f"s_add_u32 s{sK}, s6, s72\ns_addc_u32 s{sK+1}, s7, 0\ns_mov_b32 s{sK+2}, 0x100000\ns_mov_b32 s{sK+3}, 0x00020000")
    e(f"s_add_u32 s{sV}, s8, s72\ns_addc_u32 s{sV+1}, s9, 0\ns_mov_b32 s{sV+2}, 0x100000\ns_mov_b32 s{sV+3}, 0x00020000")
    e(f"v_lshl_add_u32 v{V_KV}, v{V_TC}, 12, v{V_L16}")
    e(f"s_mov_b32 s{S_OFF}, 0")

    def dest(L):
        if L < APF:
            return ("a", 4 * L)
        return ("v", V_WIN + 4 * ((L - APF) % DEPTH))

    def stream_issue(L):
        if L >= 512:
            return
        if L == 256:
            e(f"s_mov_b32 s{S_OFF}, 0")
        sd = sK if L < 256 else sV
        k, r = dest(L)
        d = ar(r) if k == "a" else vr(r)
        g.vissue(f"buffer_load_dwordx4 {d}, v{V_KV}, {srd(sd)}, s{S_OFF} offen offset:{(L&3)*1024} {SF}", f"S{L}")
        if L & 3 == 3:
            e(f"s_add_u32 s{S_OFF}, s{S_OFF}, 16384")

    DIN = o["din"]
    for L in range(DIN):
        stream_issue(L)
    common_consts()
    lb = g.newlab("L_ci")
    e(f"s_cmp_eq_u32 s{S_W}, 0")
    e(f"s_cbranch_scc0 {lb}")
    for j in range(4):
        e(f"v_mov_b32 v{V_TA+j}, 0")
    e(f"ds_write_b128 v{V_ZERO}, {vr(V_TA)} offset:{CNT}")
    e(f"ds_write_b128 v{V_ZERO}, {vr(V_TA)} offset:{CNT+16}")
    g.lab(lb)
    e(f"v_lshrrev_b32 v{V_TC}, 6, v0")
    e(f"v_lshlrev_b32 v{V_TA}, 4, v{V_G}")
    e(f"v_lshl_add_u32 v{V_DUPP}, v{V_TC}, 12, v{V_TA}")
    e(f"v_bfe_u32 v{V_TB}, v{V_C}, 1, 1")
    e(f"v_lshl_add_u32 v{V_PDW}, v{V_TB}, 7, v{V_DUPP}")
    e(f"v_and_b32 v{V_TB}, 1, v{V_C}")
    e(f"v_lshl_add_u32 v{V_PDW}, v{V_TB}, 6, v{V_PDW}")
    e(f"v_bfe_u32 v{V_TB}, v{V_C}, 2, 1")
    e(f"v_lshl_add_u32 v{V_PDW}, v{V_TB}, 3, v{V_PDW}")
    e(f"v_lshrrev_b32 v{V_TB}, 3, v{V_C}")
    e(f"v_lshl_add_u32 v{V_PDW}, v{V_TB}, 2, v{V_PDW}")
    ln_own_row()
    for L in range(DIN, APF + DEPTH):
        g.vwait(f"S{L-DIN}")
        stream_issue(L)
    if 'q' not in o['abl']:
        g.lds_wait_ge(CNT + 8, 1, sleep=2)
    e(f"v_lshlrev_b32 v{V_TA}, 4, v{V_C}")
    e(f"ds_read_b128 {vr(V_Q)}, v{V_TA} offset:{QB}")
    e(f"v_mov_b32 v{V_M}, 0xff800000")
    e("s_waitcnt lgkmcnt(0)")
    ts(1)
    nxt_issue = APF + DEPTH
    for beta in range(16):
        for t in range(16):
            L = 16 * beta + t
            k, r = dest(L)
            g.vwait(f"S{L}")
            if k == "a":
                for j in range(4):
                    e(f"v_accvgpr_read_b32 v{V_D+j + 4*(t&1)}, a{r+j}")
                r = V_D + 4 * (t & 1)
            e(f"v_dot2_f32_bf16 v{V_A+t}, v{r}, v{V_Q}, 0")
            for j in range(1, 4):
                e(f"v_dot2_f32_bf16 v{V_A+t}, v{r+j}, v{V_Q+j}, v{V_A+t}")
            if k == "v":
                stream_issue(nxt_issue)
                nxt_issue += 1
        g.nop(3)
        A = V_A
        for p in range(8):
            e(f"v_add_f32_dpp v{A+2*p}, v{A+2*p}, v{A+2*p} row_ror:8 row_mask:0xf bank_mask:0x3")
            e(f"v_add_f32_dpp v{A+2*p}, v{A+2*p+1}, v{A+2*p+1} row_ror:8 row_mask:0xf bank_mask:0xc")
        for p in range(4):
            e(f"v_add_f32_dpp v{A+4*p}, v{A+4*p}, v{A+4*p} row_shl:4 row_mask:0xf bank_mask:0x5")
            e(f"v_add_f32_dpp v{A+4*p}, v{A+4*p+2}, v{A+4*p+2} row_shr:4 row_mask:0xf bank_mask:0xa")
        g.nop(1)
        for p in range(4):
            e(f"v_add_f32_dpp v{A+4*p}, v{A+4*p}, v{A+4*p} quad_perm:[1,0,3,2] row_mask:0xf bank_mask:0xf")
        for p in range(2):
            e(f"v_cndmask_b32 v{A+8*p}, v{A+8*p}, v{A+8*p+4}, s[{S_ODD}:{S_ODD+1}]")
        g.nop(1)
        for p in range(2):
            e(f"v_add_f32_dpp v{A+8*p}, v{A+8*p}, v{A+8*p} quad_perm:[2,3,0,1] row_mask:0xf bank_mask:0xf")
        e(f"v_cndmask_b32 v{V_TA}, v{A}, v{A+8}, s[{S_TWO}:{S_TWO+1}]")
        g.bf16r(V_TA, V_TA)
        e(f"v_mul_f32 v{V_TA}, 0x3db504f3, v{V_TA}")
        g.bf16r(V_TA, V_TA)
        e(f"v_max_f32 v{V_M}, v{V_M}, v{V_TA}")
        e(f"ds_write_b32 v{V_PDW}, v{V_TA} offset:{PD + beta*256}")
    ts(2)
    LOG2E = "0x3fb8aa3b"
    S = V_A
    for k in range(16):
        e(f"ds_read_b32 v{S+k}, v{V_PDW} offset:{PD + k*256}")
    g.wave_reduce(V_M, "max")
    e(f"v_mov_b32 v{V_TE}, 0")
    e("s_waitcnt lgkmcnt(0)")
    for k in range(16):
        t = V_TA + (k & 1)
        e(f"v_sub_f32 v{t}, v{S+k}, v{V_M}")
        e(f"v_mul_f32 v{t}, {LOG2E}, v{t}")
        e(f"v_exp_f32 v{t}, v{t}")
        g.nop(1)
        e(f"v_add_f32 v{V_TE}, v{V_TE}, v{t}")
    g.wave_reduce(V_TE, "add")
    e(f"v_mov_b32 v{V_TA}, v{V_M}")
    e(f"v_mov_b32 v{V_TB}, v{V_TE}")
    e(f"s_lshl_b32 s72, s{S_W}, 3")
    e(f"v_mov_b32 v{V_TC}, s72")
    e(f"ds_write_b64 v{V_TC}, v[{V_TA}:{V_TB}] offset:{SM}")
    g.lds_arrive(CNT + 4)
    g.lds_wait_ge(CNT + 4, 4, sleep=0)
    X = V_D
    e(f"ds_read_b128 {vr(X)}, v{V_ZERO} offset:{SM}")
    e(f"ds_read_b128 {vr(X+4)}, v{V_ZERO} offset:{SM+16}")
    e("s_waitcnt lgkmcnt(0)")
    e(f"v_max3_f32 v{V_TC}, v{X}, v{X+2}, v{X+4}")
    e(f"v_max_f32 v{V_TC}, v{V_TC}, v{X+6}")
    e(f"v_mov_b32 v{V_TE}, 0")
    for w in range(4):
        e(f"v_sub_f32 v{V_TA}, v{X+2*w}, v{V_TC}")
        e(f"v_mul_f32 v{V_TA}, {LOG2E}, v{V_TA}")
        e(f"v_exp_f32 v{V_TA}, v{V_TA}")
        g.nop(1)
        e(f"v_fmac_f32 v{V_TE}, v{V_TA}, v{X+2*w+1}")
    e(f"v_rcp_f32 v{V_TD}, v{V_TE}")
    g.nop(1)
    e(f"v_fma_f32 v{V_TA}, -v{V_TE}, v{V_TD}, 1.0")
    e(f"v_fmac_f32 v{V_TD}, v{V_TA}, v{V_TD}")
    for k in range(16):
        t = S + k
        e(f"v_sub_f32 v{t}, v{t}, v{V_TC}")
        e(f"v_mul_f32 v{t}, {LOG2E}, v{t}")
        e(f"v_exp_f32 v{t}, v{t}")
        g.nop(1)
        e(f"v_mul_f32 v{t}, v{t}, v{V_TD}")
        e(f"v_cvt_pk_bf16_f32 v{t}, v{t}, v{t}")
        e(f"ds_write_b32 v{V_PDW}, v{t} offset:{PD + k*256}")
    for j in range(4):
        e(f"v_mov_b32 v{V_ACC+j}, 0")
    wo_srd()
    e("s_waitcnt lgkmcnt(0)")
    e(f"ds_read_b128 {vr(V_DUP)}, v{V_DUPP} offset:{PD}")
    for n in range(64):
        cur = V_DUP + 4 * (n & 1)
        nxt = V_DUP + 4 * ((n + 1) & 1)
        e("s_waitcnt lgkmcnt(0)")
        if n < 63:
            e(f"ds_read_b128 {vr(nxt)}, v{V_DUPP} offset:{PD + (n+1)*64}")
        for d in range(4):
            L = 256 + 4 * n + d
            k, r = dest(L)
            fr = V_FRAG + 4 * (d & 1)
            g.frag(fr, cur + d)
            g.vwait(f"S{L}")
            g.nop(2)
            g.mfma(V_ACC, fr, vr(r))
            stream_issue(nxt_issue)
            nxt_issue += 1
        if 4 <= n < 36:
            wo_issue(n - 4)
        if n == 3 and o["wosync"]:
            g.lds_arrive(CNT + 20)
        if n == 24 and o["late"]:
            g.lds_arrive(CNT + 16)
    ts(3)
    g.nop(10)
    e(f"s_lshl_b32 s72, s{S_W}, 9")
    e(f"v_add_u32 v{V_TA}, s72, v{V_DW}")
    e(f"ds_write_b128 v{V_TA}, {vr(V_ACC)} offset:{OP}")

    g.lab("L_tail")
    if 't' in o['abl']:
        e("s_endpgm")
    e("s_waitcnt vmcnt(0) lgkmcnt(0)")
    g.vm = {"C": [], "A": [], "B": []}
    e("s_barrier")
    R = V_D
    for w in range(4):
        e(f"ds_read_b64 {vr(R+2*w,2)}, v{V_L8} offset:{OP + w*512}")
    e(f"s_lshl_b32 s72, s{S_W}, 9")
    e(f"v_add_u32 v{V_TD}, s72, v{V_L8}")
    e(f"v_add_u32 v{V_TE}, s72, v{V_DW}")
    e("s_waitcnt lgkmcnt(0)")
    for j in range(2):
        e(f"v_add_f32 v{R+j}, v{R+j}, v{R+2+j}")
        e(f"v_add_f32 v{R+4+j}, v{R+4+j}, v{R+6+j}")
        e(f"v_add_f32 v{R+j}, v{R+j}, v{R+4+j}")
        e(f"v_cvt_pk_bf16_f32 v{R+j}, v{R+j}, v{R+j}")
    e(f"ds_write_b64 v{V_TD}, {vr(R,2)} offset:{OD}")
    for j in range(4):
        e(f"v_mov_b32 v{V_ACC+j}, 0")
    e("s_waitcnt lgkmcnt(0)")
    e(f"ds_read_b128 {vr(V_DUP)}, v{V_DUPO} offset:{OD}")
    for i4 in range(8):
        cur = V_DUP + 4 * (i4 & 1)
        nxt = V_DUP + 4 * ((i4 + 1) & 1)
        e("s_waitcnt lgkmcnt(0)")
        if i4 < 7:
            e(f"ds_read_b128 {vr(nxt)}, v{V_DUPO} offset:{OD + (i4+1)*64}")
        for ii in range(4):
            i = 4 * i4 + ii
            fr = V_FRAG + 4 * (i & 1)
            g.frag(fr, cur + ii)
            g.nop(2)
            g.mfma(V_ACC, fr, ar(4 * i))
    e(f"s_lshl_b32 s{S_TMP}, s2, 12")
    e(f"s_add_u32 s{S_TMP}, s{S_TMP}, {AP}")
    e(f"v_lshlrev_b32 v{V_TD}, 3, v0")
    e(f"v_lshlrev_b32 v{V_TC}, 2, v0")
    g.nop(6)
    e("s_mov_b64 exec, 0xffffffff")
    e(f"buffer_store_dwordx4 {vr(V_ACC)}, v{V_TE}, {srd(sWS)}, s{S_TMP} offen sc1")
    e("s_mov_b64 exec, -1")
    e(f"ds_read_b64 {vr(R,2)}, v{V_TD} offset:{FB}")
    e(f"ds_read_b64 {vr(R+2,2)}, v{V_TD} offset:{FX}")
    e("s_waitcnt vmcnt(0)")
    e("s_barrier")
    lb = g.newlab("L_nat")
    e(f"s_cmp_eq_u32 s{S_W}, 0")
    e(f"s_cbranch_scc0 {lb}")
    e("s_mov_b64 exec, 1")
    e(f"v_mov_b32 v{V_TA}, 1")
    e(f"s_lshl_b32 s72, s{S_B}, 2")
    e(f"buffer_atomic_add v{V_TA}, v{V_ZERO}, {srd(sDBG)}, s72 offen offset:32 sc0")
    e("s_waitcnt vmcnt(0)")
    e(f"ds_write_b32 v{V_ZERO}, v{V_TA} offset:{CNT+12}")
    e("s_waitcnt lgkmcnt(0)")
    e("s_mov_b64 exec, -1")
    g.lab(lb)
    e("s_barrier")
    e(f"ds_read_b32 v{V_TA}, v{V_ZERO} offset:{CNT+12}")
    e("s_waitcnt lgkmcnt(0)")
    e(f"v_readfirstlane_b32 s72, v{V_TA}")
    g.nop(1)
    e("s_cmp_eq_u32 s72, 31")
    e("s_cbranch_scc0 L_fin")
    e(f"s_lshl_b32 s72, s{S_B}, 17")
    e(f"s_add_u32 s72, s72, {AP}")
    for hh in range(32):
        e(f"s_add_u32 s{S_TMP}, s72, {hh*4096}")
        g.vissue(f"buffer_load_dwordx2 {vr(V_WIN+2*hh,2)}, v{V_TD}, {srd(sWS)}, s{S_TMP} offen sc1", f"apl{hh}")
    e(f"s_lshl_b32 s73, s{S_B}, 11")
    for hh in range(1, 32):
        g.vwait(f"apl{hh}")
        for j in range(2):
            e(f"v_add_f32 v{V_WIN+j}, v{V_WIN+j}, v{V_WIN+2*hh+j}")
    for j in range(2):
        g.bf16r(V_WIN + j, V_WIN + j)
        e(f"v_add_f32 v{V_WIN+j}, v{V_WIN+j}, v{R+2+j}")
        g.bf16r(V_WIN + j, V_WIN + j)
        e(f"v_add_f32 v{V_WIN+j}, v{V_WIN+j}, v{R+j}")
    e(f"v_cvt_pk_bf16_f32 v{V_TA}, v{V_WIN}, v{V_WIN+1}")
    e(f"buffer_store_dword v{V_TA}, v{V_TC}, {srd(sO)}, s73 offen")
    g.lab("L_fin")
    ts(15)
    g.lab("L_done")
    e("s_endpgm")

    g.lab("L_aux_pro")
    tsv[0] = 127
    g.vm_restore(vm0)
    e("s_setprio 3")
    e(f"v_lshl_add_u32 v{V_TE}, v{V_G}, 15, v{V_TB}")
    e(f"s_lshl_b32 s72, s{S_B}, 2")
    e(f"s_add_u32 s72, s72, s{S_WA}")
    e(f"s_lshl_b32 s72, s72, 18")
    e(f"s_lshl_b32 s73, s{S_H}, 8")
    e("s_add_u32 s72, s72, s73")
    e(f"s_add_u32 s{sW}, s10, s72\ns_addc_u32 s{sW+1}, s11, 0")
    e(f"s_sub_u32 s{sW+2}, 0x800000, s72")
    for i in range(8):
        e(f"s_mov_b32 s{S_TMP}, {(16*(i>>2)+(i&3))*8192}")
        if 'Q' not in o['abl']:
            g.vissue(f"buffer_load_dwordx4 {ar(4*i)}, v{V_TE}, {srd(sW)}, s{S_TMP} offen {WF}", f"wq{i}")
    e(f"s_or_b32 s72, s2, s{S_WA}")
    e("s_cmp_eq_u32 s72, 0")
    e("s_cbranch_scc0 L_no_nonce")
    e("s_memrealtime s[72:73]")
    e("s_waitcnt lgkmcnt(0)")
    e("s_or_b32 s72, s72, 1")
    e(f"v_mov_b32 v{V_NON}, s72")
    e(f"v_mov_b32 v{V_NON+1}, s73")
    e("s_mov_b64 exec, 1")
    e(f"buffer_store_dwordx2 {vr(V_NON,2)}, v{V_ZERO}, {srd(sDBG)}, 0 offen offset:8 sc1")
    e("s_mov_b64 exec, -1")
    g.nop(2)
    g.lab("L_no_nonce")
    g.vissue(f"buffer_load_dwordx2 {vr(V_NON,2)}, v{V_ZERO}, {srd(sDBG)}, 0 offen offset:8 sc1", "non")
    e("s_lshr_b32 s72, s2, 3")
    e("s_and_b32 s73, s2, 7")
    e("s_mul_i32 s73, s73, 14")
    e("s_add_u32 s74, s73, s72")
    e("s_sub_u32 s75, s74, 14")
    e(f"s_and_b32 s{S_T1}, s74, 3")
    e(f"s_lshr_b32 s{S_T2}, s74, 2")
    e("s_cmp_lt_u32 s72, 14")
    e(f"s_cselect_b32 s{S_ROLE}, 1, 0")
    e("s_cbranch_scc1 L_role_done")
    e("s_cmp_lt_u32 s72, 28")
    e(f"s_cselect_b32 s{S_ROLE}, 2, 0")
    e(f"s_lshr_b32 s{S_T1}, s75, 3")
    e(f"s_and_b32 s{S_T2}, s75, 7")
    g.lab("L_role_done")
    if 'j' in o['abl']:
        e(f"s_mov_b32 s{S_ROLE}, 3")
    common_consts()
    e(f"v_and_b32 v{V_TC}, 3, v{V_TC}")
    e(f"v_lshlrev_b32 v{V_TA}, 4, v{V_G}")
    e(f"v_lshrrev_b32 v{V_TB}, 3, v{V_C}")
    e(f"v_lshl_add_u32 v{V_JOB}, v{V_TB}, 12, v{V_TA}")
    e(f"v_lshrrev_b32 v{V_TA}, 1, v{V_G}")
    e(f"v_lshl_add_u32 v{V_REDW}, v{V_TA}, 9, v{V_DW}")
    e(f"v_lshl_add_u32 v{V_REDW}, v{V_TC}, 12, v{V_REDW}")
    e(f"v_lshl_add_u32 v{V_TA16}, v{V_TC}, 10, v{V_L16}")
    ln_own_row()

    def tile_mfma(vaddr, nblk, abase, tagp, D):
        for j in range(16):
            e(f"v_mov_b32 v{D+j}, 0")
        seq = [(i4, pr) for i4 in range(nblk) for pr in range(4)]
        e(f"ds_read_b128 {vr(V_DUP)}, v{vaddr} offset:0")
        for n, (i4, pr) in enumerate(seq):
            cur = V_DUP + 4 * (n & 1)
            nxt = V_DUP + 4 * ((n + 1) & 1)
            e("s_waitcnt lgkmcnt(0)")
            if n + 1 < len(seq):
                i4n, prn = seq[n + 1]
                e(f"ds_read_b128 {vr(nxt)}, v{vaddr} offset:{prn*8192 + i4n*64}")
            for ii in range(4):
                i = 4 * i4 + ii
                fr = V_FRAG + 4 * (ii & 1)
                g.frag(fr, cur + ii)
                g.vwait(f"{tagp}{i}")
                g.nop(2)
                g.mfma(D + 4 * pr, fr, ar(abase + 4 * i))
        g.nop(10)
        for pr in range(4):
            e(f"ds_write_b128 v{V_REDW}, {vr(D+4*pr)} offset:{RED + pr*1024}")
        g.aux_sync()
        for w in range(4):
            e(f"ds_read_b128 {vr(D+4*w)}, v{V_TA16} offset:{RED + w*4096}")
        e("s_waitcnt lgkmcnt(0)")
        for j in range(4):
            e(f"v_add_f32 v{D+j}, v{D+j}, v{D+4+j}")
            e(f"v_add_f32 v{D+8+j}, v{D+8+j}, v{D+12+j}")
        for j in range(4):
            e(f"v_add_f32 v{D+j}, v{D+j}, v{D+8+j}")

    ts(4)
    QD = V_WIN
    e(f"s_lshl_b32 s72, s{S_B}, 9")
    e(f"s_lshl_b32 s73, s{S_WA}, 7")
    e("s_add_u32 s72, s72, s73")
    e(f"s_add_u32 s72, s72, {AT}")
    e(f"v_add_u32 v{V_TE}, s72, v{V_JOB}")
    tile_mfma(V_TE, 2, 0, "wq", QD)
    ts(5)
    e(f"s_lshl_b32 s72, s{S_H}, 3")
    e(f"s_add_u32 s72, s72, s{S_B}")
    e(f"s_lshl_b32 s{S_TMP}, s72, 12")
    e(f"s_add_u32 s{S_TMP}, s{S_TMP}, {QPW}")
    g.vissue(f"buffer_store_dwordx4 {vr(QD)}, v{V_TA16}, {srd(sWS)}, s{S_TMP} offen sc1", "qst")
    g.vwait("non")
    ok = g.newlab("L_ok")
    sp = g.newlab("L_spin")
    e("s_mov_b32 s73, 0")
    g.lab(sp)
    e(f"v_readfirstlane_b32 s{S_NON}, v{V_NON}")
    e(f"v_readfirstlane_b32 s{S_NON+1}, v{V_NON+1}")
    g.nop(1)
    e(f"s_cmp_lg_u32 s{S_NON}, 0")
    e(f"s_cbranch_scc1 {ok}")
    e("s_add_u32 s73, s73, 1")
    e("s_cmp_ge_u32 s73, 0x40000")
    e(f"s_cbranch_scc1 {ok}")
    e(f"buffer_load_dwordx2 {vr(V_NON,2)}, v{V_ZERO}, {srd(sDBG)}, 0 offen offset:8 sc1")
    e("s_waitcnt vmcnt(0)")
    e(f"s_branch {sp}")
    g.lab(ok)
    e(f"v_mov_b32 v{V_NON}, s{S_NON}")
    e(f"v_mov_b32 v{V_NON+1}, s{S_NON+1}")
    if o["qflag1"]:
        e(f"s_lshl_b32 s74, s{S_H}, 6")
        e(f"s_add_u32 s74, s74, {QFL}")
        e(f"s_lshl_b32 s73, s{S_B}, 3")
        e("s_add_u32 s73, s73, s74")
    else:
        e(f"s_lshl_b32 s72, s{S_H}, 2")
        e(f"s_add_u32 s73, s72, s{S_WA}")
        e(f"s_lshl_b32 s73, s73, 3")
        e(f"s_add_u32 s73, s73, s{S_B}")
        e(f"s_lshl_b32 s73, s73, 3")
        e(f"s_add_u32 s73, s73, {QFL}")
        e(f"s_lshr_b32 s74, s{S_B}, 1")
        e("s_add_u32 s74, s74, s72")
        e("s_lshl_b32 s74, s74, 6")
        e(f"s_add_u32 s74, s74, {QFL}")
    e(f"v_and_b32 v{V_TA}, 7, v{V_LANE}")
    e(f"v_lshlrev_b32 v{V_TA}, 3, v{V_TA}")
    g.vwait("qst")
    if o["qflag1"]:
        g.aux_sync()
    else:
        flag_set("s73")
    ts(6)
    e(f"s_cmp_eq_u32 s{S_WA}, 0")
    e("s_cbranch_scc0 L_no_gather")
    if o["qflag1"]:
        flag_set("s73")
    flag_poll(V_TA, "s74", 0)
    ts(7)
    e(f"s_lshl_b32 s72, s{S_H}, 15")
    e(f"s_lshl_b32 s73, s{S_B}, 9")
    e("s_add_u32 s72, s72, s73")
    for k8 in range(8):
        e(f"s_add_u32 s{S_TMP}, s72, {QPW + k8*4096}")
        e(f"buffer_load_dwordx2 {vr(QD+2*k8,2)}, v{V_L8}, {srd(sWS)}, s{S_TMP} offen sc1")
    e(f"v_lshlrev_b32 v{V_TA}, 2, v{V_LANE}")
    e("s_waitcnt vmcnt(0)")
    for k8 in range(1, 8):
        for j in range(2):
            e(f"v_add_f32 v{QD+j}, v{QD+j}, v{QD+2*k8+j}")
    e(f"v_cvt_pk_bf16_f32 v{QD}, v{QD}, v{QD+1}")
    e(f"ds_write_b32 v{V_TA}, v{QD} offset:{QB}")
    g.lds_arrive(CNT + 8)
    g.lab("L_no_gather")
    e(f"s_setprio {o['auxprio']}")
    ts(1)

    JT = 64
    D = V_D

    def job_store_signal(role, off):
        if o["contig"]:
            if role == "A":
                e(f"s_lshl_b32 s{S_TMP}, s{S_T2}, 2")
                e(f"s_add_u32 s{S_TMP}, s{S_TMP}, s{S_T1}")
            else:
                e(f"s_lshl_b32 s{S_TMP}, s{S_T1}, 3")
                e(f"s_add_u32 s{S_TMP}, s{S_TMP}, s{S_T2}")
            e(f"s_lshl_b32 s{S_TMP}, s{S_TMP}, 12")
            e(f"s_add_u32 s{S_TMP}, s{S_TMP}, {HP if role == 'A' else MP}")
            e(f"v_mov_b32 v{V_TA}, v{V_TA16}")
        else:
            rowb = 3584 * 4 if role == "A" else 1024 * 4
            e(f"v_and_b32 v{V_TA}, 255, v0")
            e(f"v_lshrrev_b32 v{V_TA}, 5, v{V_TA}")
            e(f"v_mul_u32_u24 v{V_TA}, {rowb}, v{V_TA}")
            e(f"v_and_b32 v{V_TB}, 31, v0")
            e(f"v_lshl_add_u32 v{V_TA}, v{V_TB}, 4, v{V_TA}")
            e(f"s_mul_i32 s{S_TMP}, s{S_T1}, {8*rowb}")
            e(f"s_lshl_b32 s73, s{S_T2}, 9")
            e(f"s_add_u32 s{S_TMP}, s{S_TMP}, s73")
            e(f"s_add_u32 s{S_TMP}, s{S_TMP}, {HP if role == 'A' else MP}")
        if 'S' in o['abl']:
            g.vwait_all()
            return
        g.vissue(f"buffer_store_dwordx4 {vr(D)}, v{V_TA}, {srd(sWS)}, s{S_TMP} offen sc1", "jst")
        g.vwait_all()
        g.aux_sync()
        lb = g.newlab("L_sig")
        e(f"s_cmp_eq_u32 s{S_WA}, 0")
        e(f"s_cbranch_scc0 {lb}")
        if role == "A":
            e(f"s_lshl_b32 s72, s{S_T2}, 5")
            e(f"s_lshl_b32 s73, s{S_T1}, 3")
            e("s_add_u32 s72, s72, s73")
            e(f"s_add_u32 s72, s72, {HFL}")
        else:
            e(f"s_lshr_b32 s72, s{S_T2}, 1")
            e("s_lshl_b32 s72, s72, 8")
            e(f"s_lshl_b32 s73, s{S_T1}, 4")
            e("s_add_u32 s72, s72, s73")
            e(f"s_and_b32 s73, s{S_T2}, 1")
            e("s_lshl_b32 s73, s73, 3")
            e("s_add_u32 s72, s72, s73")
            e(f"s_add_u32 s72, s72, {MFL}")
        flag_set("s72")
        g.lab(lb)

    e(f"s_cmp_eq_u32 s{S_ROLE}, 1")
    e("s_cbranch_scc0 L_not_a")
    g.role = "A"
    e(f"v_lshlrev_b32 v{V_TA}, 4, v{V_C}")
    e(f"v_mul_u32_u24 v{V_TE}, 28672, v{V_G}")
    e(f"v_add_u32 v{V_TE}, v{V_TE}, v{V_TA}")
    e(f"s_lshl_b32 s72, s{S_T1}, 2\ns_add_u32 s72, s72, s{S_WA}\ns_mul_i32 s72, s72, {64*7168}")
    e(f"s_lshl_b32 s73, s{S_T2}, 8\ns_add_u32 s72, s72, s73")
    e(f"s_add_u32 s{sW}, s16, s72\ns_addc_u32 s{sW+1}, s17, 0\ns_sub_u32 s{sW+2}, {1024*7168}, s72")
    for i in range(16):
        e(f"s_mov_b32 s{S_TMP}, {(16*(i>>2)+(i&3))*7168}")
        if 'L' not in o['abl']:
            g.vissue(f"buffer_load_dwordx4 {ar(JT+4*i)}, v{V_TE}, {srd(sW)}, s{S_TMP} offen {WF}", f"jt{i}")
    e(f"s_lshl_b32 s72, s{S_WA}, 13")
    e(f"s_add_u32 s72, s72, {AT}")
    e(f"v_add_u32 v{V_TD}, s72, v{V_L32}")
    e(f"v_add_u32 v{V_TE}, {AT2-AT}, v{V_TD}")
    for rr in range(2):
        for k in range(4):
            e(f"ds_read_b128 {vr(LE+4*k)}, v{V_TD} offset:{rr*4096 + (k>>1)*2048 + (k&1)*16}")
        e("s_waitcnt lgkmcnt(0)")
        for j in range(16):
            e(f"v_and_b32 v{LE+j}, s{S_HIM}, v{LE+j}")
        g.ln_core(LP, LE, LT)
        g.write_dup_row(LP, LE, V_TE, rr * 4096)
    e(f"s_lshl_b32 s72, s{S_T1}, 10")
    e(f"s_lshl_b32 s73, s{S_WA}, 8")
    e("s_add_u32 s72, s72, s73")
    e(f"s_add_u32 s72, s72, {AT2}")
    e(f"v_add_u32 v{V_TE}, s72, v{V_JOB}")
    g.aux_sync()
    tile_mfma(V_TE, 4, JT, "jt", D)
    job_store_signal("A", 0)
    e("s_branch L_job_done")
    g.role = "C"
    g.lab("L_not_a")
    e(f"s_cmp_eq_u32 s{S_ROLE}, 2")
    e("s_cbranch_scc0 L_job_n")
    g.role = "B"
    e(f"s_lshl_b32 s72, s{S_T1}, 2\ns_add_u32 s72, s72, s{S_WA}\ns_lshl_b32 s72, s72, 17")
    e(f"s_lshl_b32 s73, s{S_T2}, 8\ns_add_u32 s72, s72, s73")
    e(f"s_add_u32 s{sW}, s20, s72\ns_addc_u32 s{sW+1}, s21, 0\ns_sub_u32 s{sW+2}, {3584*2048}, s72")
    for i in range(16):
        e(f"s_mov_b32 s{S_TMP}, {(16*(i>>2)+(i&3))*2048}")
        if 'L' not in o['abl']:
            g.vissue(f"buffer_load_dwordx4 {ar(JT+4*i)}, v{V_W2K}, {srd(sW)}, s{S_TMP} offen {WF}", f"jt{i}")
    e(f"s_mov_b32 s{sB}, s18\ns_mov_b32 s{sB+1}, s19\ns_mov_b32 s{sB+2}, 7168\ns_mov_b32 s{sB+3}, 0x00020000")
    e(f"s_lshl_b32 s{S_TMP}, s{S_T1}, 9")
    B1 = LP
    g.vissue(f"buffer_load_dwordx2 {vr(B1,2)}, v{V_L8}, {srd(sB)}, s{S_TMP} offen", "b1")
    lb = g.newlab("L_bw")
    e(f"s_cmp_eq_u32 s{S_WA}, 0")
    e(f"s_cbranch_scc0 {lb}")
    e(f"v_and_b32 v{V_TA}, 7, v{V_LANE}")
    e(f"v_lshlrev_b32 v{V_TA}, 3, v{V_TA}")
    e(f"s_lshl_b32 s74, s{S_T1}, 6")
    e(f"s_add_u32 s74, s74, {HFL}")
    if 'S' not in o['abl']:
        flag_poll(V_TA, "s74", o["jsleep"])
    g.lab(lb)
    g.aux_sync()
    ts(8)
    HB = V_WIN
    e(f"v_lshrrev_b32 v{V_TC}, 5, v{V_LANE}")
    e(f"v_and_b32 v{V_TD}, 31, v{V_LANE}")
    e(f"v_lshlrev_b32 v{V_TD}, 4, v{V_TD}")
    if o["contig"]:
        e(f"v_lshl_add_u32 v{V_TD}, v{V_TC}, 14, v{V_TD}")
        e(f"s_lshl_b32 s72, s{S_T1}, 15")
        e(f"s_lshl_b32 s73, s{S_WA}, 10")
        e(f"s_add_u32 s72, s72, s73")
        for bb in range(2):
            for kq in range(4):
                e(f"s_add_u32 s{S_TMP}, s72, {HP + kq*4096 + bb*512}")
                g.vissue(f"buffer_load_dwordx4 {vr(HB+(bb*4+kq)*4)}, v{V_TD}, {srd(sWS)}, s{S_TMP} offen sc1", f"hp{bb*4+kq}")
    else:
        e(f"s_mul_i32 s72, s{S_WA}, {2*3584*4}")
        e(f"s_lshl_b32 s73, s{S_T1}, 10")
        e(f"s_add_u32 s72, s72, s73")
        for bb in range(2):
            for kq in range(4):
                e(f"s_add_u32 s{S_TMP}, s72, {HP + (kq*8+bb)*3584*4}")
                g.vissue(f"buffer_load_dwordx4 {vr(HB+(bb*4+kq)*4)}, v{V_L16}, {srd(sWS)}, s{S_TMP} offen sc1", f"hp{bb*4+kq}")
    T = LE
    g.vwait("b1")
    e(f"v_lshlrev_b32 v{T}, 16, v{B1}")
    e(f"v_and_b32 v{T+1}, s{S_HIM}, v{B1}")
    e(f"v_lshlrev_b32 v{T+2}, 16, v{B1+1}")
    e(f"v_and_b32 v{T+3}, s{S_HIM}, v{B1+1}")
    e(f"s_lshl_b32 s72, s{S_WA}, 13")
    e(f"s_add_u32 s72, s72, {AT2}")
    e(f"v_add_u32 v{V_TD}, s72, v{V_L16}")
    e(f"v_mov_b32 v{V_TA}, 0x3d372713")
    g.vwait("hp7")
    for bb in range(2):
        hb = HB + bb * 16
        for j in range(4):
            x = T + 4 + 4 * bb + j
            t = T + 12 + j
            e(f"v_add_f32 v{x}, v{hb+j}, v{hb+4+j}")
            e(f"v_add_f32 v{x}, v{x}, v{hb+8+j}")
            e(f"v_add_f32 v{x}, v{x}, v{hb+12+j}")
            g.bf16r(x, x)
            e(f"v_add_f32 v{x}, v{x}, v{T+j}")
            g.bf16r(x, x)
            e(f"v_mul_f32 v{t}, v{x}, v{x}")
            e(f"v_mul_f32 v{t}, v{t}, v{x}")
            e(f"v_fma_f32 v{t}, v{t}, v{V_TA}, v{x}")
            e(f"v_mul_f32 v{t}, 0xc0135761, v{t}")
            e(f"v_exp_f32 v{t}, v{t}")
            g.nop(1)
            e(f"v_add_f32 v{t}, 1.0, v{t}")
            e(f"v_rcp_f32 v{t}, v{t}")
            g.nop(1)
            e(f"v_mul_f32 v{x}, v{x}, v{t}")
            e(f"v_cvt_pk_bf16_f32 v{x}, v{x}, v{x}")
        e(f"ds_write_b128 v{V_TD}, {vr(T+4+4*bb)} offset:{bb*4096}")
    e(f"s_lshl_b32 s73, s{S_WA}, 8")
    e(f"s_add_u32 s72, s73, {AT2}")
    e(f"v_add_u32 v{V_TE}, s72, v{V_JOB}")
    g.aux_sync()
    tile_mfma(V_TE, 4, JT, "jt", D)
    job_store_signal("B", 4)
    e("s_branch L_job_done")
    g.role = "C"
    g.lab("L_job_n")
    e(f"s_cmp_eq_u32 s{S_WA}, 0")
    e("s_cbranch_scc0 L_job_done")
    if 'j' in o['abl'] or 'S' in o['abl']:
        e("s_branch L_job_done")
    e("s_lshr_b32 s72, s2, 3")
    e(f"s_sub_u32 s{S_T2}, s72, 28")
    e(f"s_and_b32 s{S_T1}, s2, 7")
    e(f"s_mov_b32 s{sB}, s22\ns_mov_b32 s{sB+1}, s23\ns_mov_b32 s{sB+2}, 2048\ns_mov_b32 s{sB+3}, 0x00020000")
    e(f"s_lshl_b32 s72, s{S_T2}, 9")
    B2R = LP
    e(f"buffer_load_dwordx2 {vr(B2R,2)}, v{V_L8}, {srd(sB)}, s72 offen")
    e(f"v_min_u32 v{V_TA}, 27, v{V_LANE}")
    e(f"v_lshlrev_b32 v{V_TA}, 3, v{V_TA}")
    e(f"s_lshl_b32 s74, s{S_T2}, 8")
    e(f"s_add_u32 s74, s74, {MFL}")
    flag_poll(V_TA, "s74", o["jsleep"])
    ts(9)
    e(f"s_lshl_b32 s72, s{S_T1}, 12")
    e(f"s_lshl_b32 s73, s{S_T2}, 10")
    e("s_add_u32 s72, s72, s73")
    M = V_WIN
    if o["contig"]:
        e(f"v_lshrrev_b32 v{V_TC}, 5, v{V_LANE}")
        e(f"v_and_b32 v{V_TD}, 31, v{V_LANE}")
        e(f"v_lshlrev_b32 v{V_TD}, 4, v{V_TD}")
        e(f"v_lshl_add_u32 v{V_TD}, v{V_TC}, 12, v{V_TD}")
        e(f"s_lshl_b32 s73, s{S_T2}, 13")
        e(f"s_lshl_b32 s74, s{S_T1}, 9")
        e("s_add_u32 s73, s73, s74")
        for ks in range(14):
            e(f"s_add_u32 s{S_TMP}, s73, {MP + ks*8*4096}")
            e(f"buffer_load_dwordx4 {vr(M+4*ks)}, v{V_TD}, {srd(sWS)}, s{S_TMP} offen sc1")
    else:
        for ks in range(14):
            e(f"s_add_u32 s{S_TMP}, s72, {MP + ks*8*4096}")
            e(f"buffer_load_dwordx4 {vr(M+4*ks)}, v{V_L16}, {srd(sWS)}, s{S_TMP} offen sc1")
    e(f"v_lshlrev_b32 v{T}, 16, v{B2R}")
    e(f"v_and_b32 v{T+1}, s{S_HIM}, v{B2R}")
    e(f"v_lshlrev_b32 v{T+2}, 16, v{B2R+1}")
    e(f"v_and_b32 v{T+3}, s{S_HIM}, v{B2R+1}")
    e("s_waitcnt vmcnt(0)")
    for ks in range(1, 14):
        for j in range(4):
            e(f"v_add_f32 v{M+j}, v{M+j}, v{M+4*ks+j}")
    for j in range(4):
        g.bf16r(M + j, M + j)
        e(f"v_add_f32 v{M+j}, v{M+j}, v{T+j}")
        g.bf16r(M + j, M + j)
    e(f"s_add_u32 s{S_TMP}, s72, {BFIN}")
    e(f"buffer_store_dwordx4 {vr(M)}, v{V_L16}, {srd(sWS)}, s{S_TMP} offen sc1")
    e(f"s_lshl_b32 s72, s{S_T1}, 2")
    e(f"s_add_u32 s72, s72, s{S_T2}")
    e("s_lshl_b32 s72, s72, 6")
    e(f"s_add_u32 s72, s72, {BFL}")
    e("s_waitcnt vmcnt(0)")
    flag_set("s72")
    g.lab("L_job_done")
    ts(2)
    if o["wosync"]:
        g.lds_wait_ge(CNT + 20, 1, sleep=64)
    wo_srd()
    for i in range(32):
        wo_issue(i)
    e(f"v_lshrrev_b32 v{V_TD}, 1, v{V_TA16}")
    e(f"s_lshl_b32 s73, s{S_B}, 11")
    XR = LP
    g.vissue(f"buffer_load_dwordx2 {vr(XR,2)}, v{V_TD}, {srd(sX)}, s73 offen", "xf")
    e(f"s_lshl_b32 s74, s{S_B}, 2")
    e(f"s_add_u32 s74, s74, s{S_WA}")
    e("s_lshl_b32 s74, s74, 6")
    e(f"s_add_u32 s74, s74, {BFL}")
    g.vwait_all()
    ts(10)
    if o["late"]:
        g.lds_wait_ge(CNT + 16, 1, sleep=64)
    if 'j' not in o['abl'] and 'S' not in o['abl']:
        flag_poll(V_ZERO, "s74", 64)
    g.vwait_all()
    e(f"s_lshl_b32 s72, s{S_B}, 12")
    e(f"s_add_u32 s72, s72, {BFIN}")
    g.vissue(f"buffer_load_dwordx4 {vr(M)}, v{V_TA16}, {srd(sWS)}, s72 offen sc1", "bf")
    e(f"v_lshlrev_b32 v{T+4}, 16, v{XR}")
    e(f"v_and_b32 v{T+5}, s{S_HIM}, v{XR}")
    e(f"v_lshlrev_b32 v{T+6}, 16, v{XR+1}")
    e(f"v_and_b32 v{T+7}, s{S_HIM}, v{XR+1}")
    e(f"ds_write_b128 v{V_TA16}, {vr(T+4)} offset:{FX}")
    g.vwait("bf")
    e(f"ds_write_b128 v{V_TA16}, {vr(M)} offset:{FB}")
    ts(3)
    e("s_branch L_tail")
    return g


HEADER = open("cdna_kernels/" + NAME + ".s.ref").read().split("; Override launch geometry")[0]
BLOCK = 512


def full_asm(opt=None):
    g = build(opt)
    s = HEADER
    s += "; generated by gen/gen6.py\n"
    s += f"; @launch grid=(256,1,1) block=({BLOCK},1,1) lds={LDS_BYTES}\n"
    s += '.amdgcn_target "amdgcn-amd-amdhsa--gfx950"\n.text\n'
    s += f".globl {KNAME}\n.p2align 8\n.type {KNAME},@function\n{KNAME}:\n"
    s += "\n".join(g.L) + "\n"
    s += f""".section .rodata,"a"
.p2align 6
.amdhsa_kernel {KNAME}
  .amdhsa_next_free_vgpr 256
  .amdhsa_next_free_sgpr 102
  .amdhsa_accum_offset 128
  .amdhsa_group_segment_fixed_size 0
  .amdhsa_kernarg_size 104
  .amdhsa_user_sgpr_count 2
  .amdhsa_user_sgpr_kernarg_segment_ptr 1
  .amdhsa_system_sgpr_workgroup_id_x 1
.end_amdhsa_kernel
"""
    return s


if __name__ == "__main__":
    out = "cdna_kernels/" + NAME + ".s"
    open(out, "w").write(full_asm())
    print("wrote", out, os.path.getsize(out))
```

```python
import sys, json
sys.path.insert(0,'gen')
import gen6 as gen
from common import *
def mk(name, opt):
    s = gen.full_asm(opt)
    s += meta([(gen.KNAME, 102, 256, gen.BLOCK)])
    build(s, name)
    return f"{name},{gen.KNAME},256,{gen.BLOCK},{gen.LDS_BYTES}"
if __name__=='__main__':
    variants = json.loads(sys.argv[1])
    specs=[mk(n+'.co', o) for n,o in variants.items()]
    open('specs.txt','w').write(' '.join(specs))
    print(json.dumps(["bench/bench","bench/specs.txt"]+["bench/"+s.split(',')[0] for s in specs]))
    print(json.dumps(["bench/"+s.split(',')[0]+".ts" for s in specs]))
```

```python
import sys, os

NAME = "parallel_sum__mha_block_cached__mixer_channel_mlp__decode"
KNAME = NAME + "_kernel"

OPT = dict(
    stream_flag="nt",
    w_flag="nt",
    ws_flag="nt",
    ts=False,
    apf=32,
    depth=16,
    auxprio=3,
    late=True,
    dsleep=12,
    contig=True,
    wosync=True,
    qflag1=True,
    abl='',
    jsleep=64,
    spread=True,
    din=8,
)

PD = 0
OP = 16384
OD = 18432
FB = 22528
FX = 26624
QB = 30720
SM = 30976
CNT = 31040
RED = 32768
AT = 49152
AT2 = 81920
LDS_BYTES = 114688

HP = 0
MP = 0x80000
AP = 0x400000
QPW = 0x200000
QFL = 0x300000
HFL = QFL + 0x2000
MFL = QFL + 0x3000
BFL = QFL + 0x4000
DFL = QFL + 0x5000
BFIN = QFL + 0x8000
WS_BYTES = 0x600000
TS_OFF = 0x600000

sK, sV, sW, sX, sWS, sDBG, sB, sO = 32, 36, 40, 44, 48, 52, 56, 60
S_W, S_B, S_H, S_ROLE, S_T1, S_T2, S_OFF, S_TMP = 64, 65, 66, 67, 68, 69, 70, 71
S_NON = 76
S_WA = 78
S_XT = 79
S_ODD, S_TWO = 80, 82
S_RL = 86
S_SELLO, S_SELHI, S_HIM = 90, 91, 92
S_TS = 94
S_HI = 84


def srd(n):
    return f"s[{n}:{n+3}]"


def vr(a, n=4):
    return f"v[{a}:{a+n-1}]"


def ar(a, n=4):
    return f"a[{a}:{a+n-1}]"


V_LANE, V_G, V_C, V_L16, V_L32, V_L8, V_ZERO = 1, 2, 3, 4, 5, 6, 7
V_MASK = 8
V_DW, V_W2K = 12, 13
V_TA, V_TB, V_TC, V_TD, V_TE, V_TF = 14, 15, 16, 17, 18, 19
V_DUPO = 20
V_X1, V_X2, V_X3 = 21, 22, 23
LP, LE, LT = 24, 32, 48
V_ACC = 28
V_Q = 24
V_DUP = 32
V_FRAG = 40
V_A = 32
V_D = 48
V_WIN = 64
DEPTH = 16
V_KV, V_DUPP, V_PDW = V_X1, V_X2, V_X3
V_M = 63
V_JOB, V_REDW, V_TA16 = V_X1, V_X2, V_X3
V_NON, V_FLG = V_TE, V_TC
V_NONL = 120
V_FX, V_FB = 24, 26


class G:
    def __init__(self):
        self.L = []
        self.vm = {"C": [], "A": [], "B": []}
        self.role = "C"
        self.nlab = 0

    def e(self, s):
        for ln in s.split("\n"):
            self.L.append("  " + ln.strip())

    def lab(self, l):
        self.L.append(l + ":")

    def newlab(self, p="L"):
        self.nlab += 1
        return f"{p}_{self.nlab}"

    def nop(self, n):
        while n > 0:
            k = min(n, 16)
            self.e(f"s_nop {k-1}")
            n -= k

    def _roles(self):
        return list(self.vm.keys()) if self.role == "C" else [self.role]

    def vissue(self, instr, tag):
        worst = max(len(self.vm[r]) for r in self._roles())
        if worst >= 63:
            self._wait_n(61)
        self.e(instr)
        for r in self._roles():
            self.vm[r].append(tag)

    def _wait_n(self, n):
        self.e(f"s_waitcnt vmcnt({n})")
        for r in self._roles():
            f = self.vm[r]
            self.vm[r] = [] if n == 0 else f[-n:]

    def vwait(self, tag):
        f = self.vm[self.role]
        if tag not in f:
            return
        self._wait_n(len(f) - 1 - f.index(tag))

    def vwait_all(self):
        self._wait_n(0)

    def vm_save(self):
        return {k: list(v) for k, v in self.vm.items()}

    def vm_restore(self, s):
        self.vm = {k: list(v) for k, v in s.items()}

    def wave_reduce(self, T, op):
        for r in (8, 4, 2, 1):
            self.nop(2)
            self.e(f"v_{op}_f32_dpp v{T}, v{T}, v{T} row_ror:{r} row_mask:0xf bank_mask:0xf")
        self.nop(1)
        for i in range(4):
            self.e(f"v_readlane_b32 s{S_RL+i}, v{T}, {16*i}")
        self.nop(2)
        self.e(f"v_mov_b32 v{T}, s{S_RL}")
        for i in range(1, 4):
            self.e(f"v_{op}_f32 v{T}, s{S_RL+i}, v{T}")

    def bf16r(self, dst, src):
        self.e(f"v_cvt_pk_bf16_f32 v{dst}, v{src}, v{src}")
        self.e(f"v_lshlrev_b32 v{dst}, 16, v{dst}")

    def ln_unpack(self, P, E):
        for j in range(8):
            self.e(f"v_lshlrev_b32 v{E+2*j}, 16, v{P+j}")
            self.e(f"v_and_b32 v{E+2*j+1}, s{S_HIM}, v{P+j}")

    def ln_core(self, DST, E, T):
        e = self.e
        e(f"v_add_f32 v{T}, v{E}, v{E+1}")
        e(f"v_add_f32 v{T+1}, v{E+2}, v{E+3}")
        e(f"v_add_f32 v{T+2}, v{E+4}, v{E+5}")
        e(f"v_add_f32 v{T+3}, v{E+6}, v{E+7}")
        for j in range(4):
            e(f"v_add_f32 v{T+j}, v{T+j}, v{E+8+2*j}")
            e(f"v_add_f32 v{T+j}, v{T+j}, v{E+9+2*j}")
        e(f"v_add_f32 v{T}, v{T}, v{T+1}")
        e(f"v_add_f32 v{T+2}, v{T+2}, v{T+3}")
        e(f"v_add_f32 v{T}, v{T}, v{T+2}")
        self.wave_reduce(T, "add")
        e(f"v_mul_f32 v{T}, 0x3a800000, v{T}")
        self.bf16r(T + 1, T)
        e(f"v_mov_b32 v{T+2}, 0")
        e(f"v_mov_b32 v{T+3}, 0")
        for j in range(16):
            e(f"v_sub_f32 v{T+4+(j&1)}, v{E+j}, v{T}")
            e(f"v_fmac_f32 v{T+2+(j&1)}, v{T+4+(j&1)}, v{T+4+(j&1)}")
        e(f"v_add_f32 v{T+2}, v{T+2}, v{T+3}")
        self.wave_reduce(T + 2, "add")
        e(f"v_mul_f32 v{T+2}, 0x3a800000, v{T+2}")
        self.bf16r(T + 2, T + 2)
        e(f"v_add_f32 v{T+2}, 0x3727c5ac, v{T+2}")
        self.bf16r(T + 2, T + 2)
        e(f"v_sqrt_f32 v{T+2}, v{T+2}")
        self.nop(1)
        self.bf16r(T + 2, T + 2)
        e(f"v_rcp_f32 v{T+3}, v{T+2}")
        self.nop(1)
        for j in range(8):
            a, b = E + 2 * j, E + 2 * j + 1
            e(f"v_sub_f32 v{a}, v{a}, v{T+1}")
            e(f"v_sub_f32 v{b}, v{b}, v{T+1}")
            e(f"v_cvt_pk_bf16_f32 v{T+4}, v{a}, v{b}")
            e(f"v_lshlrev_b32 v{a}, 16, v{T+4}")
            e(f"v_and_b32 v{b}, s{S_HIM}, v{T+4}")
            e(f"v_mul_f32 v{T+4}, v{a}, v{T+3}")
            e(f"v_mul_f32 v{T+5}, v{b}, v{T+3}")
            e(f"v_fma_f32 v{T+6}, -v{T+4}, v{T+2}, v{a}")
            e(f"v_fma_f32 v{T+7}, -v{T+5}, v{T+2}, v{b}")
            e(f"v_fmac_f32 v{T+4}, v{T+6}, v{T+3}")
            e(f"v_fmac_f32 v{T+5}, v{T+7}, v{T+3}")
            e(f"v_cvt_pk_bf16_f32 v{DST+j}, v{T+4}, v{T+5}")

    def write_dup_row(self, P, E, vaddr, base):
        for j in range(8):
            self.e(f"v_perm_b32 v{E+2*j}, v{P+j}, v{P+j}, s{S_SELLO}")
            self.e(f"v_perm_b32 v{E+2*j+1}, v{P+j}, v{P+j}, s{S_SELHI}")
        for k in range(4):
            off = base + (k >> 1) * 2048 + (k & 1) * 16
            self.e(f"ds_write_b128 v{vaddr}, {vr(E+4*k)} offset:{off}")

    def frag(self, fr, dup):
        for j in range(4):
            self.e(f"v_and_b32 v{fr+j}, v{dup}, v{V_MASK+j}")

    def mfma(self, D, fr, B):
        self.e(f"v_mfma_f32_16x16x32_bf16 {vr(D)}, {vr(fr)}, {B}, {vr(D)}")

    def lds_wait_ge(self, off, target, sleep=1):
        sp = self.newlab("L_lspin")
        self.lab(sp)
        self.e(f"ds_read_b32 v{V_TF}, v{V_ZERO} offset:{off}")
        self.e("s_waitcnt lgkmcnt(0)")
        self.e(f"v_readfirstlane_b32 s72, v{V_TF}")
        self.nop(1)
        self.e(f"s_cmp_ge_u32 s72, {target}")
        self.e(f"s_cbranch_scc1 {sp}_ok")
        if sleep:
            self.e(f"s_sleep {sleep}")
        self.e(f"s_branch {sp}")
        self.lab(sp + "_ok")

    def lds_arrive(self, off):
        self.e("s_waitcnt lgkmcnt(0)")
        self.e("s_mov_b64 exec, 1")
        self.e(f"v_mov_b32 v{V_TF}, 1")
        self.e(f"ds_add_u32 v{V_ZERO}, v{V_TF} offset:{off}")
        self.e("s_mov_b64 exec, -1")

    def aux_sync(self):
        self.lds_arrive(CNT)
        self.e(f"s_add_u32 s{S_XT}, s{S_XT}, 4")
        self.lds_wait_ge(CNT, f"s{S_XT}", sleep=0)


def build(opt=None):
    o = dict(OPT)
    if opt:
        o.update(opt)
    SF, WF, WSF = o["stream_flag"], o["w_flag"], o["ws_flag"]
    APF = o["apf"]
    DEPTH = o["depth"]
    g = G()
    e = g.e

    tsv = [62]

    def ts(i):
        if not o["ts"]:
            return
        if i == 0:
            e(f"s_memrealtime s[{S_TS}:{S_TS+1}]")
            return
        e(f"s_memrealtime s[{S_TS+2}:{S_TS+3}]")
        e("s_waitcnt lgkmcnt(0)")
        e(f"v_mov_b32 v{tsv[0]}, s{S_TS+2}")
        e(f"s_mov_b32 s{sWS+2}, 0x680000")
        e(f"s_lshl_b32 s{S_TS+2}, s2, 9\ns_lshl_b32 s{S_TS+3}, s{S_W}, 6\ns_add_u32 s{S_TS+2}, s{S_TS+2}, s{S_TS+3}\ns_add_u32 s{S_TS+2}, s{S_TS+2}, {TS_OFF}")
        e(f"buffer_store_dword v{tsv[0]}, v{V_ZERO}, {srd(sWS)}, s{S_TS+2} offen offset:{4*i}")
        if i == 15:
            e(f"v_mov_b32 v{tsv[0]}, s{S_TS}")
            e(f"buffer_store_dword v{tsv[0]}, v{V_ZERO}, {srd(sWS)}, s{S_TS+2} offen offset:0")

    def flag_poll(vaddr, soff, sleep):
        ok = g.newlab("L_ok")
        sp = g.newlab("L_spin")
        e("s_mov_b32 s75, 0")
        g.lab(sp)
        e(f"buffer_load_dwordx2 {vr(V_FLG,2)}, v{vaddr}, {srd(sWS)}, {soff} offen sc1")
        e("s_waitcnt vmcnt(0)")
        e(f"v_cmp_ne_u64 vcc, s[{S_NON}:{S_NON+1}], {vr(V_FLG,2)}")
        e("s_add_u32 s75, s75, 1")
        e("s_cmp_ge_u32 s75, 0x40000")
        e(f"s_cbranch_scc1 {ok}")
        g.nop(2)
        e(f"s_cbranch_vccz {ok}")
        if sleep:
            e(f"s_sleep {sleep}")
        e(f"s_branch {sp}")
        g.lab(ok)

    def gather_poll(soff_base, stride, SA, SB, OUT, boff=0):
        def issue(S, off):
            for k in range(8):
                e(f"s_add_u32 s{S_TMP}, {soff_base}, {k*stride + off}")
                e(f"buffer_load_dwordx4 {vr(S+4*k)}, v{V_L16}, {srd(sWS)}, s{S_TMP} offen sc1")

        def check(S, oklab):
            e("s_waitcnt vmcnt(8)")
            e("s_mov_b64 s[74:75], 0")
            for k in range(8):
                e(f"v_cmp_ne_u64 vcc, s[{S_NON}:{S_NON+1}], {vr(S+4*k+2,2)}")
                g.nop(1)
                e("s_or_b64 s[74:75], s[74:75], vcc")
            e("s_cmp_eq_u64 s[74:75], 0")
            e(f"s_cbranch_scc1 {oklab}")
        lp = g.newlab("L_gp")
        e("s_mov_b32 s73, 0")
        issue(SA, 0)
        g.lab(lp)
        issue(SB, 0)
        check(SA, lp + "_a")
        issue(SA, 0)
        check(SB, lp + "_b")
        if boff:
            issue(SB, boff)
            check(SA, lp + "_a")
            issue(SA, 0)
            check(SB, lp + "_b")
        e("s_add_u32 s73, s73, 1")
        e("s_cmp_lt_u32 s73, 0x20000")
        e(f"s_cbranch_scc1 {lp}")
        for nm, S in (("_b", SB), ("_a", SA)):
            g.lab(lp + nm)
            e(f"v_add_f32 v{OUT}, v{S}, v{S+4}")
            e(f"v_add_f32 v{OUT+1}, v{S+1}, v{S+5}")
            for k in range(2, 8):
                e(f"v_add_f32 v{OUT}, v{OUT}, v{S+4*k}")
                e(f"v_add_f32 v{OUT+1}, v{OUT+1}, v{S+4*k+1}")
            if nm == "_b":
                e(f"s_branch {lp}_done")
        g.lab(lp + "_done")

    def flag_set(soff):
        e(f"v_mov_b32 v{V_NON}, s{S_NON}")
        e(f"v_mov_b32 v{V_NON+1}, s{S_NON+1}")
        e("s_mov_b64 exec, 1")
        e(f"buffer_store_dwordx2 {vr(V_NON,2)}, v{V_ZERO}, {srd(sWS)}, {soff} offen sc1")
        e("s_mov_b64 exec, -1")

    e("s_cmp_ge_u32 s2, 256")
    e("s_cbranch_scc1 L_done")
    e("s_load_dwordx16 s[4:19], s[0:1], 0")
    e("s_load_dwordx8 s[20:27], s[0:1], 64")
    e("s_load_dwordx2 s[28:29], s[0:1], 96")
    ts(0)
    e(f"v_and_b32 v{V_LANE}, 63, v0")
    e(f"v_lshrrev_b32 v{V_TC}, 6, v0")
    e(f"v_lshrrev_b32 v{V_G}, 4, v{V_LANE}")
    e(f"v_readfirstlane_b32 s{S_W}, v{V_TC}")
    e(f"v_and_b32 v{V_C}, 15, v{V_LANE}")
    e(f"v_lshlrev_b32 v{V_L16}, 4, v{V_LANE}")
    e(f"v_lshlrev_b32 v{V_L32}, 5, v{V_LANE}")
    e(f"v_lshlrev_b32 v{V_L8}, 3, v{V_LANE}")
    e(f"v_mov_b32 v{V_ZERO}, 0")
    e(f"v_lshlrev_b32 v{V_TB}, 4, v{V_C}")
    e(f"v_lshl_add_u32 v{V_W2K}, v{V_G}, 13, v{V_TB}")
    e(f"s_and_b32 s{S_H}, s2, 31")
    e(f"s_lshr_b32 s{S_B}, s2, 5")
    e(f"s_and_b32 s{S_WA}, s{S_W}, 3")
    e(f"s_mov_b32 s{S_SELLO}, 0x01000100")
    e(f"s_mov_b32 s{S_SELHI}, 0x03020302")
    e(f"s_mov_b32 s{S_HIM}, 0xffff0000")
    e(f"s_mov_b32 s{S_ODD}, 0xaaaaaaaa")
    e(f"s_mov_b32 s{S_ODD+1}, 0xaaaaaaaa")
    e(f"s_mov_b32 s{S_TWO}, 0xcccccccc")
    e(f"s_mov_b32 s{S_TWO+1}, 0xcccccccc")
    e(f"s_mov_b32 s{S_XT}, 0")
    e("s_waitcnt lgkmcnt(0)")
    e(f"s_mov_b32 s{sX}, s4\ns_mov_b32 s{sX+1}, s5\ns_mov_b32 s{sX+2}, 16384\ns_mov_b32 s{sX+3}, 0x00020000")
    e(f"s_lshl_b32 s{S_TMP}, s{S_W}, 11")
    g.vissue(f"buffer_load_dwordx4 {vr(LP)}, v{V_L16}, {srd(sX)}, s{S_TMP} offen", "x0")
    g.vissue(f"buffer_load_dwordx4 {vr(LP+4)}, v{V_L16}, {srd(sX)}, s{S_TMP} offen offset:1024", "x1")
    e(f"s_mov_b32 s{sDBG}, s26\ns_mov_b32 s{sDBG+1}, s27\ns_mov_b32 s{sDBG+2}, 256\ns_mov_b32 s{sDBG+3}, 0x00020000")
    e(f"s_mov_b32 s{sWS}, s28\ns_mov_b32 s{sWS+1}, s29\ns_mov_b32 s{sWS+2}, {WS_BYTES}\ns_mov_b32 s{sWS+3}, 0x00020000")
    e(f"s_mov_b32 s{sW+3}, 0x00020000")
    e(f"s_cmp_ge_u32 s{S_W}, 4")
    e("s_cbranch_scc1 L_aux_pro")

    def common_consts():
        e(f"s_mov_b32 s{sO}, s24\ns_mov_b32 s{sO+1}, s25\ns_mov_b32 s{sO+2}, 16384\ns_mov_b32 s{sO+3}, 0x00020000")
        e(f"v_and_b32 v{V_TA}, 1, v{V_C}")
        e(f"v_lshlrev_b32 v{V_TA}, 4, v{V_TA}")
        e(f"v_mov_b32 v{V_TB}, 0xffff")
        e(f"v_lshlrev_b32 v{V_TB}, v{V_TA}, v{V_TB}")
        e(f"v_bfe_u32 v{V_TA}, v{V_C}, 1, 2")
        for j in range(4):
            e(f"v_cmp_eq_u32 vcc, {j}, v{V_TA}")
            g.nop(2)
            e(f"v_cndmask_b32 v{V_MASK+j}, 0, v{V_TB}, vcc")
        e(f"v_lshlrev_b32 v{V_TA}, 4, v{V_G}")
        e(f"v_lshl_add_u32 v{V_DUPO}, v{V_TC}, 9, v{V_TA}")
        e(f"v_and_b32 v{V_TB}, 1, v{V_G}")
        e(f"v_lshlrev_b32 v{V_TB}, 4, v{V_TB}")
        e(f"v_lshl_add_u32 v{V_DW}, v{V_C}, 5, v{V_TB}")

    def ln_own_row():
        e(f"s_lshl_b32 s72, s{S_W}, 12")
        e(f"s_add_u32 s72, s72, {AT}")
        e(f"v_add_u32 v{V_TD}, s72, v{V_L32}")
        g.vwait("x1")
        g.ln_unpack(LP, LE)
        g.ln_core(LP, LE, LT)
        g.write_dup_row(LP, LE, V_TD, 0)
        e("s_waitcnt lgkmcnt(0)")
        e("s_barrier")

    def wo_srd():
        e(f"s_lshl_b32 s72, s{S_H}, 18")
        e(f"s_lshl_b32 s73, s{S_W}, 8")
        e("s_add_u32 s72, s72, s73")
        e(f"s_add_u32 s{sW}, s12, s72\ns_addc_u32 s{sW+1}, s13, 0\ns_sub_u32 s{sW+2}, 0x800000, s72")

    def wo_issue(i):
        if 'w' in o['abl']:
            return
        e(f"s_mov_b32 s{S_TMP}, {(16*(i>>2)+(i&3))*2048}")
        g.vissue(f"buffer_load_dwordx4 {ar(4*i)}, v{V_W2K}, {srd(sW)}, s{S_TMP} offen {WSF}", f"wo{i}")

    vm0 = g.vm_save()

    e("s_lshl_b32 s72, s2, 20")
    e(f"s_add_u32 s{sK}, s6, s72\ns_addc_u32 s{sK+1}, s7, 0\ns_mov_b32 s{sK+2}, 0x100000\ns_mov_b32 s{sK+3}, 0x00020000")
    e(f"s_add_u32 s{sV}, s8, s72\ns_addc_u32 s{sV+1}, s9, 0\ns_mov_b32 s{sV+2}, 0x100000\ns_mov_b32 s{sV+3}, 0x00020000")
    e(f"v_lshl_add_u32 v{V_KV}, v{V_TC}, 12, v{V_L16}")
    e(f"s_mov_b32 s{S_OFF}, 0")

    def dest(L):
        if L < APF:
            return ("a", 4 * L)
        return ("v", V_WIN + 4 * ((L - APF) % DEPTH))

    def stream_issue(L):
        if L >= 512:
            return
        if L == 256:
            e(f"s_mov_b32 s{S_OFF}, 0")
        sd = sK if L < 256 else sV
        k, r = dest(L)
        d = ar(r) if k == "a" else vr(r)
        g.vissue(f"buffer_load_dwordx4 {d}, v{V_KV}, {srd(sd)}, s{S_OFF} offen offset:{(L&3)*1024} {SF}", f"S{L}")
        if L & 3 == 3:
            e(f"s_add_u32 s{S_OFF}, s{S_OFF}, 16384")

    DIN = o["din"]
    for L in range(DIN):
        stream_issue(L)
    common_consts()
    lb = g.newlab("L_ci")
    e(f"s_cmp_eq_u32 s{S_W}, 0")
    e(f"s_cbranch_scc0 {lb}")
    for j in range(4):
        e(f"v_mov_b32 v{V_TA+j}, 0")
    e(f"ds_write_b128 v{V_ZERO}, {vr(V_TA)} offset:{CNT}")
    e(f"ds_write_b128 v{V_ZERO}, {vr(V_TA)} offset:{CNT+16}")
    g.lab(lb)
    e(f"v_lshrrev_b32 v{V_TC}, 6, v0")
    e(f"v_lshlrev_b32 v{V_TA}, 4, v{V_G}")
    e(f"v_lshl_add_u32 v{V_DUPP}, v{V_TC}, 12, v{V_TA}")
    e(f"v_bfe_u32 v{V_TB}, v{V_C}, 1, 1")
    e(f"v_lshl_add_u32 v{V_PDW}, v{V_TB}, 7, v{V_DUPP}")
    e(f"v_and_b32 v{V_TB}, 1, v{V_C}")
    e(f"v_lshl_add_u32 v{V_PDW}, v{V_TB}, 6, v{V_PDW}")
    e(f"v_bfe_u32 v{V_TB}, v{V_C}, 2, 1")
    e(f"v_lshl_add_u32 v{V_PDW}, v{V_TB}, 3, v{V_PDW}")
    e(f"v_lshrrev_b32 v{V_TB}, 3, v{V_C}")
    e(f"v_lshl_add_u32 v{V_PDW}, v{V_TB}, 2, v{V_PDW}")
    ln_own_row()
    for L in range(DIN, APF + DEPTH):
        g.vwait(f"S{L-DIN}")
        stream_issue(L)
    if 'q' not in o['abl']:
        g.lds_wait_ge(CNT + 8, 1, sleep=2)
    e(f"v_lshlrev_b32 v{V_TA}, 4, v{V_C}")
    e(f"ds_read_b128 {vr(V_Q)}, v{V_TA} offset:{QB}")
    e(f"v_mov_b32 v{V_M}, 0xff800000")
    e("s_waitcnt lgkmcnt(0)")
    ts(1)
    nxt_issue = APF + DEPTH
    for beta in range(16):
        for t in range(16):
            L = 16 * beta + t
            k, r = dest(L)
            g.vwait(f"S{L}")
            if k == "a":
                for j in range(4):
                    e(f"v_accvgpr_read_b32 v{V_D+j + 4*(t&1)}, a{r+j}")
                r = V_D + 4 * (t & 1)
            e(f"v_dot2_f32_bf16 v{V_A+t}, v{r}, v{V_Q}, 0")
            for j in range(1, 4):
                e(f"v_dot2_f32_bf16 v{V_A+t}, v{r+j}, v{V_Q+j}, v{V_A+t}")
            if k == "v":
                stream_issue(nxt_issue)
                nxt_issue += 1
        g.nop(3)
        A = V_A
        for p in range(8):
            e(f"v_add_f32_dpp v{A+2*p}, v{A+2*p}, v{A+2*p} row_ror:8 row_mask:0xf bank_mask:0x3")
            e(f"v_add_f32_dpp v{A+2*p}, v{A+2*p+1}, v{A+2*p+1} row_ror:8 row_mask:0xf bank_mask:0xc")
        for p in range(4):
            e(f"v_add_f32_dpp v{A+4*p}, v{A+4*p}, v{A+4*p} row_shl:4 row_mask:0xf bank_mask:0x5")
            e(f"v_add_f32_dpp v{A+4*p}, v{A+4*p+2}, v{A+4*p+2} row_shr:4 row_mask:0xf bank_mask:0xa")
        g.nop(1)
        for p in range(4):
            e(f"v_add_f32_dpp v{A+4*p}, v{A+4*p}, v{A+4*p} quad_perm:[1,0,3,2] row_mask:0xf bank_mask:0xf")
        for p in range(2):
            e(f"v_cndmask_b32 v{A+8*p}, v{A+8*p}, v{A+8*p+4}, s[{S_ODD}:{S_ODD+1}]")
        g.nop(1)
        for p in range(2):
            e(f"v_add_f32_dpp v{A+8*p}, v{A+8*p}, v{A+8*p} quad_perm:[2,3,0,1] row_mask:0xf bank_mask:0xf")
        e(f"v_cndmask_b32 v{V_TA}, v{A}, v{A+8}, s[{S_TWO}:{S_TWO+1}]")
        g.bf16r(V_TA, V_TA)
        e(f"v_mul_f32 v{V_TA}, 0x3db504f3, v{V_TA}")
        g.bf16r(V_TA, V_TA)
        e(f"v_max_f32 v{V_M}, v{V_M}, v{V_TA}")
        e(f"ds_write_b32 v{V_PDW}, v{V_TA} offset:{PD + beta*256}")
    ts(2)
    LOG2E = "0x3fb8aa3b"
    S = V_A
    for k in range(16):
        e(f"ds_read_b32 v{S+k}, v{V_PDW} offset:{PD + k*256}")
    g.wave_reduce(V_M, "max")
    e(f"v_mov_b32 v{V_TE}, 0")
    e("s_waitcnt lgkmcnt(0)")
    for k in range(16):
        t = V_TA + (k & 1)
        e(f"v_sub_f32 v{t}, v{S+k}, v{V_M}")
        e(f"v_mul_f32 v{t}, {LOG2E}, v{t}")
        e(f"v_exp_f32 v{t}, v{t}")
        g.nop(1)
        e(f"v_add_f32 v{V_TE}, v{V_TE}, v{t}")
    g.wave_reduce(V_TE, "add")
    e(f"v_mov_b32 v{V_TA}, v{V_M}")
    e(f"v_mov_b32 v{V_TB}, v{V_TE}")
    e(f"s_lshl_b32 s72, s{S_W}, 3")
    e(f"v_mov_b32 v{V_TC}, s72")
    e(f"ds_write_b64 v{V_TC}, v[{V_TA}:{V_TB}] offset:{SM}")
    g.lds_arrive(CNT + 4)
    g.lds_wait_ge(CNT + 4, 4, sleep=0)
    X = V_D
    e(f"ds_read_b128 {vr(X)}, v{V_ZERO} offset:{SM}")
    e(f"ds_read_b128 {vr(X+4)}, v{V_ZERO} offset:{SM+16}")
    e("s_waitcnt lgkmcnt(0)")
    e(f"v_max3_f32 v{V_TC}, v{X}, v{X+2}, v{X+4}")
    e(f"v_max_f32 v{V_TC}, v{V_TC}, v{X+6}")
    e(f"v_mov_b32 v{V_TE}, 0")
    for w in range(4):
        e(f"v_sub_f32 v{V_TA}, v{X+2*w}, v{V_TC}")
        e(f"v_mul_f32 v{V_TA}, {LOG2E}, v{V_TA}")
        e(f"v_exp_f32 v{V_TA}, v{V_TA}")
        g.nop(1)
        e(f"v_fmac_f32 v{V_TE}, v{V_TA}, v{X+2*w+1}")
    e(f"v_rcp_f32 v{V_TD}, v{V_TE}")
    g.nop(1)
    e(f"v_fma_f32 v{V_TA}, -v{V_TE}, v{V_TD}, 1.0")
    e(f"v_fmac_f32 v{V_TD}, v{V_TA}, v{V_TD}")
    for k in range(16):
        t = S + k
        e(f"v_sub_f32 v{t}, v{t}, v{V_TC}")
        e(f"v_mul_f32 v{t}, {LOG2E}, v{t}")
        e(f"v_exp_f32 v{t}, v{t}")
        g.nop(1)
        e(f"v_mul_f32 v{t}, v{t}, v{V_TD}")
        e(f"v_cvt_pk_bf16_f32 v{t}, v{t}, v{t}")
        e(f"ds_write_b32 v{V_PDW}, v{t} offset:{PD + k*256}")
    for j in range(4):
        e(f"v_mov_b32 v{V_ACC+j}, 0")
    wo_srd()
    e("s_waitcnt lgkmcnt(0)")
    e(f"ds_read_b128 {vr(V_DUP)}, v{V_DUPP} offset:{PD}")
    for n in range(64):
        cur = V_DUP + 4 * (n & 1)
        nxt = V_DUP + 4 * ((n + 1) & 1)
        e("s_waitcnt lgkmcnt(0)")
        if n < 63:
            e(f"ds_read_b128 {vr(nxt)}, v{V_DUPP} offset:{PD + (n+1)*64}")
        for d in range(4):
            L = 256 + 4 * n + d
            k, r = dest(L)
            fr = V_FRAG + 4 * (d & 1)
            g.frag(fr, cur + d)
            g.vwait(f"S{L}")
            g.nop(2)
            g.mfma(V_ACC, fr, vr(r))
            stream_issue(nxt_issue)
            nxt_issue += 1
        if 4 <= n < 36:
            wo_issue(n - 4)
        if n == 3 and o["wosync"]:
            g.lds_arrive(CNT + 20)
        if n == 24 and o["late"]:
            g.lds_arrive(CNT + 16)
    ts(3)
    g.nop(10)
    e(f"s_lshl_b32 s72, s{S_W}, 9")
    e(f"v_add_u32 v{V_TA}, s72, v{V_DW}")
    e(f"ds_write_b128 v{V_TA}, {vr(V_ACC)} offset:{OP}")

    g.lab("L_tail")
    e("s_waitcnt vmcnt(0) lgkmcnt(0)")
    g.vm = {"C": [], "A": [], "B": []}
    e("s_barrier")
    R = V_D
    for w in range(4):
        e(f"ds_read_b64 {vr(R+2*w,2)}, v{V_L8} offset:{OP + w*512}")
    e(f"ds_read_b64 {vr(R+8,2)}, v{V_ZERO} offset:{CNT+24}")
    e(f"s_lshl_b32 s72, s{S_W}, 9")
    e(f"v_add_u32 v{V_TD}, s72, v{V_L8}")
    lb = g.newlab("L_pf")
    e(f"s_cmp_eq_u32 s{S_W}, 4")
    e(f"s_cbranch_scc0 {lb}")
    e("s_lshl_b32 s72, s2, 3")
    e(f"s_add_u32 s72, s72, {DFL}")
    flag_set("s72")
    g.lab(lb)
    e("s_waitcnt lgkmcnt(0)")
    for j in range(2):
        e(f"v_add_f32 v{R+j}, v{R+j}, v{R+2+j}")
        e(f"v_add_f32 v{R+4+j}, v{R+4+j}, v{R+6+j}")
        e(f"v_add_f32 v{R+j}, v{R+j}, v{R+4+j}")
        e(f"v_cvt_pk_bf16_f32 v{R+j}, v{R+j}, v{R+j}")
    e(f"ds_write_b64 v{V_TD}, {vr(R,2)} offset:{OD}")
    for j in range(4):
        e(f"v_mov_b32 v{V_ACC+j}, 0")
    e("s_waitcnt lgkmcnt(0)")
    e(f"ds_read_b128 {vr(V_DUP)}, v{V_DUPO} offset:{OD}")
    e(f"v_lshrrev_b32 v{V_TA}, 2, v{V_C}")
    e(f"s_lshl_b32 s72, s{S_W}, 2")
    e(f"v_add_u32 v{V_TA}, s72, v{V_TA}")
    e(f"v_lshlrev_b32 v{V_TA}, 13, v{V_TA}")
    e(f"v_and_b32 v{V_TB}, 3, v{V_C}")
    e(f"v_lshl_add_u32 v{V_TA}, v{V_TB}, 6, v{V_TA}")
    e(f"v_and_b32 v{V_TB}, 1, v{V_G}")
    e(f"v_lshl_add_u32 v{V_TA}, v{V_TB}, 5, v{V_TA}")
    e(f"v_lshrrev_b32 v{V_TB}, 1, v{V_G}")
    e(f"v_lshl_add_u32 v{V_TA}, v{V_TB}, 4, v{V_TA}")
    e(f"s_lshl_b32 s{S_TMP}, s{S_B}, 18")
    e(f"s_lshl_b32 s72, s{S_H}, 8")
    e(f"s_add_u32 s{S_TMP}, s{S_TMP}, s72")
    e(f"s_add_u32 s{S_TMP}, s{S_TMP}, {AP}")
    e(f"s_mov_b32 s{S_HI}, 0")
    e(f"s_mov_b32 s{S_HI+1}, -1")
    for i4 in range(8):
        cur = V_DUP + 4 * (i4 & 1)
        nxt = V_DUP + 4 * ((i4 + 1) & 1)
        e("s_waitcnt lgkmcnt(0)")
        if i4 < 7:
            e(f"ds_read_b128 {vr(nxt)}, v{V_DUPO} offset:{OD + (i4+1)*64}")
        for ii in range(4):
            i = 4 * i4 + ii
            fr = V_FRAG + 4 * (i & 1)
            g.frag(fr, cur + ii)
            g.nop(2)
            g.mfma(V_ACC, fr, ar(4 * i))
    g.nop(10)
    e(f"v_cndmask_b32 v{R+6}, v{V_ACC}, v{V_ACC+2}, s[{S_HI}:{S_HI+1}]")
    e(f"v_cndmask_b32 v{R+7}, v{V_ACC+1}, v{V_ACC+3}, s[{S_HI}:{S_HI+1}]")
    e(f"buffer_store_dwordx4 {vr(R+6)}, v{V_TA}, {srd(sWS)}, s{S_TMP} offen sc1")
    e(f"s_cmp_eq_u32 s{S_W}, 4")
    e("s_cbranch_scc0 L_fin")
    e(f"v_and_b32 v{V_TA}, 31, v{V_LANE}")
    e(f"v_lshlrev_b32 v{V_TA}, 3, v{V_TA}")
    e(f"s_lshl_b32 s74, s{S_B}, 8")
    e(f"s_add_u32 s74, s74, {DFL}")
    flag_poll(V_TA, "s74", o["dsleep"])
    ts(11)
    e("s_lshl_b32 s72, s2, 13")
    e(f"s_add_u32 s72, s72, {AP}")
    O = V_TA
    gather_poll("s72", 1024, V_WIN, V_WIN + 32, O)
    for sw in ("v_permlane32_swap_b32", "v_permlane16_swap_b32"):
        for j in range(2):
            e(f"v_mov_b32 v{V_TC+j}, v{O+j}")
        g.nop(2)
        for j in range(2):
            e(f"{sw} v{O+j}, v{V_TC+j}")
        g.nop(1)
        for j in range(2):
            e(f"v_add_f32 v{O+j}, v{O+j}, v{V_TC+j}")
    for j in range(2):
        g.bf16r(O + j, O + j)
        e(f"v_add_f32 v{O+j}, v{O+j}, v{V_FX+j}")
        g.bf16r(O + j, O + j)
        e(f"v_add_f32 v{O+j}, v{O+j}, v{V_FB+j}")
    e(f"v_cvt_pk_bf16_f32 v{O}, v{O}, v{O+1}")
    e(f"v_lshlrev_b32 v{V_TC}, 2, v{V_C}")
    e("s_lshl_b32 s73, s2, 6")
    e("s_mov_b64 exec, 0xffff")
    e(f"buffer_store_dword v{O}, v{V_TC}, {srd(sO)}, s73 offen")
    e("s_mov_b64 exec, -1")
    g.lab("L_fin")
    ts(15)
    g.lab("L_done")
    e("s_endpgm")

    g.lab("L_aux_pro")
    tsv[0] = 127
    g.vm_restore(vm0)
    e("s_setprio 3")
    e(f"v_lshl_add_u32 v{V_TE}, v{V_G}, 15, v{V_TB}")
    e(f"s_lshl_b32 s72, s{S_B}, 2")
    e(f"s_add_u32 s72, s72, s{S_WA}")
    e(f"s_lshl_b32 s72, s72, 18")
    e(f"s_lshl_b32 s73, s{S_H}, 8")
    e("s_add_u32 s72, s72, s73")
    e(f"s_add_u32 s{sW}, s10, s72\ns_addc_u32 s{sW+1}, s11, 0")
    e(f"s_sub_u32 s{sW+2}, 0x800000, s72")
    for i in range(8):
        e(f"s_mov_b32 s{S_TMP}, {(16*(i>>2)+(i&3))*8192}")
        if 'Q' not in o['abl']:
            g.vissue(f"buffer_load_dwordx4 {ar(4*i)}, v{V_TE}, {srd(sW)}, s{S_TMP} offen {WF}", f"wq{i}")
    e(f"s_or_b32 s72, s2, s{S_WA}")
    e("s_cmp_eq_u32 s72, 0")
    e("s_cbranch_scc0 L_no_nonce")
    e("s_memrealtime s[72:73]")
    e("s_waitcnt lgkmcnt(0)")
    e("s_or_b32 s72, s72, 1")
    e(f"v_mov_b32 v{V_NONL}, s72")
    e(f"v_mov_b32 v{V_NONL+1}, s73")
    e("s_mov_b64 exec, 1")
    e(f"buffer_store_dwordx2 {vr(V_NONL,2)}, v{V_ZERO}, {srd(sDBG)}, 0 offen offset:8 sc1")
    e("s_mov_b64 exec, -1")
    g.nop(2)
    g.lab("L_no_nonce")
    g.vissue(f"buffer_load_dwordx2 {vr(V_NONL,2)}, v{V_ZERO}, {srd(sDBG)}, 0 offen offset:8 sc1", "non")
    e("s_lshr_b32 s72, s2, 3")
    e("s_and_b32 s73, s2, 7")
    e("s_mul_i32 s73, s73, 14")
    e("s_add_u32 s74, s73, s72")
    e("s_sub_u32 s75, s74, 14")
    e(f"s_and_b32 s{S_T1}, s74, 3")
    e(f"s_lshr_b32 s{S_T2}, s74, 2")
    e("s_cmp_lt_u32 s72, 14")
    e(f"s_cselect_b32 s{S_ROLE}, 1, 0")
    e("s_cbranch_scc1 L_role_done")
    e("s_cmp_lt_u32 s72, 28")
    e(f"s_cselect_b32 s{S_ROLE}, 2, 0")
    e(f"s_lshr_b32 s{S_T1}, s75, 3")
    e(f"s_and_b32 s{S_T2}, s75, 7")
    g.lab("L_role_done")
    if 'j' in o['abl']:
        e(f"s_mov_b32 s{S_ROLE}, 3")
    common_consts()
    e(f"v_and_b32 v{V_TC}, 3, v{V_TC}")
    e(f"v_lshlrev_b32 v{V_TA}, 4, v{V_G}")
    e(f"v_lshrrev_b32 v{V_TB}, 3, v{V_C}")
    e(f"v_lshl_add_u32 v{V_JOB}, v{V_TB}, 12, v{V_TA}")
    e(f"v_lshrrev_b32 v{V_TA}, 1, v{V_G}")
    e(f"v_lshl_add_u32 v{V_REDW}, v{V_TA}, 9, v{V_DW}")
    e(f"v_lshl_add_u32 v{V_REDW}, v{V_TC}, 12, v{V_REDW}")
    e(f"v_lshl_add_u32 v{V_TA16}, v{V_TC}, 10, v{V_L16}")
    ln_own_row()

    def tile_mfma(vaddr, nblk, abase, tagp, D):
        for j in range(16):
            e(f"v_mov_b32 v{D+j}, 0")
        seq = [(i4, pr) for i4 in range(nblk) for pr in range(4)]
        e(f"ds_read_b128 {vr(V_DUP)}, v{vaddr} offset:0")
        for n, (i4, pr) in enumerate(seq):
            cur = V_DUP + 4 * (n & 1)
            nxt = V_DUP + 4 * ((n + 1) & 1)
            e("s_waitcnt lgkmcnt(0)")
            if n + 1 < len(seq):
                i4n, prn = seq[n + 1]
                e(f"ds_read_b128 {vr(nxt)}, v{vaddr} offset:{prn*8192 + i4n*64}")
            for ii in range(4):
                i = 4 * i4 + ii
                fr = V_FRAG + 4 * (ii & 1)
                g.frag(fr, cur + ii)
                g.vwait(f"{tagp}{i}")
                g.nop(2)
                g.mfma(D + 4 * pr, fr, ar(abase + 4 * i))
        g.nop(10)
        for pr in range(4):
            e(f"ds_write_b128 v{V_REDW}, {vr(D+4*pr)} offset:{RED + pr*1024}")
        g.aux_sync()
        for w in range(4):
            e(f"ds_read_b128 {vr(D+4*w)}, v{V_TA16} offset:{RED + w*4096}")
        e("s_waitcnt lgkmcnt(0)")
        for j in range(4):
            e(f"v_add_f32 v{D+j}, v{D+j}, v{D+4+j}")
            e(f"v_add_f32 v{D+8+j}, v{D+8+j}, v{D+12+j}")
        for j in range(4):
            e(f"v_add_f32 v{D+j}, v{D+j}, v{D+8+j}")

    ts(4)
    QD = V_WIN
    e(f"s_lshl_b32 s72, s{S_B}, 9")
    e(f"s_lshl_b32 s73, s{S_WA}, 7")
    e("s_add_u32 s72, s72, s73")
    e(f"s_add_u32 s72, s72, {AT}")
    e(f"v_add_u32 v{V_TE}, s72, v{V_JOB}")
    tile_mfma(V_TE, 2, 0, "wq", QD)
    ts(5)
    e(f"s_lshl_b32 s72, s{S_H}, 3")
    e(f"s_add_u32 s72, s72, s{S_B}")
    e(f"s_lshl_b32 s{S_TMP}, s72, 12")
    e(f"s_add_u32 s{S_TMP}, s{S_TMP}, {QPW}")
    g.vissue(f"buffer_store_dwordx4 {vr(QD)}, v{V_TA16}, {srd(sWS)}, s{S_TMP} offen sc1", "qst")
    g.vwait("non")
    ok = g.newlab("L_ok")
    sp = g.newlab("L_spin")
    e("s_mov_b32 s73, 0")
    g.lab(sp)
    e(f"v_readfirstlane_b32 s{S_NON}, v{V_NONL}")
    e(f"v_readfirstlane_b32 s{S_NON+1}, v{V_NONL+1}")
    g.nop(1)
    e(f"s_cmp_lg_u32 s{S_NON}, 0")
    e(f"s_cbranch_scc1 {ok}")
    e("s_add_u32 s73, s73, 1")
    e("s_cmp_ge_u32 s73, 0x40000")
    e(f"s_cbranch_scc1 {ok}")
    e(f"buffer_load_dwordx2 {vr(V_NONL,2)}, v{V_ZERO}, {srd(sDBG)}, 0 offen offset:8 sc1")
    e("s_waitcnt vmcnt(0)")
    e(f"s_branch {sp}")
    g.lab(ok)
    e(f"v_mov_b32 v{V_NONL}, s{S_NON}")
    e(f"v_mov_b32 v{V_NONL+1}, s{S_NON+1}")
    e(f"ds_write_b64 v{V_ZERO}, {vr(V_NONL,2)} offset:{CNT+24}")
    if o["qflag1"]:
        e(f"s_lshl_b32 s74, s{S_H}, 6")
        e(f"s_add_u32 s74, s74, {QFL}")
        e(f"s_lshl_b32 s73, s{S_B}, 3")
        e("s_add_u32 s73, s73, s74")
    else:
        e(f"s_lshl_b32 s72, s{S_H}, 2")
        e(f"s_add_u32 s73, s72, s{S_WA}")
        e(f"s_lshl_b32 s73, s73, 3")
        e(f"s_add_u32 s73, s73, s{S_B}")
        e(f"s_lshl_b32 s73, s73, 3")
        e(f"s_add_u32 s73, s73, {QFL}")
        e(f"s_lshr_b32 s74, s{S_B}, 1")
        e("s_add_u32 s74, s74, s72")
        e("s_lshl_b32 s74, s74, 6")
        e(f"s_add_u32 s74, s74, {QFL}")
    e(f"v_and_b32 v{V_TA}, 7, v{V_LANE}")
    e(f"v_lshlrev_b32 v{V_TA}, 3, v{V_TA}")
    g.vwait("qst")
    if o["qflag1"]:
        g.aux_sync()
    else:
        flag_set("s73")
    ts(6)
    e(f"s_cmp_eq_u32 s{S_WA}, 0")
    e("s_cbranch_scc0 L_no_gather")
    if o["qflag1"]:
        flag_set("s73")
    flag_poll(V_TA, "s74", 0)
    ts(7)
    e(f"s_lshl_b32 s72, s{S_H}, 15")
    e(f"s_lshl_b32 s73, s{S_B}, 9")
    e("s_add_u32 s72, s72, s73")
    for k8 in range(8):
        e(f"s_add_u32 s{S_TMP}, s72, {QPW + k8*4096}")
        e(f"buffer_load_dwordx2 {vr(QD+2*k8,2)}, v{V_L8}, {srd(sWS)}, s{S_TMP} offen sc1")
    e(f"v_lshlrev_b32 v{V_TA}, 2, v{V_LANE}")
    e("s_waitcnt vmcnt(0)")
    for k8 in range(1, 8):
        for j in range(2):
            e(f"v_add_f32 v{QD+j}, v{QD+j}, v{QD+2*k8+j}")
    e(f"v_cvt_pk_bf16_f32 v{QD}, v{QD}, v{QD+1}")
    e(f"ds_write_b32 v{V_TA}, v{QD} offset:{QB}")
    g.lds_arrive(CNT + 8)
    g.lab("L_no_gather")
    e(f"s_setprio {o['auxprio']}")
    ts(1)

    JT = 64
    D = V_D

    def job_store_signal(role, off):
        if o["contig"]:
            if role == "A":
                e(f"s_lshl_b32 s{S_TMP}, s{S_T2}, 2")
                e(f"s_add_u32 s{S_TMP}, s{S_TMP}, s{S_T1}")
            else:
                e(f"s_lshl_b32 s{S_TMP}, s{S_T1}, 3")
                e(f"s_add_u32 s{S_TMP}, s{S_TMP}, s{S_T2}")
            e(f"s_lshl_b32 s{S_TMP}, s{S_TMP}, 12")
            e(f"s_add_u32 s{S_TMP}, s{S_TMP}, {HP if role == 'A' else MP}")
            e(f"v_mov_b32 v{V_TA}, v{V_TA16}")
        else:
            rowb = 3584 * 4 if role == "A" else 1024 * 4
            e(f"v_and_b32 v{V_TA}, 255, v0")
            e(f"v_lshrrev_b32 v{V_TA}, 5, v{V_TA}")
            e(f"v_mul_u32_u24 v{V_TA}, {rowb}, v{V_TA}")
            e(f"v_and_b32 v{V_TB}, 31, v0")
            e(f"v_lshl_add_u32 v{V_TA}, v{V_TB}, 4, v{V_TA}")
            e(f"s_mul_i32 s{S_TMP}, s{S_T1}, {8*rowb}")
            e(f"s_lshl_b32 s73, s{S_T2}, 9")
            e(f"s_add_u32 s{S_TMP}, s{S_TMP}, s73")
            e(f"s_add_u32 s{S_TMP}, s{S_TMP}, {HP if role == 'A' else MP}")
        if 'S' in o['abl']:
            g.vwait_all()
            return
        g.vissue(f"buffer_store_dwordx4 {vr(D)}, v{V_TA}, {srd(sWS)}, s{S_TMP} offen sc1", "jst")
        g.vwait_all()
        g.aux_sync()
        lb = g.newlab("L_sig")
        e(f"s_cmp_eq_u32 s{S_WA}, 0")
        e(f"s_cbranch_scc0 {lb}")
        if role == "A":
            e(f"s_lshl_b32 s72, s{S_T2}, 5")
            e(f"s_lshl_b32 s73, s{S_T1}, 3")
            e("s_add_u32 s72, s72, s73")
            e(f"s_add_u32 s72, s72, {HFL}")
        else:
            e(f"s_lshr_b32 s72, s{S_T2}, 1")
            e("s_lshl_b32 s72, s72, 8")
            e(f"s_lshl_b32 s73, s{S_T1}, 4")
            e("s_add_u32 s72, s72, s73")
            e(f"s_and_b32 s73, s{S_T2}, 1")
            e("s_lshl_b32 s73, s73, 3")
            e("s_add_u32 s72, s72, s73")
            e(f"s_add_u32 s72, s72, {MFL}")
        flag_set("s72")
        g.lab(lb)

    e(f"s_cmp_eq_u32 s{S_ROLE}, 1")
    e("s_cbranch_scc0 L_not_a")
    g.role = "A"
    e(f"v_lshlrev_b32 v{V_TA}, 4, v{V_C}")
    e(f"v_mul_u32_u24 v{V_TE}, 28672, v{V_G}")
    e(f"v_add_u32 v{V_TE}, v{V_TE}, v{V_TA}")
    e(f"s_lshl_b32 s72, s{S_T1}, 2\ns_add_u32 s72, s72, s{S_WA}\ns_mul_i32 s72, s72, {64*7168}")
    e(f"s_lshl_b32 s73, s{S_T2}, 8\ns_add_u32 s72, s72, s73")
    e(f"s_add_u32 s{sW}, s16, s72\ns_addc_u32 s{sW+1}, s17, 0\ns_sub_u32 s{sW+2}, {1024*7168}, s72")
    for i in range(16):
        e(f"s_mov_b32 s{S_TMP}, {(16*(i>>2)+(i&3))*7168}")
        if 'L' not in o['abl']:
            g.vissue(f"buffer_load_dwordx4 {ar(JT+4*i)}, v{V_TE}, {srd(sW)}, s{S_TMP} offen {WF}", f"jt{i}")
    e(f"s_lshl_b32 s72, s{S_WA}, 13")
    e(f"s_add_u32 s72, s72, {AT}")
    e(f"v_add_u32 v{V_TD}, s72, v{V_L32}")
    e(f"v_add_u32 v{V_TE}, {AT2-AT}, v{V_TD}")
    for rr in range(2):
        for k in range(4):
            e(f"ds_read_b128 {vr(LE+4*k)}, v{V_TD} offset:{rr*4096 + (k>>1)*2048 + (k&1)*16}")
        e("s_waitcnt lgkmcnt(0)")
        for j in range(16):
            e(f"v_and_b32 v{LE+j}, s{S_HIM}, v{LE+j}")
        g.ln_core(LP, LE, LT)
        g.write_dup_row(LP, LE, V_TE, rr * 4096)
    e(f"s_lshl_b32 s72, s{S_T1}, 10")
    e(f"s_lshl_b32 s73, s{S_WA}, 8")
    e("s_add_u32 s72, s72, s73")
    e(f"s_add_u32 s72, s72, {AT2}")
    e(f"v_add_u32 v{V_TE}, s72, v{V_JOB}")
    g.aux_sync()
    tile_mfma(V_TE, 4, JT, "jt", D)
    job_store_signal("A", 0)
    e("s_branch L_job_done")
    g.role = "C"
    g.lab("L_not_a")
    e(f"s_cmp_eq_u32 s{S_ROLE}, 2")
    e("s_cbranch_scc0 L_job_n")
    g.role = "B"
    e(f"s_lshl_b32 s72, s{S_T1}, 2\ns_add_u32 s72, s72, s{S_WA}\ns_lshl_b32 s72, s72, 17")
    e(f"s_lshl_b32 s73, s{S_T2}, 8\ns_add_u32 s72, s72, s73")
    e(f"s_add_u32 s{sW}, s20, s72\ns_addc_u32 s{sW+1}, s21, 0\ns_sub_u32 s{sW+2}, {3584*2048}, s72")
    for i in range(16):
        e(f"s_mov_b32 s{S_TMP}, {(16*(i>>2)+(i&3))*2048}")
        if 'L' not in o['abl']:
            g.vissue(f"buffer_load_dwordx4 {ar(JT+4*i)}, v{V_W2K}, {srd(sW)}, s{S_TMP} offen {WF}", f"jt{i}")
    e(f"s_mov_b32 s{sB}, s18\ns_mov_b32 s{sB+1}, s19\ns_mov_b32 s{sB+2}, 7168\ns_mov_b32 s{sB+3}, 0x00020000")
    e(f"s_lshl_b32 s{S_TMP}, s{S_T1}, 9")
    B1 = LP
    g.vissue(f"buffer_load_dwordx2 {vr(B1,2)}, v{V_L8}, {srd(sB)}, s{S_TMP} offen", "b1")
    lb = g.newlab("L_bw")
    e(f"s_cmp_eq_u32 s{S_WA}, 0")
    e(f"s_cbranch_scc0 {lb}")
    e(f"v_and_b32 v{V_TA}, 7, v{V_LANE}")
    e(f"v_lshlrev_b32 v{V_TA}, 3, v{V_TA}")
    e(f"s_lshl_b32 s74, s{S_T1}, 6")
    e(f"s_add_u32 s74, s74, {HFL}")
    if 'S' not in o['abl']:
        flag_poll(V_TA, "s74", o["jsleep"])
    g.lab(lb)
    g.aux_sync()
    ts(8)
    HB = V_WIN
    e(f"v_lshrrev_b32 v{V_TC}, 5, v{V_LANE}")
    e(f"v_and_b32 v{V_TD}, 31, v{V_LANE}")
    e(f"v_lshlrev_b32 v{V_TD}, 4, v{V_TD}")
    if o["contig"]:
        e(f"v_lshl_add_u32 v{V_TD}, v{V_TC}, 14, v{V_TD}")
        e(f"s_lshl_b32 s72, s{S_T1}, 15")
        e(f"s_lshl_b32 s73, s{S_WA}, 10")
        e(f"s_add_u32 s72, s72, s73")
        for bb in range(2):
            for kq in range(4):
                e(f"s_add_u32 s{S_TMP}, s72, {HP + kq*4096 + bb*512}")
                g.vissue(f"buffer_load_dwordx4 {vr(HB+(bb*4+kq)*4)}, v{V_TD}, {srd(sWS)}, s{S_TMP} offen sc1", f"hp{bb*4+kq}")
    else:
        e(f"s_mul_i32 s72, s{S_WA}, {2*3584*4}")
        e(f"s_lshl_b32 s73, s{S_T1}, 10")
        e(f"s_add_u32 s72, s72, s73")
        for bb in range(2):
            for kq in range(4):
                e(f"s_add_u32 s{S_TMP}, s72, {HP + (kq*8+bb)*3584*4}")
                g.vissue(f"buffer_load_dwordx4 {vr(HB+(bb*4+kq)*4)}, v{V_L16}, {srd(sWS)}, s{S_TMP} offen sc1", f"hp{bb*4+kq}")
    T = LE
    g.vwait("b1")
    e(f"v_lshlrev_b32 v{T}, 16, v{B1}")
    e(f"v_and_b32 v{T+1}, s{S_HIM}, v{B1}")
    e(f"v_lshlrev_b32 v{T+2}, 16, v{B1+1}")
    e(f"v_and_b32 v{T+3}, s{S_HIM}, v{B1+1}")
    e(f"s_lshl_b32 s72, s{S_WA}, 13")
    e(f"s_add_u32 s72, s72, {AT2}")
    e(f"v_add_u32 v{V_TD}, s72, v{V_L16}")
    e(f"v_mov_b32 v{V_TA}, 0x3d372713")
    g.vwait("hp7")
    for bb in range(2):
        hb = HB + bb * 16
        for j in range(4):
            x = T + 4 + 4 * bb + j
            t = T + 12 + j
            e(f"v_add_f32 v{x}, v{hb+j}, v{hb+4+j}")
            e(f"v_add_f32 v{x}, v{x}, v{hb+8+j}")
            e(f"v_add_f32 v{x}, v{x}, v{hb+12+j}")
            g.bf16r(x, x)
            e(f"v_add_f32 v{x}, v{x}, v{T+j}")
            g.bf16r(x, x)
            e(f"v_mul_f32 v{t}, v{x}, v{x}")
            e(f"v_mul_f32 v{t}, v{t}, v{x}")
            e(f"v_fma_f32 v{t}, v{t}, v{V_TA}, v{x}")
            e(f"v_mul_f32 v{t}, 0xc0135761, v{t}")
            e(f"v_exp_f32 v{t}, v{t}")
            g.nop(1)
            e(f"v_add_f32 v{t}, 1.0, v{t}")
            e(f"v_rcp_f32 v{t}, v{t}")
            g.nop(1)
            e(f"v_mul_f32 v{x}, v{x}, v{t}")
            e(f"v_cvt_pk_bf16_f32 v{x}, v{x}, v{x}")
        e(f"ds_write_b128 v{V_TD}, {vr(T+4+4*bb)} offset:{bb*4096}")
    e(f"s_lshl_b32 s73, s{S_WA}, 8")
    e(f"s_add_u32 s72, s73, {AT2}")
    e(f"v_add_u32 v{V_TE}, s72, v{V_JOB}")
    g.aux_sync()
    tile_mfma(V_TE, 4, JT, "jt", D)
    job_store_signal("B", 4)
    e("s_branch L_job_done")
    g.role = "C"
    g.lab("L_job_n")
    e(f"s_cmp_eq_u32 s{S_WA}, 0")
    e("s_cbranch_scc0 L_job_done")
    if 'j' in o['abl'] or 'S' in o['abl']:
        e("s_branch L_job_done")
    e("s_lshr_b32 s72, s2, 3")
    e(f"s_sub_u32 s{S_T2}, s72, 28")
    e(f"s_and_b32 s{S_T1}, s2, 7")
    e(f"s_mov_b32 s{sB}, s22\ns_mov_b32 s{sB+1}, s23\ns_mov_b32 s{sB+2}, 2048\ns_mov_b32 s{sB+3}, 0x00020000")
    e(f"s_lshl_b32 s72, s{S_T2}, 9")
    B2R = LP
    e(f"buffer_load_dwordx2 {vr(B2R,2)}, v{V_L8}, {srd(sB)}, s72 offen")
    e(f"v_min_u32 v{V_TA}, 27, v{V_LANE}")
    e(f"v_lshlrev_b32 v{V_TA}, 3, v{V_TA}")
    e(f"s_lshl_b32 s74, s{S_T2}, 8")
    e(f"s_add_u32 s74, s74, {MFL}")
    flag_poll(V_TA, "s74", o["jsleep"])
    ts(9)
    e(f"s_lshl_b32 s72, s{S_T1}, 12")
    e(f"s_lshl_b32 s73, s{S_T2}, 10")
    e("s_add_u32 s72, s72, s73")
    M = V_WIN
    if o["contig"]:
        e(f"v_lshrrev_b32 v{V_TC}, 5, v{V_LANE}")
        e(f"v_and_b32 v{V_TD}, 31, v{V_LANE}")
        e(f"v_lshlrev_b32 v{V_TD}, 4, v{V_TD}")
        e(f"v_lshl_add_u32 v{V_TD}, v{V_TC}, 12, v{V_TD}")
        e(f"s_lshl_b32 s73, s{S_T2}, 13")
        e(f"s_lshl_b32 s74, s{S_T1}, 9")
        e("s_add_u32 s73, s73, s74")
        for ks in range(14):
            e(f"s_add_u32 s{S_TMP}, s73, {MP + ks*8*4096}")
            e(f"buffer_load_dwordx4 {vr(M+4*ks)}, v{V_TD}, {srd(sWS)}, s{S_TMP} offen sc1")
    else:
        for ks in range(14):
            e(f"s_add_u32 s{S_TMP}, s72, {MP + ks*8*4096}")
            e(f"buffer_load_dwordx4 {vr(M+4*ks)}, v{V_L16}, {srd(sWS)}, s{S_TMP} offen sc1")
    e(f"v_lshlrev_b32 v{T}, 16, v{B2R}")
    e(f"v_and_b32 v{T+1}, s{S_HIM}, v{B2R}")
    e(f"v_lshlrev_b32 v{T+2}, 16, v{B2R+1}")
    e(f"v_and_b32 v{T+3}, s{S_HIM}, v{B2R+1}")
    e("s_waitcnt vmcnt(0)")
    for ks in range(1, 14):
        for j in range(4):
            e(f"v_add_f32 v{M+j}, v{M+j}, v{M+4*ks+j}")
    for j in range(4):
        g.bf16r(M + j, M + j)
        e(f"v_add_f32 v{M+j}, v{M+j}, v{T+j}")
        g.bf16r(M + j, M + j)
    e(f"s_add_u32 s{S_TMP}, s72, {BFIN}")
    e(f"buffer_store_dwordx4 {vr(M)}, v{V_L16}, {srd(sWS)}, s{S_TMP} offen sc1")
    e(f"s_lshl_b32 s72, s{S_T1}, 2")
    e(f"s_add_u32 s72, s72, s{S_T2}")
    e("s_lshl_b32 s72, s72, 6")
    e(f"s_add_u32 s72, s72, {BFL}")
    e("s_waitcnt vmcnt(0)")
    flag_set("s72")
    g.lab("L_job_done")
    ts(2)
    if o["wosync"]:
        g.lds_wait_ge(CNT + 20, 1, sleep=64)
    wo_srd()
    for i in range(32):
        wo_issue(i)
    e(f"s_cmp_eq_u32 s{S_WA}, 0")
    e("s_cbranch_scc0 L_tail")
    e(f"v_lshlrev_b32 v{V_TA}, 2, v{V_C}")
    e("s_lshl_b32 s73, s2, 6")
    e(f"buffer_load_dword v{V_FB}, v{V_TA}, {srd(sX)}, s73 offen")
    e(f"s_lshl_b32 s74, s{S_B}, 2")
    e(f"s_lshr_b32 s72, s{S_H}, 3")
    e("s_add_u32 s74, s74, s72")
    e("s_lshl_b32 s74, s74, 6")
    e(f"s_add_u32 s74, s74, {BFL}")
    e("s_waitcnt vmcnt(0)")
    ts(10)
    e(f"v_lshlrev_b32 v{V_FX}, 16, v{V_FB}")
    e(f"v_and_b32 v{V_FX+1}, s{S_HIM}, v{V_FB}")
    g.lds_wait_ge(CNT + 16, 1, sleep=64)
    flag_poll(V_ZERO, "s74", 64)
    e(f"v_lshlrev_b32 v{V_TA}, 3, v{V_C}")
    e("s_lshl_b32 s72, s2, 7")
    e(f"s_add_u32 s72, s72, {BFIN}")
    e(f"buffer_load_dwordx2 {vr(V_FB,2)}, v{V_TA}, {srd(sWS)}, s72 offen sc1")
    ts(3)
    e("s_branch L_tail")
    return g


HEADER = open("cdna_kernels/" + NAME + ".s.ref").read().split("; Override launch geometry")[0]
BLOCK = 512


def full_asm(opt=None):
    g = build(opt)
    s = HEADER
    s += "; generated by gen/gen7.py\n"
    s += f"; @launch grid=(256,1,1) block=({BLOCK},1,1) lds={LDS_BYTES}\n"
    s += '.amdgcn_target "amdgcn-amd-amdhsa--gfx950"\n.text\n'
    s += f".globl {KNAME}\n.p2align 8\n.type {KNAME},@function\n{KNAME}:\n"
    s += "\n".join(g.L) + "\n"
    s += f""".section .rodata,"a"
.p2align 6
.amdhsa_kernel {KNAME}
  .amdhsa_next_free_vgpr 256
  .amdhsa_next_free_sgpr 102
  .amdhsa_accum_offset 128
  .amdhsa_group_segment_fixed_size 0
  .amdhsa_kernarg_size 104
  .amdhsa_user_sgpr_count 2
  .amdhsa_user_sgpr_kernarg_segment_ptr 1
  .amdhsa_system_sgpr_workgroup_id_x 1
.end_amdhsa_kernel
"""
    return s


if __name__ == "__main__":
    out = "cdna_kernels/" + NAME + ".s"
    open(out, "w").write(full_asm())
    print("wrote", out, os.path.getsize(out))
```

```python
import sys, json
sys.path.insert(0,'gen')
import gen7 as gen
from common import *
def mk(name, opt):
    s = gen.full_asm(opt)
    s += meta([(gen.KNAME, 102, 256, gen.BLOCK)])
    build(s, name)
    return f"{name},{gen.KNAME},256,{gen.BLOCK},{gen.LDS_BYTES}"
if __name__=='__main__':
    variants = json.loads(sys.argv[1])
    specs=[mk(n+'.co', o) for n,o in variants.items()]
    open('specs.txt','w').write(' '.join(specs))
    print(json.dumps(["bench/bench","bench/specs.txt"]+["bench/"+s.split(',')[0] for s in specs]))
    print(json.dumps(["bench/"+s.split(',')[0]+".ts" for s in specs]))
```

```python
import sys, os

NAME = "parallel_sum__mha_block_cached__mixer_channel_mlp__decode"
KNAME = NAME + "_kernel"

OPT = dict(
    stream_flag="nt",
    w_flag="nt",
    ws_flag="",
    ts=False,
    apf=32,
    depth=16,
    auxprio=3,
    late=True,
    remap=2,
    woburst=0,
    remapb=0,
    remapbm=1,
    dsleep=12,
    contig=True,
    wosync=True,
    qflag1=True,
    abl='',
    jsleep=64,
    spread=True,
    din=8,
)

PD = 0
OP = 16384
OD = 18432
FB = 22528
FX = 26624
QB = 30720
SM = 30976
CNT = 31040
RED = 32768
AT = 49152
AT2 = 81920
LDS_BYTES = 114688

HP = 0
MP = 0x80000
AP = 0x400000
QPW = 0x200000
QFL = 0x300000
HFL = QFL + 0x2000
MFL = QFL + 0x3000
BFL = QFL + 0x4000
DFL = QFL + 0x5000
BFIN = QFL + 0x8000
WS_BYTES = 0x600000
TS_OFF = 0x600000

sK, sV, sW, sX, sWS, sDBG, sB, sO = 32, 36, 40, 44, 48, 52, 56, 60
S_W, S_B, S_H, S_ROLE, S_T1, S_T2, S_OFF, S_TMP = 64, 65, 66, 67, 68, 69, 70, 71
S_NON = 76
S_WA = 78
S_XT = 79
S_ODD, S_TWO = 80, 82
S_RL = 86
S_SELLO, S_SELHI, S_HIM = 90, 91, 92
S_TS = 94
S_HI = 84


def srd(n):
    return f"s[{n}:{n+3}]"


def vr(a, n=4):
    return f"v[{a}:{a+n-1}]"


def ar(a, n=4):
    return f"a[{a}:{a+n-1}]"


V_LANE, V_G, V_C, V_L16, V_L32, V_L8, V_ZERO = 1, 2, 3, 4, 5, 6, 7
V_MASK = 8
V_DW, V_W2K = 12, 13
V_TA, V_TB, V_TC, V_TD, V_TE, V_TF = 14, 15, 16, 17, 18, 19
V_DUPO = 20
V_X1, V_X2, V_X3 = 21, 22, 23
LP, LE, LT = 24, 32, 48
V_ACC = 28
V_Q = 24
V_DUP = 32
V_FRAG = 40
V_A = 32
V_D = 48
V_WIN = 64
DEPTH = 16
V_KV, V_DUPP, V_PDW = V_X1, V_X2, V_X3
V_M = 63
V_JOB, V_REDW, V_TA16 = V_X1, V_X2, V_X3
V_NON, V_FLG = V_TE, V_TC
V_NONL = 120
V_FX, V_FB = 24, 26


class G:
    def __init__(self):
        self.L = []
        self.vm = {"C": [], "A": [], "B": []}
        self.role = "C"
        self.nlab = 0

    def e(self, s):
        for ln in s.split("\n"):
            self.L.append("  " + ln.strip())

    def lab(self, l):
        self.L.append(l + ":")

    def newlab(self, p="L"):
        self.nlab += 1
        return f"{p}_{self.nlab}"

    def nop(self, n):
        while n > 0:
            k = min(n, 16)
            self.e(f"s_nop {k-1}")
            n -= k

    def _roles(self):
        return list(self.vm.keys()) if self.role == "C" else [self.role]

    def vissue(self, instr, tag):
        worst = max(len(self.vm[r]) for r in self._roles())
        if worst >= 63:
            self._wait_n(61)
        self.e(instr)
        for r in self._roles():
            self.vm[r].append(tag)

    def _wait_n(self, n):
        self.e(f"s_waitcnt vmcnt({n})")
        for r in self._roles():
            f = self.vm[r]
            self.vm[r] = [] if n == 0 else f[-n:]

    def vwait(self, tag):
        f = self.vm[self.role]
        if tag not in f:
            return
        self._wait_n(len(f) - 1 - f.index(tag))

    def vwait_all(self):
        self._wait_n(0)

    def vm_save(self):
        return {k: list(v) for k, v in self.vm.items()}

    def vm_restore(self, s):
        self.vm = {k: list(v) for k, v in s.items()}

    def wave_reduce(self, T, op):
        for r in (8, 4, 2, 1):
            self.nop(2)
            self.e(f"v_{op}_f32_dpp v{T}, v{T}, v{T} row_ror:{r} row_mask:0xf bank_mask:0xf")
        self.nop(1)
        for i in range(4):
            self.e(f"v_readlane_b32 s{S_RL+i}, v{T}, {16*i}")
        self.nop(2)
        self.e(f"v_mov_b32 v{T}, s{S_RL}")
        for i in range(1, 4):
            self.e(f"v_{op}_f32 v{T}, s{S_RL+i}, v{T}")

    def bf16r(self, dst, src):
        self.e(f"v_cvt_pk_bf16_f32 v{dst}, v{src}, v{src}")
        self.e(f"v_lshlrev_b32 v{dst}, 16, v{dst}")

    def ln_unpack(self, P, E):
        for j in range(8):
            self.e(f"v_lshlrev_b32 v{E+2*j}, 16, v{P+j}")
            self.e(f"v_and_b32 v{E+2*j+1}, s{S_HIM}, v{P+j}")

    def ln_core(self, DST, E, T):
        e = self.e
        e(f"v_add_f32 v{T}, v{E}, v{E+1}")
        e(f"v_add_f32 v{T+1}, v{E+2}, v{E+3}")
        e(f"v_add_f32 v{T+2}, v{E+4}, v{E+5}")
        e(f"v_add_f32 v{T+3}, v{E+6}, v{E+7}")
        for j in range(4):
            e(f"v_add_f32 v{T+j}, v{T+j}, v{E+8+2*j}")
            e(f"v_add_f32 v{T+j}, v{T+j}, v{E+9+2*j}")
        e(f"v_add_f32 v{T}, v{T}, v{T+1}")
        e(f"v_add_f32 v{T+2}, v{T+2}, v{T+3}")
        e(f"v_add_f32 v{T}, v{T}, v{T+2}")
        self.wave_reduce(T, "add")
        e(f"v_mul_f32 v{T}, 0x3a800000, v{T}")
        self.bf16r(T + 1, T)
        e(f"v_mov_b32 v{T+2}, 0")
        e(f"v_mov_b32 v{T+3}, 0")
        for j in range(16):
            e(f"v_sub_f32 v{T+4+(j&1)}, v{E+j}, v{T}")
            e(f"v_fmac_f32 v{T+2+(j&1)}, v{T+4+(j&1)}, v{T+4+(j&1)}")
        e(f"v_add_f32 v{T+2}, v{T+2}, v{T+3}")
        self.wave_reduce(T + 2, "add")
        e(f"v_mul_f32 v{T+2}, 0x3a800000, v{T+2}")
        self.bf16r(T + 2, T + 2)
        e(f"v_add_f32 v{T+2}, 0x3727c5ac, v{T+2}")
        self.bf16r(T + 2, T + 2)
        e(f"v_sqrt_f32 v{T+2}, v{T+2}")
        self.nop(1)
        self.bf16r(T + 2, T + 2)
        e(f"v_rcp_f32 v{T+3}, v{T+2}")
        self.nop(1)
        for j in range(8):
            a, b = E + 2 * j, E + 2 * j + 1
            e(f"v_sub_f32 v{a}, v{a}, v{T+1}")
            e(f"v_sub_f32 v{b}, v{b}, v{T+1}")
            e(f"v_cvt_pk_bf16_f32 v{T+4}, v{a}, v{b}")
            e(f"v_lshlrev_b32 v{a}, 16, v{T+4}")
            e(f"v_and_b32 v{b}, s{S_HIM}, v{T+4}")
            e(f"v_mul_f32 v{T+4}, v{a}, v{T+3}")
            e(f"v_mul_f32 v{T+5}, v{b}, v{T+3}")
            e(f"v_fma_f32 v{T+6}, -v{T+4}, v{T+2}, v{a}")
            e(f"v_fma_f32 v{T+7}, -v{T+5}, v{T+2}, v{b}")
            e(f"v_fmac_f32 v{T+4}, v{T+6}, v{T+3}")
            e(f"v_fmac_f32 v{T+5}, v{T+7}, v{T+3}")
            e(f"v_cvt_pk_bf16_f32 v{DST+j}, v{T+4}, v{T+5}")

    def write_dup_row(self, P, E, vaddr, base):
        for j in range(8):
            self.e(f"v_perm_b32 v{E+2*j}, v{P+j}, v{P+j}, s{S_SELLO}")
            self.e(f"v_perm_b32 v{E+2*j+1}, v{P+j}, v{P+j}, s{S_SELHI}")
        for k in range(4):
            off = base + (k >> 1) * 2048 + (k & 1) * 16
            self.e(f"ds_write_b128 v{vaddr}, {vr(E+4*k)} offset:{off}")

    def frag(self, fr, dup):
        for j in range(4):
            self.e(f"v_and_b32 v{fr+j}, v{dup}, v{V_MASK+j}")

    def mfma(self, D, fr, B):
        self.e(f"v_mfma_f32_16x16x32_bf16 {vr(D)}, {vr(fr)}, {B}, {vr(D)}")

    def lds_wait_ge(self, off, target, sleep=1):
        sp = self.newlab("L_lspin")
        self.lab(sp)
        self.e(f"ds_read_b32 v{V_TF}, v{V_ZERO} offset:{off}")
        self.e("s_waitcnt lgkmcnt(0)")
        self.e(f"v_readfirstlane_b32 s72, v{V_TF}")
        self.nop(1)
        self.e(f"s_cmp_ge_u32 s72, {target}")
        self.e(f"s_cbranch_scc1 {sp}_ok")
        if sleep:
            self.e(f"s_sleep {sleep}")
        self.e(f"s_branch {sp}")
        self.lab(sp + "_ok")

    def lds_arrive(self, off):
        self.e("s_waitcnt lgkmcnt(0)")
        self.e("s_mov_b64 exec, 1")
        self.e(f"v_mov_b32 v{V_TF}, 1")
        self.e(f"ds_add_u32 v{V_ZERO}, v{V_TF} offset:{off}")
        self.e("s_mov_b64 exec, -1")

    def aux_sync(self):
        self.lds_arrive(CNT)
        self.e(f"s_add_u32 s{S_XT}, s{S_XT}, 4")
        self.lds_wait_ge(CNT, f"s{S_XT}", sleep=0)


def build(opt=None):
    o = dict(OPT)
    if opt:
        o.update(opt)
    SF, WF, WSF = o["stream_flag"], o["w_flag"], o["ws_flag"]
    APF = o["apf"]
    DEPTH = o["depth"]
    g = G()
    e = g.e

    tsv = [62]

    def ts(i):
        if not o["ts"]:
            return
        if i == 0:
            e(f"s_memrealtime s[{S_TS}:{S_TS+1}]")
            return
        e(f"s_memrealtime s[{S_TS+2}:{S_TS+3}]")
        e("s_waitcnt lgkmcnt(0)")
        e(f"v_mov_b32 v{tsv[0]}, s{S_TS+2}")
        e(f"s_mov_b32 s{sWS+2}, 0x680000")
        e(f"s_lshl_b32 s{S_TS+2}, s2, 9\ns_lshl_b32 s{S_TS+3}, s{S_W}, 6\ns_add_u32 s{S_TS+2}, s{S_TS+2}, s{S_TS+3}\ns_add_u32 s{S_TS+2}, s{S_TS+2}, {TS_OFF}")
        e(f"buffer_store_dword v{tsv[0]}, v{V_ZERO}, {srd(sWS)}, s{S_TS+2} offen offset:{4*i}")
        if i == 15:
            e(f"v_mov_b32 v{tsv[0]}, s{S_TS}")
            e(f"buffer_store_dword v{tsv[0]}, v{V_ZERO}, {srd(sWS)}, s{S_TS+2} offen offset:0")

    def flag_poll(vaddr, soff, sleep):
        ok = g.newlab("L_ok")
        sp = g.newlab("L_spin")
        e("s_mov_b32 s75, 0")
        g.lab(sp)
        e(f"buffer_load_dwordx2 {vr(V_FLG,2)}, v{vaddr}, {srd(sWS)}, {soff} offen sc1")
        e("s_waitcnt vmcnt(0)")
        e(f"v_cmp_ne_u64 vcc, s[{S_NON}:{S_NON+1}], {vr(V_FLG,2)}")
        e("s_add_u32 s75, s75, 1")
        e("s_cmp_ge_u32 s75, 0x4000")
        e(f"s_cbranch_scc1 {ok}")
        g.nop(2)
        e(f"s_cbranch_vccz {ok}")
        if sleep:
            e(f"s_sleep {sleep}")
        e(f"s_branch {sp}")
        g.lab(ok)

    def gather_poll(soff_base, stride, SA, SB, OUT, boff=0):
        def issue(S, off):
            for k in range(8):
                e(f"s_add_u32 s{S_TMP}, {soff_base}, {k*stride + off}")
                e(f"buffer_load_dwordx4 {vr(S+4*k)}, v{V_L16}, {srd(sWS)}, s{S_TMP} offen sc1")

        def check(S, oklab):
            e("s_waitcnt vmcnt(8)")
            e("s_mov_b64 s[74:75], 0")
            for k in range(8):
                e(f"v_cmp_ne_u64 vcc, s[{S_NON}:{S_NON+1}], {vr(S+4*k+2,2)}")
                g.nop(1)
                e("s_or_b64 s[74:75], s[74:75], vcc")
            e("s_cmp_eq_u64 s[74:75], 0")
            e(f"s_cbranch_scc1 {oklab}")
        lp = g.newlab("L_gp")
        e("s_mov_b32 s73, 0")
        issue(SA, 0)
        g.lab(lp)
        issue(SB, 0)
        check(SA, lp + "_a")
        issue(SA, 0)
        check(SB, lp + "_b")
        if boff:
            issue(SB, boff)
            check(SA, lp + "_a")
            issue(SA, 0)
            check(SB, lp + "_b")
        e("s_add_u32 s73, s73, 1")
        e("s_cmp_lt_u32 s73, 0x2000")
        e(f"s_cbranch_scc1 {lp}")
        for nm, S in (("_b", SB), ("_a", SA)):
            g.lab(lp + nm)
            e(f"v_add_f32 v{OUT}, v{S}, v{S+4}")
            e(f"v_add_f32 v{OUT+1}, v{S+1}, v{S+5}")
            for k in range(2, 8):
                e(f"v_add_f32 v{OUT}, v{OUT}, v{S+4*k}")
                e(f"v_add_f32 v{OUT+1}, v{OUT+1}, v{S+4*k+1}")
            if nm == "_b":
                e(f"s_branch {lp}_done")
        g.lab(lp + "_done")

    def flag_set(soff):
        e(f"v_mov_b32 v{V_NON}, s{S_NON}")
        e(f"v_mov_b32 v{V_NON+1}, s{S_NON+1}")
        e("s_mov_b64 exec, 1")
        e(f"buffer_store_dwordx2 {vr(V_NON,2)}, v{V_ZERO}, {srd(sWS)}, {soff} offen sc1")
        e("s_mov_b64 exec, -1")

    e("s_cmp_ge_u32 s2, 256")
    e("s_cbranch_scc1 L_done")
    e("s_load_dwordx16 s[4:19], s[0:1], 0")
    e("s_load_dwordx8 s[20:27], s[0:1], 64")
    e("s_load_dwordx2 s[28:29], s[0:1], 96")
    if o["remap"]:
        e("s_lshr_b32 s72, s2, 3")
        e("s_and_b32 s72, s72, 3")
        e(f"s_mul_i32 s72, s72, {o['remap']}")
        e("s_add_u32 s72, s72, s2")
        if o["remapb"]:
            e("s_lshr_b32 s73, s2, 5")
            e(f"s_and_b32 s73, s73, {o['remapbm']}")
            e(f"s_mul_i32 s73, s73, {o['remapb']}")
            e("s_add_u32 s72, s72, s73")
        e("s_and_b32 s72, s72, 7")
        e("s_and_b32 s2, s2, 0xf8")
        e("s_or_b32 s2, s2, s72")
    ts(0)
    e(f"v_and_b32 v{V_LANE}, 63, v0")
    e(f"v_lshrrev_b32 v{V_TC}, 6, v0")
    e(f"v_lshrrev_b32 v{V_G}, 4, v{V_LANE}")
    e(f"v_readfirstlane_b32 s{S_W}, v{V_TC}")
    e(f"v_and_b32 v{V_C}, 15, v{V_LANE}")
    e(f"v_lshlrev_b32 v{V_L16}, 4, v{V_LANE}")
    e(f"v_lshlrev_b32 v{V_L32}, 5, v{V_LANE}")
    e(f"v_lshlrev_b32 v{V_L8}, 3, v{V_LANE}")
    e(f"v_mov_b32 v{V_ZERO}, 0")
    e(f"v_lshlrev_b32 v{V_TB}, 4, v{V_C}")
    e(f"v_lshl_add_u32 v{V_W2K}, v{V_G}, 13, v{V_TB}")
    e(f"s_and_b32 s{S_H}, s2, 31")
    e(f"s_lshr_b32 s{S_B}, s2, 5")
    e(f"s_and_b32 s{S_WA}, s{S_W}, 3")
    e(f"s_mov_b32 s{S_SELLO}, 0x01000100")
    e(f"s_mov_b32 s{S_SELHI}, 0x03020302")
    e(f"s_mov_b32 s{S_HIM}, 0xffff0000")
    e(f"s_mov_b32 s{S_ODD}, 0xaaaaaaaa")
    e(f"s_mov_b32 s{S_ODD+1}, 0xaaaaaaaa")
    e(f"s_mov_b32 s{S_TWO}, 0xcccccccc")
    e(f"s_mov_b32 s{S_TWO+1}, 0xcccccccc")
    e(f"s_mov_b32 s{S_XT}, 0")
    e("s_waitcnt lgkmcnt(0)")
    e(f"s_mov_b32 s{sX}, s4\ns_mov_b32 s{sX+1}, s5\ns_mov_b32 s{sX+2}, 16384\ns_mov_b32 s{sX+3}, 0x00020000")
    e(f"s_lshl_b32 s{S_TMP}, s{S_W}, 11")
    g.vissue(f"buffer_load_dwordx4 {vr(LP)}, v{V_L16}, {srd(sX)}, s{S_TMP} offen", "x0")
    g.vissue(f"buffer_load_dwordx4 {vr(LP+4)}, v{V_L16}, {srd(sX)}, s{S_TMP} offen offset:1024", "x1")
    e(f"s_mov_b32 s{sDBG}, s26\ns_mov_b32 s{sDBG+1}, s27\ns_mov_b32 s{sDBG+2}, 256\ns_mov_b32 s{sDBG+3}, 0x00020000")
    e(f"s_mov_b32 s{sWS}, s28\ns_mov_b32 s{sWS+1}, s29\ns_mov_b32 s{sWS+2}, {WS_BYTES}\ns_mov_b32 s{sWS+3}, 0x00020000")
    e(f"s_mov_b32 s{sW+3}, 0x00020000")
    e(f"s_cmp_ge_u32 s{S_W}, 4")
    e("s_cbranch_scc1 L_aux_pro")

    def common_consts():
        e(f"s_mov_b32 s{sO}, s24\ns_mov_b32 s{sO+1}, s25\ns_mov_b32 s{sO+2}, 16384\ns_mov_b32 s{sO+3}, 0x00020000")
        e(f"v_and_b32 v{V_TA}, 1, v{V_C}")
        e(f"v_lshlrev_b32 v{V_TA}, 4, v{V_TA}")
        e(f"v_mov_b32 v{V_TB}, 0xffff")
        e(f"v_lshlrev_b32 v{V_TB}, v{V_TA}, v{V_TB}")
        e(f"v_bfe_u32 v{V_TA}, v{V_C}, 1, 2")
        for j in range(4):
            e(f"v_cmp_eq_u32 vcc, {j}, v{V_TA}")
            g.nop(2)
            e(f"v_cndmask_b32 v{V_MASK+j}, 0, v{V_TB}, vcc")
        e(f"v_lshlrev_b32 v{V_TA}, 4, v{V_G}")
        e(f"v_lshl_add_u32 v{V_DUPO}, v{V_TC}, 9, v{V_TA}")
        e(f"v_and_b32 v{V_TB}, 1, v{V_G}")
        e(f"v_lshlrev_b32 v{V_TB}, 4, v{V_TB}")
        e(f"v_lshl_add_u32 v{V_DW}, v{V_C}, 5, v{V_TB}")

    def ln_own_row():
        e(f"s_lshl_b32 s72, s{S_W}, 12")
        e(f"s_add_u32 s72, s72, {AT}")
        e(f"v_add_u32 v{V_TD}, s72, v{V_L32}")
        g.vwait("x1")
        g.ln_unpack(LP, LE)
        g.ln_core(LP, LE, LT)
        g.write_dup_row(LP, LE, V_TD, 0)
        e("s_waitcnt lgkmcnt(0)")
        e("s_barrier")

    def wo_srd():
        e(f"s_lshl_b32 s72, s{S_H}, 18")
        e(f"s_lshl_b32 s73, s{S_W}, 8")
        e("s_add_u32 s72, s72, s73")
        e(f"s_add_u32 s{sW}, s12, s72\ns_addc_u32 s{sW+1}, s13, 0\ns_sub_u32 s{sW+2}, 0x800000, s72")

    def wo_issue(i):
        if 'w' in o['abl']:
            return
        e(f"s_mov_b32 s{S_TMP}, {(16*(i>>2)+(i&3))*2048}")
        g.vissue(f"buffer_load_dwordx4 {ar(4*i)}, v{V_W2K}, {srd(sW)}, s{S_TMP} offen {WSF}", f"wo{i}")

    vm0 = g.vm_save()

    e("s_lshl_b32 s72, s2, 20")
    e(f"s_add_u32 s{sK}, s6, s72\ns_addc_u32 s{sK+1}, s7, 0\ns_mov_b32 s{sK+2}, 0x100000\ns_mov_b32 s{sK+3}, 0x00020000")
    e(f"s_add_u32 s{sV}, s8, s72\ns_addc_u32 s{sV+1}, s9, 0\ns_mov_b32 s{sV+2}, 0x100000\ns_mov_b32 s{sV+3}, 0x00020000")
    e(f"v_lshl_add_u32 v{V_KV}, v{V_TC}, 12, v{V_L16}")
    e(f"s_mov_b32 s{S_OFF}, 0")

    def dest(L):
        if L < APF:
            return ("a", 4 * L)
        return ("v", V_WIN + 4 * ((L - APF) % DEPTH))

    def stream_issue(L):
        if L >= 512:
            return
        if L == 256:
            e(f"s_mov_b32 s{S_OFF}, 0")
        sd = sK if L < 256 else sV
        k, r = dest(L)
        d = ar(r) if k == "a" else vr(r)
        g.vissue(f"buffer_load_dwordx4 {d}, v{V_KV}, {srd(sd)}, s{S_OFF} offen offset:{(L&3)*1024} {SF}", f"S{L}")
        if L & 3 == 3:
            e(f"s_add_u32 s{S_OFF}, s{S_OFF}, 16384")

    DIN = o["din"]
    for L in range(DIN):
        stream_issue(L)
    common_consts()
    lb = g.newlab("L_ci")
    e(f"s_cmp_eq_u32 s{S_W}, 0")
    e(f"s_cbranch_scc0 {lb}")
    for j in range(4):
        e(f"v_mov_b32 v{V_TA+j}, 0")
    e(f"ds_write_b128 v{V_ZERO}, {vr(V_TA)} offset:{CNT}")
    e(f"ds_write_b128 v{V_ZERO}, {vr(V_TA)} offset:{CNT+16}")
    g.lab(lb)
    e(f"v_lshrrev_b32 v{V_TC}, 6, v0")
    e(f"v_lshlrev_b32 v{V_TA}, 4, v{V_G}")
    e(f"v_lshl_add_u32 v{V_DUPP}, v{V_TC}, 12, v{V_TA}")
    e(f"v_bfe_u32 v{V_TB}, v{V_C}, 1, 1")
    e(f"v_lshl_add_u32 v{V_PDW}, v{V_TB}, 7, v{V_DUPP}")
    e(f"v_and_b32 v{V_TB}, 1, v{V_C}")
    e(f"v_lshl_add_u32 v{V_PDW}, v{V_TB}, 6, v{V_PDW}")
    e(f"v_bfe_u32 v{V_TB}, v{V_C}, 2, 1")
    e(f"v_lshl_add_u32 v{V_PDW}, v{V_TB}, 3, v{V_PDW}")
    e(f"v_lshrrev_b32 v{V_TB}, 3, v{V_C}")
    e(f"v_lshl_add_u32 v{V_PDW}, v{V_TB}, 2, v{V_PDW}")
    ln_own_row()
    for L in range(DIN, APF + DEPTH):
        g.vwait(f"S{L-DIN}")
        stream_issue(L)
    if 'q' not in o['abl']:
        g.lds_wait_ge(CNT + 8, 1, sleep=2)
    e(f"v_lshlrev_b32 v{V_TA}, 4, v{V_C}")
    e(f"ds_read_b128 {vr(V_Q)}, v{V_TA} offset:{QB}")
    e(f"v_mov_b32 v{V_M}, 0xff800000")
    e("s_waitcnt lgkmcnt(0)")
    ts(1)
    nxt_issue = APF + DEPTH
    for beta in range(16):
        for t in range(16):
            L = 16 * beta + t
            k, r = dest(L)
            g.vwait(f"S{L}")
            if k == "a":
                for j in range(4):
                    e(f"v_accvgpr_read_b32 v{V_D+j + 4*(t&1)}, a{r+j}")
                r = V_D + 4 * (t & 1)
            e(f"v_dot2_f32_bf16 v{V_A+t}, v{r}, v{V_Q}, 0")
            for j in range(1, 4):
                e(f"v_dot2_f32_bf16 v{V_A+t}, v{r+j}, v{V_Q+j}, v{V_A+t}")
            if k == "v":
                stream_issue(nxt_issue)
                nxt_issue += 1
        g.nop(3)
        A = V_A
        for p in range(8):
            e(f"v_add_f32_dpp v{A+2*p}, v{A+2*p}, v{A+2*p} row_ror:8 row_mask:0xf bank_mask:0x3")
            e(f"v_add_f32_dpp v{A+2*p}, v{A+2*p+1}, v{A+2*p+1} row_ror:8 row_mask:0xf bank_mask:0xc")
        for p in range(4):
            e(f"v_add_f32_dpp v{A+4*p}, v{A+4*p}, v{A+4*p} row_shl:4 row_mask:0xf bank_mask:0x5")
            e(f"v_add_f32_dpp v{A+4*p}, v{A+4*p+2}, v{A+4*p+2} row_shr:4 row_mask:0xf bank_mask:0xa")
        g.nop(1)
        for p in range(4):
            e(f"v_add_f32_dpp v{A+4*p}, v{A+4*p}, v{A+4*p} quad_perm:[1,0,3,2] row_mask:0xf bank_mask:0xf")
        for p in range(2):
            e(f"v_cndmask_b32 v{A+8*p}, v{A+8*p}, v{A+8*p+4}, s[{S_ODD}:{S_ODD+1}]")
        g.nop(1)
        for p in range(2):
            e(f"v_add_f32_dpp v{A+8*p}, v{A+8*p}, v{A+8*p} quad_perm:[2,3,0,1] row_mask:0xf bank_mask:0xf")
        e(f"v_cndmask_b32 v{V_TA}, v{A}, v{A+8}, s[{S_TWO}:{S_TWO+1}]")
        g.bf16r(V_TA, V_TA)
        e(f"v_mul_f32 v{V_TA}, 0x3db504f3, v{V_TA}")
        g.bf16r(V_TA, V_TA)
        e(f"v_max_f32 v{V_M}, v{V_M}, v{V_TA}")
        e(f"ds_write_b32 v{V_PDW}, v{V_TA} offset:{PD + beta*256}")
    ts(2)
    LOG2E = "0x3fb8aa3b"
    S = V_A
    for k in range(16):
        e(f"ds_read_b32 v{S+k}, v{V_PDW} offset:{PD + k*256}")
    g.wave_reduce(V_M, "max")
    e(f"v_mov_b32 v{V_TE}, 0")
    e("s_waitcnt lgkmcnt(0)")
    for k in range(16):
        t = V_TA + (k & 1)
        e(f"v_sub_f32 v{t}, v{S+k}, v{V_M}")
        e(f"v_mul_f32 v{t}, {LOG2E}, v{t}")
        e(f"v_exp_f32 v{t}, v{t}")
        g.nop(1)
        e(f"v_add_f32 v{V_TE}, v{V_TE}, v{t}")
    g.wave_reduce(V_TE, "add")
    e(f"v_mov_b32 v{V_TA}, v{V_M}")
    e(f"v_mov_b32 v{V_TB}, v{V_TE}")
    e(f"s_lshl_b32 s72, s{S_W}, 3")
    e(f"v_mov_b32 v{V_TC}, s72")
    e(f"ds_write_b64 v{V_TC}, v[{V_TA}:{V_TB}] offset:{SM}")
    g.lds_arrive(CNT + 4)
    g.lds_wait_ge(CNT + 4, 4, sleep=0)
    X = V_D
    e(f"ds_read_b128 {vr(X)}, v{V_ZERO} offset:{SM}")
    e(f"ds_read_b128 {vr(X+4)}, v{V_ZERO} offset:{SM+16}")
    e("s_waitcnt lgkmcnt(0)")
    e(f"v_max3_f32 v{V_TC}, v{X}, v{X+2}, v{X+4}")
    e(f"v_max_f32 v{V_TC}, v{V_TC}, v{X+6}")
    e(f"v_mov_b32 v{V_TE}, 0")
    for w in range(4):
        e(f"v_sub_f32 v{V_TA}, v{X+2*w}, v{V_TC}")
        e(f"v_mul_f32 v{V_TA}, {LOG2E}, v{V_TA}")
        e(f"v_exp_f32 v{V_TA}, v{V_TA}")
        g.nop(1)
        e(f"v_fmac_f32 v{V_TE}, v{V_TA}, v{X+2*w+1}")
    e(f"v_rcp_f32 v{V_TD}, v{V_TE}")
    g.nop(1)
    e(f"v_fma_f32 v{V_TA}, -v{V_TE}, v{V_TD}, 1.0")
    e(f"v_fmac_f32 v{V_TD}, v{V_TA}, v{V_TD}")
    for k in range(16):
        t = S + k
        e(f"v_sub_f32 v{t}, v{t}, v{V_TC}")
        e(f"v_mul_f32 v{t}, {LOG2E}, v{t}")
        e(f"v_exp_f32 v{t}, v{t}")
        g.nop(1)
        e(f"v_mul_f32 v{t}, v{t}, v{V_TD}")
        e(f"v_cvt_pk_bf16_f32 v{t}, v{t}, v{t}")
        e(f"ds_write_b32 v{V_PDW}, v{t} offset:{PD + k*256}")
    for j in range(4):
        e(f"v_mov_b32 v{V_ACC+j}, 0")
    wo_srd()
    e("s_waitcnt lgkmcnt(0)")
    e(f"ds_read_b128 {vr(V_DUP)}, v{V_DUPP} offset:{PD}")
    for n in range(64):
        cur = V_DUP + 4 * (n & 1)
        nxt = V_DUP + 4 * ((n + 1) & 1)
        e("s_waitcnt lgkmcnt(0)")
        if n < 63:
            e(f"ds_read_b128 {vr(nxt)}, v{V_DUPP} offset:{PD + (n+1)*64}")
        for d in range(4):
            L = 256 + 4 * n + d
            k, r = dest(L)
            fr = V_FRAG + 4 * (d & 1)
            g.frag(fr, cur + d)
            g.vwait(f"S{L}")
            g.nop(2)
            g.mfma(V_ACC, fr, vr(r))
            stream_issue(nxt_issue)
            nxt_issue += 1
        if o["woburst"]:
            B_ = o["woburst"]
            if n >= 4 and (n - 4) % 2 == 0 and (n - 4) // 2 * B_ < 32:
                for k in range(B_):
                    wo_issue((n - 4) // 2 * B_ + k)
        elif 4 <= n < 36:
            wo_issue(n - 4)
        if n == 3 and o["wosync"]:
            g.lds_arrive(CNT + 20)
        if n == 24 and o["late"]:
            g.lds_arrive(CNT + 16)
    ts(3)
    g.nop(10)
    e(f"s_lshl_b32 s72, s{S_W}, 9")
    e(f"v_add_u32 v{V_TA}, s72, v{V_DW}")
    e(f"ds_write_b128 v{V_TA}, {vr(V_ACC)} offset:{OP}")

    g.lab("L_tail")
    e("s_waitcnt vmcnt(0) lgkmcnt(0)")
    g.vm = {"C": [], "A": [], "B": []}
    e("s_barrier")
    R = V_D
    for w in range(4):
        e(f"ds_read_b64 {vr(R+2*w,2)}, v{V_L8} offset:{OP + w*512}")
    e(f"ds_read_b64 {vr(R+8,2)}, v{V_ZERO} offset:{CNT+24}")
    e(f"s_lshl_b32 s72, s{S_W}, 9")
    e(f"v_add_u32 v{V_TD}, s72, v{V_L8}")
    lb = g.newlab("L_pf")
    e(f"s_cmp_eq_u32 s{S_W}, 4")
    e(f"s_cbranch_scc0 {lb}")
    e("s_lshl_b32 s72, s2, 3")
    e(f"s_add_u32 s72, s72, {DFL}")
    flag_set("s72")
    g.lab(lb)
    e("s_waitcnt lgkmcnt(0)")
    for j in range(2):
        e(f"v_add_f32 v{R+j}, v{R+j}, v{R+2+j}")
        e(f"v_add_f32 v{R+4+j}, v{R+4+j}, v{R+6+j}")
        e(f"v_add_f32 v{R+j}, v{R+j}, v{R+4+j}")
        e(f"v_cvt_pk_bf16_f32 v{R+j}, v{R+j}, v{R+j}")
    e(f"ds_write_b64 v{V_TD}, {vr(R,2)} offset:{OD}")
    for j in range(4):
        e(f"v_mov_b32 v{V_ACC+j}, 0")
    e("s_waitcnt lgkmcnt(0)")
    e(f"ds_read_b128 {vr(V_DUP)}, v{V_DUPO} offset:{OD}")
    e(f"v_lshrrev_b32 v{V_TA}, 2, v{V_C}")
    e(f"s_lshl_b32 s72, s{S_W}, 2")
    e(f"v_add_u32 v{V_TA}, s72, v{V_TA}")
    e(f"v_lshlrev_b32 v{V_TA}, 13, v{V_TA}")
    e(f"v_and_b32 v{V_TB}, 3, v{V_C}")
    e(f"v_lshl_add_u32 v{V_TA}, v{V_TB}, 6, v{V_TA}")
    e(f"v_and_b32 v{V_TB}, 1, v{V_G}")
    e(f"v_lshl_add_u32 v{V_TA}, v{V_TB}, 5, v{V_TA}")
    e(f"v_lshrrev_b32 v{V_TB}, 1, v{V_G}")
    e(f"v_lshl_add_u32 v{V_TA}, v{V_TB}, 4, v{V_TA}")
    e(f"s_lshl_b32 s{S_TMP}, s{S_B}, 18")
    e(f"s_lshl_b32 s72, s{S_H}, 8")
    e(f"s_add_u32 s{S_TMP}, s{S_TMP}, s72")
    e(f"s_add_u32 s{S_TMP}, s{S_TMP}, {AP}")
    e(f"s_mov_b32 s{S_HI}, 0")
    e(f"s_mov_b32 s{S_HI+1}, -1")
    for i4 in range(8):
        cur = V_DUP + 4 * (i4 & 1)
        nxt = V_DUP + 4 * ((i4 + 1) & 1)
        e("s_waitcnt lgkmcnt(0)")
        if i4 < 7:
            e(f"ds_read_b128 {vr(nxt)}, v{V_DUPO} offset:{OD + (i4+1)*64}")
        for ii in range(4):
            i = 4 * i4 + ii
            fr = V_FRAG + 4 * (i & 1)
            g.frag(fr, cur + ii)
            g.nop(2)
            g.mfma(V_ACC, fr, ar(4 * i))
    g.nop(10)
    e(f"v_cndmask_b32 v{R+6}, v{V_ACC}, v{V_ACC+2}, s[{S_HI}:{S_HI+1}]")
    e(f"v_cndmask_b32 v{R+7}, v{V_ACC+1}, v{V_ACC+3}, s[{S_HI}:{S_HI+1}]")
    e(f"buffer_store_dwordx4 {vr(R+6)}, v{V_TA}, {srd(sWS)}, s{S_TMP} offen sc1")
    e(f"s_cmp_eq_u32 s{S_W}, 4")
    e("s_cbranch_scc0 L_fin")
    e(f"v_and_b32 v{V_TA}, 31, v{V_LANE}")
    e(f"v_lshlrev_b32 v{V_TA}, 3, v{V_TA}")
    e(f"s_lshl_b32 s74, s{S_B}, 8")
    e(f"s_add_u32 s74, s74, {DFL}")
    flag_poll(V_TA, "s74", o["dsleep"])
    ts(11)
    e("s_lshl_b32 s72, s2, 13")
    e(f"s_add_u32 s72, s72, {AP}")
    O = V_TA
    gather_poll("s72", 1024, V_WIN, V_WIN + 32, O)
    for sw in ("v_permlane32_swap_b32", "v_permlane16_swap_b32"):
        for j in range(2):
            e(f"v_mov_b32 v{V_TC+j}, v{O+j}")
        g.nop(2)
        for j in range(2):
            e(f"{sw} v{O+j}, v{V_TC+j}")
        g.nop(1)
        for j in range(2):
            e(f"v_add_f32 v{O+j}, v{O+j}, v{V_TC+j}")
    for j in range(2):
        g.bf16r(O + j, O + j)
        e(f"v_add_f32 v{O+j}, v{O+j}, v{V_FX+j}")
        g.bf16r(O + j, O + j)
        e(f"v_add_f32 v{O+j}, v{O+j}, v{V_FB+j}")
    e(f"v_cvt_pk_bf16_f32 v{O}, v{O}, v{O+1}")
    e(f"v_lshlrev_b32 v{V_TC}, 2, v{V_C}")
    e("s_lshl_b32 s73, s2, 6")
    e("s_mov_b64 exec, 0xffff")
    e(f"buffer_store_dword v{O}, v{V_TC}, {srd(sO)}, s73 offen")
    e("s_mov_b64 exec, -1")
    g.lab("L_fin")
    ts(15)
    g.lab("L_done")
    e("s_endpgm")

    g.lab("L_aux_pro")
    tsv[0] = 127
    g.vm_restore(vm0)
    e("s_setprio 3")
    e(f"v_lshl_add_u32 v{V_TE}, v{V_G}, 15, v{V_TB}")
    e(f"s_lshl_b32 s72, s{S_B}, 2")
    e(f"s_add_u32 s72, s72, s{S_WA}")
    e(f"s_lshl_b32 s72, s72, 18")
    e(f"s_lshl_b32 s73, s{S_H}, 8")
    e("s_add_u32 s72, s72, s73")
    e(f"s_add_u32 s{sW}, s10, s72\ns_addc_u32 s{sW+1}, s11, 0")
    e(f"s_sub_u32 s{sW+2}, 0x800000, s72")
    for i in range(8):
        e(f"s_mov_b32 s{S_TMP}, {(16*(i>>2)+(i&3))*8192}")
        if 'Q' not in o['abl']:
            g.vissue(f"buffer_load_dwordx4 {ar(4*i)}, v{V_TE}, {srd(sW)}, s{S_TMP} offen {WF}", f"wq{i}")
    e(f"s_or_b32 s72, s2, s{S_WA}")
    e("s_cmp_eq_u32 s72, 0")
    e("s_cbranch_scc0 L_no_nonce")
    e("s_memrealtime s[72:73]")
    e("s_waitcnt lgkmcnt(0)")
    e("s_or_b32 s72, s72, 1")
    e(f"v_mov_b32 v{V_NONL}, s72")
    e(f"v_mov_b32 v{V_NONL+1}, s73")
    e("s_mov_b64 exec, 1")
    e(f"buffer_store_dwordx2 {vr(V_NONL,2)}, v{V_ZERO}, {srd(sDBG)}, 0 offen offset:8 sc1")
    e("s_mov_b64 exec, -1")
    g.nop(2)
    g.lab("L_no_nonce")
    g.vissue(f"buffer_load_dwordx2 {vr(V_NONL,2)}, v{V_ZERO}, {srd(sDBG)}, 0 offen offset:8 sc1", "non")
    e("s_lshr_b32 s72, s2, 3")
    e("s_and_b32 s73, s2, 7")
    e("s_mul_i32 s73, s73, 14")
    e("s_add_u32 s74, s73, s72")
    e("s_sub_u32 s75, s74, 14")
    e(f"s_and_b32 s{S_T1}, s74, 3")
    e(f"s_lshr_b32 s{S_T2}, s74, 2")
    e("s_cmp_lt_u32 s72, 14")
    e(f"s_cselect_b32 s{S_ROLE}, 1, 0")
    e("s_cbranch_scc1 L_role_done")
    e("s_cmp_lt_u32 s72, 28")
    e(f"s_cselect_b32 s{S_ROLE}, 2, 0")
    e(f"s_lshr_b32 s{S_T1}, s75, 3")
    e(f"s_and_b32 s{S_T2}, s75, 7")
    g.lab("L_role_done")
    if 'j' in o['abl']:
        e(f"s_mov_b32 s{S_ROLE}, 3")
    common_consts()
    e(f"v_and_b32 v{V_TC}, 3, v{V_TC}")
    e(f"v_lshlrev_b32 v{V_TA}, 4, v{V_G}")
    e(f"v_lshrrev_b32 v{V_TB}, 3, v{V_C}")
    e(f"v_lshl_add_u32 v{V_JOB}, v{V_TB}, 12, v{V_TA}")
    e(f"v_lshrrev_b32 v{V_TA}, 1, v{V_G}")
    e(f"v_lshl_add_u32 v{V_REDW}, v{V_TA}, 9, v{V_DW}")
    e(f"v_lshl_add_u32 v{V_REDW}, v{V_TC}, 12, v{V_REDW}")
    e(f"v_lshl_add_u32 v{V_TA16}, v{V_TC}, 10, v{V_L16}")
    ln_own_row()

    def tile_mfma(vaddr, nblk, abase, tagp, D):
        for j in range(16):
            e(f"v_mov_b32 v{D+j}, 0")
        seq = [(i4, pr) for i4 in range(nblk) for pr in range(4)]
        e(f"ds_read_b128 {vr(V_DUP)}, v{vaddr} offset:0")
        for n, (i4, pr) in enumerate(seq):
            cur = V_DUP + 4 * (n & 1)
            nxt = V_DUP + 4 * ((n + 1) & 1)
            e("s_waitcnt lgkmcnt(0)")
            if n + 1 < len(seq):
                i4n, prn = seq[n + 1]
                e(f"ds_read_b128 {vr(nxt)}, v{vaddr} offset:{prn*8192 + i4n*64}")
            for ii in range(4):
                i = 4 * i4 + ii
                fr = V_FRAG + 4 * (ii & 1)
                g.frag(fr, cur + ii)
                g.vwait(f"{tagp}{i}")
                g.nop(2)
                g.mfma(D + 4 * pr, fr, ar(abase + 4 * i))
        g.nop(10)
        for pr in range(4):
            e(f"ds_write_b128 v{V_REDW}, {vr(D+4*pr)} offset:{RED + pr*1024}")
        g.aux_sync()
        for w in range(4):
            e(f"ds_read_b128 {vr(D+4*w)}, v{V_TA16} offset:{RED + w*4096}")
        e("s_waitcnt lgkmcnt(0)")
        for j in range(4):
            e(f"v_add_f32 v{D+j}, v{D+j}, v{D+4+j}")
            e(f"v_add_f32 v{D+8+j}, v{D+8+j}, v{D+12+j}")
        for j in range(4):
            e(f"v_add_f32 v{D+j}, v{D+j}, v{D+8+j}")

    ts(4)
    QD = V_WIN
    e(f"s_lshl_b32 s72, s{S_B}, 9")
    e(f"s_lshl_b32 s73, s{S_WA}, 7")
    e("s_add_u32 s72, s72, s73")
    e(f"s_add_u32 s72, s72, {AT}")
    e(f"v_add_u32 v{V_TE}, s72, v{V_JOB}")
    tile_mfma(V_TE, 2, 0, "wq", QD)
    ts(5)
    e(f"s_lshl_b32 s72, s{S_H}, 3")
    e(f"s_add_u32 s72, s72, s{S_B}")
    e(f"s_lshl_b32 s{S_TMP}, s72, 12")
    e(f"s_add_u32 s{S_TMP}, s{S_TMP}, {QPW}")
    g.vissue(f"buffer_store_dwordx4 {vr(QD)}, v{V_TA16}, {srd(sWS)}, s{S_TMP} offen sc1", "qst")
    g.vwait("non")
    ok = g.newlab("L_ok")
    sp = g.newlab("L_spin")
    e("s_mov_b32 s73, 0")
    g.lab(sp)
    e(f"v_readfirstlane_b32 s{S_NON}, v{V_NONL}")
    e(f"v_readfirstlane_b32 s{S_NON+1}, v{V_NONL+1}")
    g.nop(1)
    e(f"s_cmp_lg_u32 s{S_NON}, 0")
    e(f"s_cbranch_scc1 {ok}")
    e("s_add_u32 s73, s73, 1")
    e("s_cmp_ge_u32 s73, 0x4000")
    e(f"s_cbranch_scc1 {ok}")
    e(f"buffer_load_dwordx2 {vr(V_NONL,2)}, v{V_ZERO}, {srd(sDBG)}, 0 offen offset:8 sc1")
    e("s_waitcnt vmcnt(0)")
    e(f"s_branch {sp}")
    g.lab(ok)
    e(f"v_mov_b32 v{V_NONL}, s{S_NON}")
    e(f"v_mov_b32 v{V_NONL+1}, s{S_NON+1}")
    e(f"ds_write_b64 v{V_ZERO}, {vr(V_NONL,2)} offset:{CNT+24}")
    if o["qflag1"]:
        e(f"s_lshl_b32 s74, s{S_H}, 6")
        e(f"s_add_u32 s74, s74, {QFL}")
        e(f"s_lshl_b32 s73, s{S_B}, 3")
        e("s_add_u32 s73, s73, s74")
    else:
        e(f"s_lshl_b32 s72, s{S_H}, 2")
        e(f"s_add_u32 s73, s72, s{S_WA}")
        e(f"s_lshl_b32 s73, s73, 3")
        e(f"s_add_u32 s73, s73, s{S_B}")
        e(f"s_lshl_b32 s73, s73, 3")
        e(f"s_add_u32 s73, s73, {QFL}")
        e(f"s_lshr_b32 s74, s{S_B}, 1")
        e("s_add_u32 s74, s74, s72")
        e("s_lshl_b32 s74, s74, 6")
        e(f"s_add_u32 s74, s74, {QFL}")
    e(f"v_and_b32 v{V_TA}, 7, v{V_LANE}")
    e(f"v_lshlrev_b32 v{V_TA}, 3, v{V_TA}")
    g.vwait("qst")
    if o["qflag1"]:
        g.aux_sync()
    else:
        flag_set("s73")
    ts(6)
    e(f"s_cmp_eq_u32 s{S_WA}, 0")
    e("s_cbranch_scc0 L_no_gather")
    if o["qflag1"]:
        flag_set("s73")
    flag_poll(V_TA, "s74", 0)
    ts(7)
    e(f"s_lshl_b32 s72, s{S_H}, 15")
    e(f"s_lshl_b32 s73, s{S_B}, 9")
    e("s_add_u32 s72, s72, s73")
    for k8 in range(8):
        e(f"s_add_u32 s{S_TMP}, s72, {QPW + k8*4096}")
        e(f"buffer_load_dwordx2 {vr(QD+2*k8,2)}, v{V_L8}, {srd(sWS)}, s{S_TMP} offen sc1")
    e(f"v_lshlrev_b32 v{V_TA}, 2, v{V_LANE}")
    e("s_waitcnt vmcnt(0)")
    for k8 in range(1, 8):
        for j in range(2):
            e(f"v_add_f32 v{QD+j}, v{QD+j}, v{QD+2*k8+j}")
    e(f"v_cvt_pk_bf16_f32 v{QD}, v{QD}, v{QD+1}")
    e(f"ds_write_b32 v{V_TA}, v{QD} offset:{QB}")
    g.lds_arrive(CNT + 8)
    g.lab("L_no_gather")
    e(f"s_setprio {o['auxprio']}")
    ts(1)

    JT = 64
    D = V_D

    def job_store_signal(role, off):
        if o["contig"]:
            if role == "A":
                e(f"s_lshl_b32 s{S_TMP}, s{S_T2}, 2")
                e(f"s_add_u32 s{S_TMP}, s{S_TMP}, s{S_T1}")
            else:
                e(f"s_lshl_b32 s{S_TMP}, s{S_T1}, 3")
                e(f"s_add_u32 s{S_TMP}, s{S_TMP}, s{S_T2}")
            e(f"s_lshl_b32 s{S_TMP}, s{S_TMP}, 12")
            e(f"s_add_u32 s{S_TMP}, s{S_TMP}, {HP if role == 'A' else MP}")
            e(f"v_mov_b32 v{V_TA}, v{V_TA16}")
        else:
            rowb = 3584 * 4 if role == "A" else 1024 * 4
            e(f"v_and_b32 v{V_TA}, 255, v0")
            e(f"v_lshrrev_b32 v{V_TA}, 5, v{V_TA}")
            e(f"v_mul_u32_u24 v{V_TA}, {rowb}, v{V_TA}")
            e(f"v_and_b32 v{V_TB}, 31, v0")
            e(f"v_lshl_add_u32 v{V_TA}, v{V_TB}, 4, v{V_TA}")
            e(f"s_mul_i32 s{S_TMP}, s{S_T1}, {8*rowb}")
            e(f"s_lshl_b32 s73, s{S_T2}, 9")
            e(f"s_add_u32 s{S_TMP}, s{S_TMP}, s73")
            e(f"s_add_u32 s{S_TMP}, s{S_TMP}, {HP if role == 'A' else MP}")
        if 'S' in o['abl']:
            g.vwait_all()
            return
        g.vissue(f"buffer_store_dwordx4 {vr(D)}, v{V_TA}, {srd(sWS)}, s{S_TMP} offen sc1", "jst")
        g.vwait_all()
        g.aux_sync()
        lb = g.newlab("L_sig")
        e(f"s_cmp_eq_u32 s{S_WA}, 0")
        e(f"s_cbranch_scc0 {lb}")
        if role == "A":
            e(f"s_lshl_b32 s72, s{S_T2}, 5")
            e(f"s_lshl_b32 s73, s{S_T1}, 3")
            e("s_add_u32 s72, s72, s73")
            e(f"s_add_u32 s72, s72, {HFL}")
        else:
            e(f"s_lshr_b32 s72, s{S_T2}, 1")
            e("s_lshl_b32 s72, s72, 8")
            e(f"s_lshl_b32 s73, s{S_T1}, 4")
            e("s_add_u32 s72, s72, s73")
            e(f"s_and_b32 s73, s{S_T2}, 1")
            e("s_lshl_b32 s73, s73, 3")
            e("s_add_u32 s72, s72, s73")
            e(f"s_add_u32 s72, s72, {MFL}")
        flag_set("s72")
        g.lab(lb)

    e(f"s_cmp_eq_u32 s{S_ROLE}, 1")
    e("s_cbranch_scc0 L_not_a")
    g.role = "A"
    e(f"v_lshlrev_b32 v{V_TA}, 4, v{V_C}")
    e(f"v_mul_u32_u24 v{V_TE}, 28672, v{V_G}")
    e(f"v_add_u32 v{V_TE}, v{V_TE}, v{V_TA}")
    e(f"s_lshl_b32 s72, s{S_T1}, 2\ns_add_u32 s72, s72, s{S_WA}\ns_mul_i32 s72, s72, {64*7168}")
    e(f"s_lshl_b32 s73, s{S_T2}, 8\ns_add_u32 s72, s72, s73")
    e(f"s_add_u32 s{sW}, s16, s72\ns_addc_u32 s{sW+1}, s17, 0\ns_sub_u32 s{sW+2}, {1024*7168}, s72")
    for i in range(16):
        e(f"s_mov_b32 s{S_TMP}, {(16*(i>>2)+(i&3))*7168}")
        if 'L' not in o['abl']:
            g.vissue(f"buffer_load_dwordx4 {ar(JT+4*i)}, v{V_TE}, {srd(sW)}, s{S_TMP} offen {WF}", f"jt{i}")
    e(f"s_lshl_b32 s72, s{S_WA}, 13")
    e(f"s_add_u32 s72, s72, {AT}")
    e(f"v_add_u32 v{V_TD}, s72, v{V_L32}")
    e(f"v_add_u32 v{V_TE}, {AT2-AT}, v{V_TD}")
    for rr in range(2):
        for k in range(4):
            e(f"ds_read_b128 {vr(LE+4*k)}, v{V_TD} offset:{rr*4096 + (k>>1)*2048 + (k&1)*16}")
        e("s_waitcnt lgkmcnt(0)")
        for j in range(16):
            e(f"v_and_b32 v{LE+j}, s{S_HIM}, v{LE+j}")
        g.ln_core(LP, LE, LT)
        g.write_dup_row(LP, LE, V_TE, rr * 4096)
    e(f"s_lshl_b32 s72, s{S_T1}, 10")
    e(f"s_lshl_b32 s73, s{S_WA}, 8")
    e("s_add_u32 s72, s72, s73")
    e(f"s_add_u32 s72, s72, {AT2}")
    e(f"v_add_u32 v{V_TE}, s72, v{V_JOB}")
    g.aux_sync()
    tile_mfma(V_TE, 4, JT, "jt", D)
    job_store_signal("A", 0)
    e("s_branch L_job_done")
    g.role = "C"
    g.lab("L_not_a")
    e(f"s_cmp_eq_u32 s{S_ROLE}, 2")
    e("s_cbranch_scc0 L_job_n")
    g.role = "B"
    e(f"s_lshl_b32 s72, s{S_T1}, 2\ns_add_u32 s72, s72, s{S_WA}\ns_lshl_b32 s72, s72, 17")
    e(f"s_lshl_b32 s73, s{S_T2}, 8\ns_add_u32 s72, s72, s73")
    e(f"s_add_u32 s{sW}, s20, s72\ns_addc_u32 s{sW+1}, s21, 0\ns_sub_u32 s{sW+2}, {3584*2048}, s72")
    for i in range(16):
        e(f"s_mov_b32 s{S_TMP}, {(16*(i>>2)+(i&3))*2048}")
        if 'L' not in o['abl']:
            g.vissue(f"buffer_load_dwordx4 {ar(JT+4*i)}, v{V_W2K}, {srd(sW)}, s{S_TMP} offen {WF}", f"jt{i}")
    e(f"s_mov_b32 s{sB}, s18\ns_mov_b32 s{sB+1}, s19\ns_mov_b32 s{sB+2}, 7168\ns_mov_b32 s{sB+3}, 0x00020000")
    e(f"s_lshl_b32 s{S_TMP}, s{S_T1}, 9")
    B1 = LP
    g.vissue(f"buffer_load_dwordx2 {vr(B1,2)}, v{V_L8}, {srd(sB)}, s{S_TMP} offen", "b1")
    lb = g.newlab("L_bw")
    e(f"s_cmp_eq_u32 s{S_WA}, 0")
    e(f"s_cbranch_scc0 {lb}")
    e(f"v_and_b32 v{V_TA}, 7, v{V_LANE}")
    e(f"v_lshlrev_b32 v{V_TA}, 3, v{V_TA}")
    e(f"s_lshl_b32 s74, s{S_T1}, 6")
    e(f"s_add_u32 s74, s74, {HFL}")
    if 'S' not in o['abl']:
        flag_poll(V_TA, "s74", o["jsleep"])
    g.lab(lb)
    g.aux_sync()
    ts(8)
    HB = V_WIN
    e(f"v_lshrrev_b32 v{V_TC}, 5, v{V_LANE}")
    e(f"v_and_b32 v{V_TD}, 31, v{V_LANE}")
    e(f"v_lshlrev_b32 v{V_TD}, 4, v{V_TD}")
    if o["contig"]:
        e(f"v_lshl_add_u32 v{V_TD}, v{V_TC}, 14, v{V_TD}")
        e(f"s_lshl_b32 s72, s{S_T1}, 15")
        e(f"s_lshl_b32 s73, s{S_WA}, 10")
        e(f"s_add_u32 s72, s72, s73")
        for bb in range(2):
            for kq in range(4):
                e(f"s_add_u32 s{S_TMP}, s72, {HP + kq*4096 + bb*512}")
                g.vissue(f"buffer_load_dwordx4 {vr(HB+(bb*4+kq)*4)}, v{V_TD}, {srd(sWS)}, s{S_TMP} offen sc1", f"hp{bb*4+kq}")
    else:
        e(f"s_mul_i32 s72, s{S_WA}, {2*3584*4}")
        e(f"s_lshl_b32 s73, s{S_T1}, 10")
        e(f"s_add_u32 s72, s72, s73")
        for bb in range(2):
            for kq in range(4):
                e(f"s_add_u32 s{S_TMP}, s72, {HP + (kq*8+bb)*3584*4}")
                g.vissue(f"buffer_load_dwordx4 {vr(HB+(bb*4+kq)*4)}, v{V_L16}, {srd(sWS)}, s{S_TMP} offen sc1", f"hp{bb*4+kq}")
    T = LE
    g.vwait("b1")
    e(f"v_lshlrev_b32 v{T}, 16, v{B1}")
    e(f"v_and_b32 v{T+1}, s{S_HIM}, v{B1}")
    e(f"v_lshlrev_b32 v{T+2}, 16, v{B1+1}")
    e(f"v_and_b32 v{T+3}, s{S_HIM}, v{B1+1}")
    e(f"s_lshl_b32 s72, s{S_WA}, 13")
    e(f"s_add_u32 s72, s72, {AT2}")
    e(f"v_add_u32 v{V_TD}, s72, v{V_L16}")
    e(f"v_mov_b32 v{V_TA}, 0x3d372713")
    g.vwait("hp7")
    for bb in range(2):
        hb = HB + bb * 16
        for j in range(4):
            x = T + 4 + 4 * bb + j
            t = T + 12 + j
            e(f"v_add_f32 v{x}, v{hb+j}, v{hb+4+j}")
            e(f"v_add_f32 v{x}, v{x}, v{hb+8+j}")
            e(f"v_add_f32 v{x}, v{x}, v{hb+12+j}")
            g.bf16r(x, x)
            e(f"v_add_f32 v{x}, v{x}, v{T+j}")
            g.bf16r(x, x)
            e(f"v_mul_f32 v{t}, v{x}, v{x}")
            e(f"v_mul_f32 v{t}, v{t}, v{x}")
            e(f"v_fma_f32 v{t}, v{t}, v{V_TA}, v{x}")
            e(f"v_mul_f32 v{t}, 0xc0135761, v{t}")
            e(f"v_exp_f32 v{t}, v{t}")
            g.nop(1)
            e(f"v_add_f32 v{t}, 1.0, v{t}")
            e(f"v_rcp_f32 v{t}, v{t}")
            g.nop(1)
            e(f"v_mul_f32 v{x}, v{x}, v{t}")
            e(f"v_cvt_pk_bf16_f32 v{x}, v{x}, v{x}")
        e(f"ds_write_b128 v{V_TD}, {vr(T+4+4*bb)} offset:{bb*4096}")
    e(f"s_lshl_b32 s73, s{S_WA}, 8")
    e(f"s_add_u32 s72, s73, {AT2}")
    e(f"v_add_u32 v{V_TE}, s72, v{V_JOB}")
    g.aux_sync()
    tile_mfma(V_TE, 4, JT, "jt", D)
    job_store_signal("B", 4)
    e("s_branch L_job_done")
    g.role = "C"
    g.lab("L_job_n")
    e(f"s_cmp_eq_u32 s{S_WA}, 0")
    e("s_cbranch_scc0 L_job_done")
    if 'j' in o['abl'] or 'S' in o['abl']:
        e("s_branch L_job_done")
    e("s_lshr_b32 s72, s2, 3")
    e(f"s_sub_u32 s{S_T2}, s72, 28")
    e(f"s_and_b32 s{S_T1}, s2, 7")
    e(f"s_mov_b32 s{sB}, s22\ns_mov_b32 s{sB+1}, s23\ns_mov_b32 s{sB+2}, 2048\ns_mov_b32 s{sB+3}, 0x00020000")
    e(f"s_lshl_b32 s72, s{S_T2}, 9")
    B2R = LP
    e(f"buffer_load_dwordx2 {vr(B2R,2)}, v{V_L8}, {srd(sB)}, s72 offen")
    e(f"v_min_u32 v{V_TA}, 27, v{V_LANE}")
    e(f"v_lshlrev_b32 v{V_TA}, 3, v{V_TA}")
    e(f"s_lshl_b32 s74, s{S_T2}, 8")
    e(f"s_add_u32 s74, s74, {MFL}")
    flag_poll(V_TA, "s74", o["jsleep"])
    ts(9)
    e(f"s_lshl_b32 s72, s{S_T1}, 12")
    e(f"s_lshl_b32 s73, s{S_T2}, 10")
    e("s_add_u32 s72, s72, s73")
    M = V_WIN
    if o["contig"]:
        e(f"v_lshrrev_b32 v{V_TC}, 5, v{V_LANE}")
        e(f"v_and_b32 v{V_TD}, 31, v{V_LANE}")
        e(f"v_lshlrev_b32 v{V_TD}, 4, v{V_TD}")
        e(f"v_lshl_add_u32 v{V_TD}, v{V_TC}, 12, v{V_TD}")
        e(f"s_lshl_b32 s73, s{S_T2}, 13")
        e(f"s_lshl_b32 s74, s{S_T1}, 9")
        e("s_add_u32 s73, s73, s74")
        for ks in range(14):
            e(f"s_add_u32 s{S_TMP}, s73, {MP + ks*8*4096}")
            e(f"buffer_load_dwordx4 {vr(M+4*ks)}, v{V_TD}, {srd(sWS)}, s{S_TMP} offen sc1")
    else:
        for ks in range(14):
            e(f"s_add_u32 s{S_TMP}, s72, {MP + ks*8*4096}")
            e(f"buffer_load_dwordx4 {vr(M+4*ks)}, v{V_L16}, {srd(sWS)}, s{S_TMP} offen sc1")
    e(f"v_lshlrev_b32 v{T}, 16, v{B2R}")
    e(f"v_and_b32 v{T+1}, s{S_HIM}, v{B2R}")
    e(f"v_lshlrev_b32 v{T+2}, 16, v{B2R+1}")
    e(f"v_and_b32 v{T+3}, s{S_HIM}, v{B2R+1}")
    e("s_waitcnt vmcnt(0)")
    for ks in range(1, 14):
        for j in range(4):
            e(f"v_add_f32 v{M+j}, v{M+j}, v{M+4*ks+j}")
    for j in range(4):
        g.bf16r(M + j, M + j)
        e(f"v_add_f32 v{M+j}, v{M+j}, v{T+j}")
        g.bf16r(M + j, M + j)
    e(f"s_add_u32 s{S_TMP}, s72, {BFIN}")
    e(f"buffer_store_dwordx4 {vr(M)}, v{V_L16}, {srd(sWS)}, s{S_TMP} offen sc1")
    e(f"s_lshl_b32 s72, s{S_T1}, 2")
    e(f"s_add_u32 s72, s72, s{S_T2}")
    e("s_lshl_b32 s72, s72, 6")
    e(f"s_add_u32 s72, s72, {BFL}")
    e("s_waitcnt vmcnt(0)")
    flag_set("s72")
    g.lab("L_job_done")
    ts(2)
    if o["wosync"]:
        g.lds_wait_ge(CNT + 20, 1, sleep=64)
    wo_srd()
    for i in range(32):
        wo_issue(i)
    e(f"s_cmp_eq_u32 s{S_WA}, 0")
    e("s_cbranch_scc0 L_tail")
    e(f"v_lshlrev_b32 v{V_TA}, 2, v{V_C}")
    e("s_lshl_b32 s73, s2, 6")
    e(f"buffer_load_dword v{V_FB}, v{V_TA}, {srd(sX)}, s73 offen")
    e(f"s_lshl_b32 s74, s{S_B}, 2")
    e(f"s_lshr_b32 s72, s{S_H}, 3")
    e("s_add_u32 s74, s74, s72")
    e("s_lshl_b32 s74, s74, 6")
    e(f"s_add_u32 s74, s74, {BFL}")
    e("s_waitcnt vmcnt(0)")
    ts(10)
    e(f"v_lshlrev_b32 v{V_FX}, 16, v{V_FB}")
    e(f"v_and_b32 v{V_FX+1}, s{S_HIM}, v{V_FB}")
    g.lds_wait_ge(CNT + 16, 1, sleep=64)
    flag_poll(V_ZERO, "s74", 64)
    e(f"v_lshlrev_b32 v{V_TA}, 3, v{V_C}")
    e("s_lshl_b32 s72, s2, 7")
    e(f"s_add_u32 s72, s72, {BFIN}")
    e(f"buffer_load_dwordx2 {vr(V_FB,2)}, v{V_TA}, {srd(sWS)}, s72 offen sc1")
    ts(3)
    e("s_branch L_tail")
    return g


HEADER = open("cdna_kernels/" + NAME + ".s.ref").read().split("; Override launch geometry")[0]
BLOCK = 512


def full_asm(opt=None):
    g = build(opt)
    s = HEADER
    s += "; generated by gen/gen7.py\n"
    s += f"; @launch grid=(256,1,1) block=({BLOCK},1,1) lds={LDS_BYTES}\n"
    s += '.amdgcn_target "amdgcn-amd-amdhsa--gfx950"\n.text\n'
    s += f".globl {KNAME}\n.p2align 8\n.type {KNAME},@function\n{KNAME}:\n"
    s += "\n".join(g.L) + "\n"
    s += f""".section .rodata,"a"
.p2align 6
.amdhsa_kernel {KNAME}
  .amdhsa_next_free_vgpr 256
  .amdhsa_next_free_sgpr 102
  .amdhsa_accum_offset 128
  .amdhsa_group_segment_fixed_size 0
  .amdhsa_kernarg_size 104
  .amdhsa_user_sgpr_count 2
  .amdhsa_user_sgpr_kernarg_segment_ptr 1
  .amdhsa_system_sgpr_workgroup_id_x 1
.end_amdhsa_kernel
"""
    return s


if __name__ == "__main__":
    out = "cdna_kernels/" + NAME + ".s"
    open(out, "w").write(full_asm())
    print("wrote", out, os.path.getsize(out))
```

```python
import sys, os

NAME = "parallel_sum__mha_block_cached__mixer_channel_mlp__decode"
KNAME = NAME + "_kernel"

OPT = dict(
    stream_flag="nt",
    w_flag="nt",
    ws_flag="",
    ts=False,
    apf=32,
    depth=16,
    auxprio=3,
    late=True,
    remap=2,
    non4=True,
    early=0,
    cprio=None,
    v_flag=None,
    v_from=256,
    woburst=0,
    remapb=0,
    remapbm=1,
    dsleep=12,
    contig=True,
    wosync=True,
    qflag1=True,
    abl='',
    jsleep=64,
    spread=True,
    din=8,
)

PD = 0
OP = 16384
OD = 18432
FB = 22528
FX = 26624
QB = 30720
SM = 30976
CNT = 31040
RED = 32768
AT = 49152
AT2 = 81920
LDS_BYTES = 114688

HP = 0
MP = 0x80000
AP = 0x400000
QPW = 0x200000
QFL = 0x300000
HFL = QFL + 0x2000
MFL = QFL + 0x3000
BFL = QFL + 0x4000
DFL = QFL + 0x5000
BFIN = QFL + 0x8000
WS_BYTES = 0x600000
TS_OFF = 0x600000

sK, sV, sW, sX, sWS, sDBG, sB, sO = 32, 36, 40, 44, 48, 52, 56, 60
S_W, S_B, S_H, S_ROLE, S_T1, S_T2, S_OFF, S_TMP = 64, 65, 66, 67, 68, 69, 70, 71
S_NON = 76
S_WA = 78
S_XT = 79
S_ODD, S_TWO = 80, 82
S_RL = 86
S_SELLO, S_SELHI, S_HIM = 90, 91, 92
S_TS = 94
S_HI = 84


def srd(n):
    return f"s[{n}:{n+3}]"


def vr(a, n=4):
    return f"v[{a}:{a+n-1}]"


def ar(a, n=4):
    return f"a[{a}:{a+n-1}]"


V_LANE, V_G, V_C, V_L16, V_L32, V_L8, V_ZERO = 1, 2, 3, 4, 5, 6, 7
V_MASK = 8
V_DW, V_W2K = 12, 13
V_TA, V_TB, V_TC, V_TD, V_TE, V_TF = 14, 15, 16, 17, 18, 19
V_DUPO = 20
V_X1, V_X2, V_X3 = 21, 22, 23
LP, LE, LT = 24, 32, 48
V_ACC = 28
V_Q = 24
V_DUP = 32
V_FRAG = 40
V_A = 32
V_D = 48
V_WIN = 64
DEPTH = 16
V_KV, V_DUPP, V_PDW = V_X1, V_X2, V_X3
V_M = 63
V_JOB, V_REDW, V_TA16 = V_X1, V_X2, V_X3
V_NON, V_FLG = V_TE, V_TC
V_NONL = 120
V_FX, V_FB = 24, 26


class G:
    def __init__(self):
        self.L = []
        self.vm = {"C": [], "A": [], "B": []}
        self.role = "C"
        self.nlab = 0

    def e(self, s):
        for ln in s.split("\n"):
            self.L.append("  " + ln.strip())

    def lab(self, l):
        self.L.append(l + ":")

    def newlab(self, p="L"):
        self.nlab += 1
        return f"{p}_{self.nlab}"

    def nop(self, n):
        while n > 0:
            k = min(n, 16)
            self.e(f"s_nop {k-1}")
            n -= k

    def _roles(self):
        return list(self.vm.keys()) if self.role == "C" else [self.role]

    def vissue(self, instr, tag):
        worst = max(len(self.vm[r]) for r in self._roles())
        if worst >= 63:
            self._wait_n(61)
        self.e(instr)
        for r in self._roles():
            self.vm[r].append(tag)

    def _wait_n(self, n):
        self.e(f"s_waitcnt vmcnt({n})")
        for r in self._roles():
            f = self.vm[r]
            self.vm[r] = [] if n == 0 else f[-n:]

    def vwait(self, tag):
        f = self.vm[self.role]
        if tag not in f:
            return
        self._wait_n(len(f) - 1 - f.index(tag))

    def vwait_all(self):
        self._wait_n(0)

    def vm_save(self):
        return {k: list(v) for k, v in self.vm.items()}

    def vm_restore(self, s):
        self.vm = {k: list(v) for k, v in s.items()}

    def wave_reduce(self, T, op):
        for r in (8, 4, 2, 1):
            self.nop(2)
            self.e(f"v_{op}_f32_dpp v{T}, v{T}, v{T} row_ror:{r} row_mask:0xf bank_mask:0xf")
        self.nop(1)
        for i in range(4):
            self.e(f"v_readlane_b32 s{S_RL+i}, v{T}, {16*i}")
        self.nop(2)
        self.e(f"v_mov_b32 v{T}, s{S_RL}")
        for i in range(1, 4):
            self.e(f"v_{op}_f32 v{T}, s{S_RL+i}, v{T}")

    def bf16r(self, dst, src):
        self.e(f"v_cvt_pk_bf16_f32 v{dst}, v{src}, v{src}")
        self.e(f"v_lshlrev_b32 v{dst}, 16, v{dst}")

    def ln_unpack(self, P, E):
        for j in range(8):
            self.e(f"v_lshlrev_b32 v{E+2*j}, 16, v{P+j}")
            self.e(f"v_and_b32 v{E+2*j+1}, s{S_HIM}, v{P+j}")

    def ln_core(self, DST, E, T):
        e = self.e
        e(f"v_add_f32 v{T}, v{E}, v{E+1}")
        e(f"v_add_f32 v{T+1}, v{E+2}, v{E+3}")
        e(f"v_add_f32 v{T+2}, v{E+4}, v{E+5}")
        e(f"v_add_f32 v{T+3}, v{E+6}, v{E+7}")
        for j in range(4):
            e(f"v_add_f32 v{T+j}, v{T+j}, v{E+8+2*j}")
            e(f"v_add_f32 v{T+j}, v{T+j}, v{E+9+2*j}")
        e(f"v_add_f32 v{T}, v{T}, v{T+1}")
        e(f"v_add_f32 v{T+2}, v{T+2}, v{T+3}")
        e(f"v_add_f32 v{T}, v{T}, v{T+2}")
        self.wave_reduce(T, "add")
        e(f"v_mul_f32 v{T}, 0x3a800000, v{T}")
        self.bf16r(T + 1, T)
        e(f"v_mov_b32 v{T+2}, 0")
        e(f"v_mov_b32 v{T+3}, 0")
        for j in range(16):
            e(f"v_sub_f32 v{T+4+(j&1)}, v{E+j}, v{T}")
            e(f"v_fmac_f32 v{T+2+(j&1)}, v{T+4+(j&1)}, v{T+4+(j&1)}")
        e(f"v_add_f32 v{T+2}, v{T+2}, v{T+3}")
        self.wave_reduce(T + 2, "add")
        e(f"v_mul_f32 v{T+2}, 0x3a800000, v{T+2}")
        self.bf16r(T + 2, T + 2)
        e(f"v_add_f32 v{T+2}, 0x3727c5ac, v{T+2}")
        self.bf16r(T + 2, T + 2)
        e(f"v_sqrt_f32 v{T+2}, v{T+2}")
        self.nop(1)
        self.bf16r(T + 2, T + 2)
        e(f"v_rcp_f32 v{T+3}, v{T+2}")
        self.nop(1)
        for j in range(8):
            a, b = E + 2 * j, E + 2 * j + 1
            e(f"v_sub_f32 v{a}, v{a}, v{T+1}")
            e(f"v_sub_f32 v{b}, v{b}, v{T+1}")
            e(f"v_cvt_pk_bf16_f32 v{T+4}, v{a}, v{b}")
            e(f"v_lshlrev_b32 v{a}, 16, v{T+4}")
            e(f"v_and_b32 v{b}, s{S_HIM}, v{T+4}")
            e(f"v_mul_f32 v{T+4}, v{a}, v{T+3}")
            e(f"v_mul_f32 v{T+5}, v{b}, v{T+3}")
            e(f"v_fma_f32 v{T+6}, -v{T+4}, v{T+2}, v{a}")
            e(f"v_fma_f32 v{T+7}, -v{T+5}, v{T+2}, v{b}")
            e(f"v_fmac_f32 v{T+4}, v{T+6}, v{T+3}")
            e(f"v_fmac_f32 v{T+5}, v{T+7}, v{T+3}")
            e(f"v_cvt_pk_bf16_f32 v{DST+j}, v{T+4}, v{T+5}")

    def write_dup_row(self, P, E, vaddr, base):
        for j in range(8):
            self.e(f"v_perm_b32 v{E+2*j}, v{P+j}, v{P+j}, s{S_SELLO}")
            self.e(f"v_perm_b32 v{E+2*j+1}, v{P+j}, v{P+j}, s{S_SELHI}")
        for k in range(4):
            off = base + (k >> 1) * 2048 + (k & 1) * 16
            self.e(f"ds_write_b128 v{vaddr}, {vr(E+4*k)} offset:{off}")

    def frag(self, fr, dup):
        for j in range(4):
            self.e(f"v_and_b32 v{fr+j}, v{dup}, v{V_MASK+j}")

    def mfma(self, D, fr, B):
        self.e(f"v_mfma_f32_16x16x32_bf16 {vr(D)}, {vr(fr)}, {B}, {vr(D)}")

    def lds_wait_ge(self, off, target, sleep=1):
        sp = self.newlab("L_lspin")
        self.lab(sp)
        self.e(f"ds_read_b32 v{V_TF}, v{V_ZERO} offset:{off}")
        self.e("s_waitcnt lgkmcnt(0)")
        self.e(f"v_readfirstlane_b32 s72, v{V_TF}")
        self.nop(1)
        self.e(f"s_cmp_ge_u32 s72, {target}")
        self.e(f"s_cbranch_scc1 {sp}_ok")
        if sleep:
            self.e(f"s_sleep {sleep}")
        self.e(f"s_branch {sp}")
        self.lab(sp + "_ok")

    def lds_arrive(self, off):
        self.e("s_waitcnt lgkmcnt(0)")
        self.e("s_mov_b64 exec, 1")
        self.e(f"v_mov_b32 v{V_TF}, 1")
        self.e(f"ds_add_u32 v{V_ZERO}, v{V_TF} offset:{off}")
        self.e("s_mov_b64 exec, -1")

    def aux_sync(self):
        self.lds_arrive(CNT)
        self.e(f"s_add_u32 s{S_XT}, s{S_XT}, 4")
        self.lds_wait_ge(CNT, f"s{S_XT}", sleep=0)


def build(opt=None):
    o = dict(OPT)
    if opt:
        o.update(opt)
    SF, WF, WSF = o["stream_flag"], o["w_flag"], o["ws_flag"]
    APF = o["apf"]
    DEPTH = o["depth"]
    g = G()
    e = g.e

    tsv = [62]

    def ts(i):
        if not o["ts"]:
            return
        if i == 0:
            e(f"s_memrealtime s[{S_TS}:{S_TS+1}]")
            return
        e(f"s_memrealtime s[{S_TS+2}:{S_TS+3}]")
        e("s_waitcnt lgkmcnt(0)")
        e(f"v_mov_b32 v{tsv[0]}, s{S_TS+2}")
        e(f"s_mov_b32 s{sWS+2}, 0x680000")
        e(f"s_lshl_b32 s{S_TS+2}, s2, 9\ns_lshl_b32 s{S_TS+3}, s{S_W}, 6\ns_add_u32 s{S_TS+2}, s{S_TS+2}, s{S_TS+3}\ns_add_u32 s{S_TS+2}, s{S_TS+2}, {TS_OFF}")
        e(f"buffer_store_dword v{tsv[0]}, v{V_ZERO}, {srd(sWS)}, s{S_TS+2} offen offset:{4*i}")
        if i == 15:
            e(f"v_mov_b32 v{tsv[0]}, s{S_TS}")
            e(f"buffer_store_dword v{tsv[0]}, v{V_ZERO}, {srd(sWS)}, s{S_TS+2} offen offset:0")

    def flag_poll(vaddr, soff, sleep):
        ok = g.newlab("L_ok")
        sp = g.newlab("L_spin")
        e("s_mov_b32 s75, 0")
        g.lab(sp)
        e(f"buffer_load_dwordx2 {vr(V_FLG,2)}, v{vaddr}, {srd(sWS)}, {soff} offen sc1")
        e("s_waitcnt vmcnt(0)")
        e(f"v_cmp_ne_u64 vcc, s[{S_NON}:{S_NON+1}], {vr(V_FLG,2)}")
        e("s_add_u32 s75, s75, 1")
        e("s_cmp_ge_u32 s75, 0x4000")
        e(f"s_cbranch_scc1 {ok}")
        g.nop(2)
        e(f"s_cbranch_vccz {ok}")
        if sleep:
            e(f"s_sleep {sleep}")
        e(f"s_branch {sp}")
        g.lab(ok)

    def gather_poll(soff_base, stride, SA, SB, OUT, boff=0):
        def issue(S, off):
            for k in range(8):
                e(f"s_add_u32 s{S_TMP}, {soff_base}, {k*stride + off}")
                e(f"buffer_load_dwordx4 {vr(S+4*k)}, v{V_L16}, {srd(sWS)}, s{S_TMP} offen sc1")

        def check(S, oklab):
            e("s_waitcnt vmcnt(8)")
            e("s_mov_b64 s[74:75], 0")
            for k in range(8):
                e(f"v_cmp_ne_u64 vcc, s[{S_NON}:{S_NON+1}], {vr(S+4*k+2,2)}")
                g.nop(1)
                e("s_or_b64 s[74:75], s[74:75], vcc")
            e("s_cmp_eq_u64 s[74:75], 0")
            e(f"s_cbranch_scc1 {oklab}")
        lp = g.newlab("L_gp")
        e("s_mov_b32 s73, 0")
        issue(SA, 0)
        g.lab(lp)
        issue(SB, 0)
        check(SA, lp + "_a")
        issue(SA, 0)
        check(SB, lp + "_b")
        if boff:
            issue(SB, boff)
            check(SA, lp + "_a")
            issue(SA, 0)
            check(SB, lp + "_b")
        e("s_add_u32 s73, s73, 1")
        e("s_cmp_lt_u32 s73, 0x2000")
        e(f"s_cbranch_scc1 {lp}")
        for nm, S in (("_b", SB), ("_a", SA)):
            g.lab(lp + nm)
            e(f"v_add_f32 v{OUT}, v{S}, v{S+4}")
            e(f"v_add_f32 v{OUT+1}, v{S+1}, v{S+5}")
            for k in range(2, 8):
                e(f"v_add_f32 v{OUT}, v{OUT}, v{S+4*k}")
                e(f"v_add_f32 v{OUT+1}, v{OUT+1}, v{S+4*k+1}")
            if nm == "_b":
                e(f"s_branch {lp}_done")
        g.lab(lp + "_done")

    def flag_set(soff):
        e(f"v_mov_b32 v{V_NON}, s{S_NON}")
        e(f"v_mov_b32 v{V_NON+1}, s{S_NON+1}")
        e("s_mov_b64 exec, 1")
        e(f"buffer_store_dwordx2 {vr(V_NON,2)}, v{V_ZERO}, {srd(sWS)}, {soff} offen sc1")
        e("s_mov_b64 exec, -1")

    e("s_cmp_ge_u32 s2, 256")
    e("s_cbranch_scc1 L_done")
    e("s_load_dwordx16 s[4:19], s[0:1], 0")
    e("s_load_dwordx8 s[20:27], s[0:1], 64")
    e("s_load_dwordx2 s[28:29], s[0:1], 96")
    if o["remap"]:
        e("s_lshr_b32 s72, s2, 3")
        e("s_and_b32 s72, s72, 3")
        e(f"s_mul_i32 s72, s72, {o['remap']}")
        e("s_add_u32 s72, s72, s2")
        if o["remapb"]:
            e("s_lshr_b32 s73, s2, 5")
            e(f"s_and_b32 s73, s73, {o['remapbm']}")
            e(f"s_mul_i32 s73, s73, {o['remapb']}")
            e("s_add_u32 s72, s72, s73")
        e("s_and_b32 s72, s72, 7")
        e("s_and_b32 s2, s2, 0xf8")
        e("s_or_b32 s2, s2, s72")
    ts(0)
    e(f"v_and_b32 v{V_LANE}, 63, v0")
    e(f"v_lshrrev_b32 v{V_TC}, 6, v0")
    e(f"v_lshrrev_b32 v{V_G}, 4, v{V_LANE}")
    e(f"v_readfirstlane_b32 s{S_W}, v{V_TC}")
    e(f"v_and_b32 v{V_C}, 15, v{V_LANE}")
    e(f"v_lshlrev_b32 v{V_L16}, 4, v{V_LANE}")
    e(f"v_lshlrev_b32 v{V_L32}, 5, v{V_LANE}")
    e(f"v_lshlrev_b32 v{V_L8}, 3, v{V_LANE}")
    e(f"v_mov_b32 v{V_ZERO}, 0")
    e(f"v_lshlrev_b32 v{V_TB}, 4, v{V_C}")
    e(f"v_lshl_add_u32 v{V_W2K}, v{V_G}, 13, v{V_TB}")
    e(f"s_and_b32 s{S_H}, s2, 31")
    e(f"s_lshr_b32 s{S_B}, s2, 5")
    e(f"s_and_b32 s{S_WA}, s{S_W}, 3")
    e(f"s_mov_b32 s{S_SELLO}, 0x01000100")
    e(f"s_mov_b32 s{S_SELHI}, 0x03020302")
    e(f"s_mov_b32 s{S_HIM}, 0xffff0000")
    e(f"s_mov_b32 s{S_ODD}, 0xaaaaaaaa")
    e(f"s_mov_b32 s{S_ODD+1}, 0xaaaaaaaa")
    e(f"s_mov_b32 s{S_TWO}, 0xcccccccc")
    e(f"s_mov_b32 s{S_TWO+1}, 0xcccccccc")
    e(f"s_mov_b32 s{S_XT}, 0")
    e("s_waitcnt lgkmcnt(0)")
    e(f"s_mov_b32 s{sX}, s4\ns_mov_b32 s{sX+1}, s5\ns_mov_b32 s{sX+2}, 16384\ns_mov_b32 s{sX+3}, 0x00020000")
    e(f"s_lshl_b32 s{S_TMP}, s{S_W}, 11")
    g.vissue(f"buffer_load_dwordx4 {vr(LP)}, v{V_L16}, {srd(sX)}, s{S_TMP} offen", "x0")
    g.vissue(f"buffer_load_dwordx4 {vr(LP+4)}, v{V_L16}, {srd(sX)}, s{S_TMP} offen offset:1024", "x1")
    e(f"s_mov_b32 s{sDBG}, s26\ns_mov_b32 s{sDBG+1}, s27\ns_mov_b32 s{sDBG+2}, 256\ns_mov_b32 s{sDBG+3}, 0x00020000")
    e(f"s_mov_b32 s{sWS}, s28\ns_mov_b32 s{sWS+1}, s29\ns_mov_b32 s{sWS+2}, {WS_BYTES}\ns_mov_b32 s{sWS+3}, 0x00020000")
    e(f"s_mov_b32 s{sW+3}, 0x00020000")
    e(f"s_cmp_ge_u32 s{S_W}, 4")
    e("s_cbranch_scc1 L_aux_pro")

    def common_consts():
        e(f"s_mov_b32 s{sO}, s24\ns_mov_b32 s{sO+1}, s25\ns_mov_b32 s{sO+2}, 16384\ns_mov_b32 s{sO+3}, 0x00020000")
        e(f"v_and_b32 v{V_TA}, 1, v{V_C}")
        e(f"v_lshlrev_b32 v{V_TA}, 4, v{V_TA}")
        e(f"v_mov_b32 v{V_TB}, 0xffff")
        e(f"v_lshlrev_b32 v{V_TB}, v{V_TA}, v{V_TB}")
        e(f"v_bfe_u32 v{V_TA}, v{V_C}, 1, 2")
        for j in range(4):
            e(f"v_cmp_eq_u32 vcc, {j}, v{V_TA}")
            g.nop(2)
            e(f"v_cndmask_b32 v{V_MASK+j}, 0, v{V_TB}, vcc")
        e(f"v_lshlrev_b32 v{V_TA}, 4, v{V_G}")
        e(f"v_lshl_add_u32 v{V_DUPO}, v{V_TC}, 9, v{V_TA}")
        e(f"v_and_b32 v{V_TB}, 1, v{V_G}")
        e(f"v_lshlrev_b32 v{V_TB}, 4, v{V_TB}")
        e(f"v_lshl_add_u32 v{V_DW}, v{V_C}, 5, v{V_TB}")

    def ln_own_row():
        e(f"s_lshl_b32 s72, s{S_W}, 12")
        e(f"s_add_u32 s72, s72, {AT}")
        e(f"v_add_u32 v{V_TD}, s72, v{V_L32}")
        g.vwait("x1")
        g.ln_unpack(LP, LE)
        g.ln_core(LP, LE, LT)
        g.write_dup_row(LP, LE, V_TD, 0)
        e("s_waitcnt lgkmcnt(0)")
        e("s_barrier")

    def wo_srd():
        e(f"s_lshl_b32 s72, s{S_H}, 18")
        e(f"s_lshl_b32 s73, s{S_W}, 8")
        e("s_add_u32 s72, s72, s73")
        e(f"s_add_u32 s{sW}, s12, s72\ns_addc_u32 s{sW+1}, s13, 0\ns_sub_u32 s{sW+2}, 0x800000, s72")

    def wo_issue(i):
        if 'w' in o['abl']:
            return
        e(f"s_mov_b32 s{S_TMP}, {(16*(i>>2)+(i&3))*2048}")
        g.vissue(f"buffer_load_dwordx4 {ar(4*i)}, v{V_W2K}, {srd(sW)}, s{S_TMP} offen {WSF}", f"wo{i}")

    vm0 = g.vm_save()

    e("s_lshl_b32 s72, s2, 20")
    e(f"s_add_u32 s{sK}, s6, s72\ns_addc_u32 s{sK+1}, s7, 0\ns_mov_b32 s{sK+2}, 0x100000\ns_mov_b32 s{sK+3}, 0x00020000")
    e(f"s_add_u32 s{sV}, s8, s72\ns_addc_u32 s{sV+1}, s9, 0\ns_mov_b32 s{sV+2}, 0x100000\ns_mov_b32 s{sV+3}, 0x00020000")
    e(f"v_lshl_add_u32 v{V_KV}, v{V_TC}, 12, v{V_L16}")
    e(f"s_mov_b32 s{S_OFF}, 0")

    def dest(L):
        if L < APF:
            return ("a", 4 * L)
        return ("v", V_WIN + 4 * ((L - APF) % DEPTH))

    def stream_issue(L):
        if L >= 512:
            return
        if L == 256:
            e(f"s_mov_b32 s{S_OFF}, 0")
        sd = sK if L < 256 else sV
        k, r = dest(L)
        d = ar(r) if k == "a" else vr(r)
        fl = SF if (o["v_flag"] is None or L < o["v_from"]) else o["v_flag"]
        g.vissue(f"buffer_load_dwordx4 {d}, v{V_KV}, {srd(sd)}, s{S_OFF} offen offset:{(L&3)*1024} {fl}", f"S{L}")
        if L & 3 == 3:
            e(f"s_add_u32 s{S_OFF}, s{S_OFF}, 16384")

    DIN = o["din"]
    for L in range(DIN):
        stream_issue(L)
    common_consts()
    lb = g.newlab("L_ci")
    e(f"s_cmp_eq_u32 s{S_W}, 0")
    e(f"s_cbranch_scc0 {lb}")
    for j in range(4):
        e(f"v_mov_b32 v{V_TA+j}, 0")
    e(f"ds_write_b128 v{V_ZERO}, {vr(V_TA)} offset:{CNT}")
    e(f"ds_write_b128 v{V_ZERO}, {vr(V_TA)} offset:{CNT+16}")
    g.lab(lb)
    e(f"v_lshrrev_b32 v{V_TC}, 6, v0")
    e(f"v_lshlrev_b32 v{V_TA}, 4, v{V_G}")
    e(f"v_lshl_add_u32 v{V_DUPP}, v{V_TC}, 12, v{V_TA}")
    e(f"v_bfe_u32 v{V_TB}, v{V_C}, 1, 1")
    e(f"v_lshl_add_u32 v{V_PDW}, v{V_TB}, 7, v{V_DUPP}")
    e(f"v_and_b32 v{V_TB}, 1, v{V_C}")
    e(f"v_lshl_add_u32 v{V_PDW}, v{V_TB}, 6, v{V_PDW}")
    e(f"v_bfe_u32 v{V_TB}, v{V_C}, 2, 1")
    e(f"v_lshl_add_u32 v{V_PDW}, v{V_TB}, 3, v{V_PDW}")
    e(f"v_lshrrev_b32 v{V_TB}, 3, v{V_C}")
    e(f"v_lshl_add_u32 v{V_PDW}, v{V_TB}, 2, v{V_PDW}")
    ln_own_row()
    for L in range(DIN, APF + DEPTH):
        g.vwait(f"S{L-DIN}")
        stream_issue(L)
    if 'q' not in o['abl']:
        g.lds_wait_ge(CNT + 8, 1, sleep=2)
    e(f"v_lshlrev_b32 v{V_TA}, 4, v{V_C}")
    e(f"ds_read_b128 {vr(V_Q)}, v{V_TA} offset:{QB}")
    e(f"v_mov_b32 v{V_M}, 0xff800000")
    e("s_waitcnt lgkmcnt(0)")
    ts(1)
    nxt_issue = APF + DEPTH
    for beta in range(16):
        for t in range(16):
            L = 16 * beta + t
            k, r = dest(L)
            g.vwait(f"S{L}")
            if k == "a":
                for j in range(4):
                    e(f"v_accvgpr_read_b32 v{V_D+j + 4*(t&1)}, a{r+j}")
                r = V_D + 4 * (t & 1)
            e(f"v_dot2_f32_bf16 v{V_A+t}, v{r}, v{V_Q}, 0")
            for j in range(1, 4):
                e(f"v_dot2_f32_bf16 v{V_A+t}, v{r+j}, v{V_Q+j}, v{V_A+t}")
            if k == "v":
                stream_issue(nxt_issue)
                nxt_issue += 1
        g.nop(3)
        A = V_A
        for p in range(8):
            e(f"v_add_f32_dpp v{A+2*p}, v{A+2*p}, v{A+2*p} row_ror:8 row_mask:0xf bank_mask:0x3")
            e(f"v_add_f32_dpp v{A+2*p}, v{A+2*p+1}, v{A+2*p+1} row_ror:8 row_mask:0xf bank_mask:0xc")
        for p in range(4):
            e(f"v_add_f32_dpp v{A+4*p}, v{A+4*p}, v{A+4*p} row_shl:4 row_mask:0xf bank_mask:0x5")
            e(f"v_add_f32_dpp v{A+4*p}, v{A+4*p+2}, v{A+4*p+2} row_shr:4 row_mask:0xf bank_mask:0xa")
        g.nop(1)
        for p in range(4):
            e(f"v_add_f32_dpp v{A+4*p}, v{A+4*p}, v{A+4*p} quad_perm:[1,0,3,2] row_mask:0xf bank_mask:0xf")
        for p in range(2):
            e(f"v_cndmask_b32 v{A+8*p}, v{A+8*p}, v{A+8*p+4}, s[{S_ODD}:{S_ODD+1}]")
        g.nop(1)
        for p in range(2):
            e(f"v_add_f32_dpp v{A+8*p}, v{A+8*p}, v{A+8*p} quad_perm:[2,3,0,1] row_mask:0xf bank_mask:0xf")
        e(f"v_cndmask_b32 v{V_TA}, v{A}, v{A+8}, s[{S_TWO}:{S_TWO+1}]")
        g.bf16r(V_TA, V_TA)
        e(f"v_mul_f32 v{V_TA}, 0x3db504f3, v{V_TA}")
        g.bf16r(V_TA, V_TA)
        e(f"v_max_f32 v{V_M}, v{V_M}, v{V_TA}")
        e(f"ds_write_b32 v{V_PDW}, v{V_TA} offset:{PD + beta*256}")
    ts(2)
    LOG2E = "0x3fb8aa3b"
    S = V_A
    for k in range(16):
        e(f"ds_read_b32 v{S+k}, v{V_PDW} offset:{PD + k*256}")
    g.wave_reduce(V_M, "max")
    e(f"v_mov_b32 v{V_TE}, 0")
    e("s_waitcnt lgkmcnt(0)")
    for k in range(16):
        t = V_TA + (k & 1)
        e(f"v_sub_f32 v{t}, v{S+k}, v{V_M}")
        e(f"v_mul_f32 v{t}, {LOG2E}, v{t}")
        e(f"v_exp_f32 v{t}, v{t}")
        g.nop(1)
        e(f"v_add_f32 v{V_TE}, v{V_TE}, v{t}")
    g.wave_reduce(V_TE, "add")
    e(f"v_mov_b32 v{V_TA}, v{V_M}")
    e(f"v_mov_b32 v{V_TB}, v{V_TE}")
    e(f"s_lshl_b32 s72, s{S_W}, 3")
    e(f"v_mov_b32 v{V_TC}, s72")
    e(f"ds_write_b64 v{V_TC}, v[{V_TA}:{V_TB}] offset:{SM}")
    g.lds_arrive(CNT + 4)
    g.lds_wait_ge(CNT + 4, 4, sleep=0)
    X = V_D
    e(f"ds_read_b128 {vr(X)}, v{V_ZERO} offset:{SM}")
    e(f"ds_read_b128 {vr(X+4)}, v{V_ZERO} offset:{SM+16}")
    e("s_waitcnt lgkmcnt(0)")
    e(f"v_max3_f32 v{V_TC}, v{X}, v{X+2}, v{X+4}")
    e(f"v_max_f32 v{V_TC}, v{V_TC}, v{X+6}")
    e(f"v_mov_b32 v{V_TE}, 0")
    for w in range(4):
        e(f"v_sub_f32 v{V_TA}, v{X+2*w}, v{V_TC}")
        e(f"v_mul_f32 v{V_TA}, {LOG2E}, v{V_TA}")
        e(f"v_exp_f32 v{V_TA}, v{V_TA}")
        g.nop(1)
        e(f"v_fmac_f32 v{V_TE}, v{V_TA}, v{X+2*w+1}")
    e(f"v_rcp_f32 v{V_TD}, v{V_TE}")
    g.nop(1)
    e(f"v_fma_f32 v{V_TA}, -v{V_TE}, v{V_TD}, 1.0")
    e(f"v_fmac_f32 v{V_TD}, v{V_TA}, v{V_TD}")
    for k in range(16):
        t = S + k
        e(f"v_sub_f32 v{t}, v{t}, v{V_TC}")
        e(f"v_mul_f32 v{t}, {LOG2E}, v{t}")
        e(f"v_exp_f32 v{t}, v{t}")
        g.nop(1)
        e(f"v_mul_f32 v{t}, v{t}, v{V_TD}")
        e(f"v_cvt_pk_bf16_f32 v{t}, v{t}, v{t}")
        e(f"ds_write_b32 v{V_PDW}, v{t} offset:{PD + k*256}")
    for j in range(4):
        e(f"v_mov_b32 v{V_ACC+j}, 0")
    wo_srd()
    e("s_waitcnt lgkmcnt(0)")
    e(f"ds_read_b128 {vr(V_DUP)}, v{V_DUPP} offset:{PD}")
    for n in range(64):
        cur = V_DUP + 4 * (n & 1)
        nxt = V_DUP + 4 * ((n + 1) & 1)
        e("s_waitcnt lgkmcnt(0)")
        if n < 63:
            e(f"ds_read_b128 {vr(nxt)}, v{V_DUPP} offset:{PD + (n+1)*64}")
        for d in range(4):
            L = 256 + 4 * n + d
            k, r = dest(L)
            fr = V_FRAG + 4 * (d & 1)
            g.frag(fr, cur + d)
            g.vwait(f"S{L}")
            g.nop(2)
            g.mfma(V_ACC, fr, vr(r))
            stream_issue(nxt_issue)
            nxt_issue += 1
        if o["woburst"]:
            B_ = o["woburst"]
            if n >= 4 and (n - 4) % 2 == 0 and (n - 4) // 2 * B_ < 32:
                for k in range(B_):
                    wo_issue((n - 4) // 2 * B_ + k)
        elif 4 <= n < 36:
            wo_issue(n - 4)
        if n == 3 and o["wosync"]:
            g.lds_arrive(CNT + 20)
        if o["early"] and n == o["early"]:
            g.lds_arrive(CNT + 12)
        if n == 24 and o["late"]:
            g.lds_arrive(CNT + 16)
    ts(3)
    g.nop(10)
    e(f"s_lshl_b32 s72, s{S_W}, 9")
    e(f"v_add_u32 v{V_TA}, s72, v{V_DW}")
    e(f"ds_write_b128 v{V_TA}, {vr(V_ACC)} offset:{OP}")

    g.lab("L_tail")
    if 't' in o['abl']:
        e("s_endpgm")
    e("s_waitcnt vmcnt(0) lgkmcnt(0)")
    g.vm = {"C": [], "A": [], "B": []}
    e("s_barrier")
    R = V_D
    for w in range(4):
        e(f"ds_read_b64 {vr(R+2*w,2)}, v{V_L8} offset:{OP + w*512}")
    e(f"ds_read_b64 {vr(R+8,2)}, v{V_ZERO} offset:{CNT+24}")
    e(f"s_lshl_b32 s72, s{S_W}, 9")
    e(f"v_add_u32 v{V_TD}, s72, v{V_L8}")
    if not o["early"]:
        lb = g.newlab("L_pf")
        e(f"s_cmp_eq_u32 s{S_W}, 4")
        e(f"s_cbranch_scc0 {lb}")
        e("s_lshl_b32 s72, s2, 3")
        e(f"s_add_u32 s72, s72, {DFL}")
        flag_set("s72")
        g.lab(lb)
    e("s_waitcnt lgkmcnt(0)")
    for j in range(2):
        e(f"v_add_f32 v{R+j}, v{R+j}, v{R+2+j}")
        e(f"v_add_f32 v{R+4+j}, v{R+4+j}, v{R+6+j}")
        e(f"v_add_f32 v{R+j}, v{R+j}, v{R+4+j}")
        e(f"v_cvt_pk_bf16_f32 v{R+j}, v{R+j}, v{R+j}")
    e(f"ds_write_b64 v{V_TD}, {vr(R,2)} offset:{OD}")
    for j in range(4):
        e(f"v_mov_b32 v{V_ACC+j}, 0")
    e("s_waitcnt lgkmcnt(0)")
    e(f"ds_read_b128 {vr(V_DUP)}, v{V_DUPO} offset:{OD}")
    e(f"v_lshrrev_b32 v{V_TA}, 2, v{V_C}")
    e(f"s_lshl_b32 s72, s{S_W}, 2")
    e(f"v_add_u32 v{V_TA}, s72, v{V_TA}")
    e(f"v_lshlrev_b32 v{V_TA}, 13, v{V_TA}")
    e(f"v_and_b32 v{V_TB}, 3, v{V_C}")
    e(f"v_lshl_add_u32 v{V_TA}, v{V_TB}, 6, v{V_TA}")
    e(f"v_and_b32 v{V_TB}, 1, v{V_G}")
    e(f"v_lshl_add_u32 v{V_TA}, v{V_TB}, 5, v{V_TA}")
    e(f"v_lshrrev_b32 v{V_TB}, 1, v{V_G}")
    e(f"v_lshl_add_u32 v{V_TA}, v{V_TB}, 4, v{V_TA}")
    e(f"s_lshl_b32 s{S_TMP}, s{S_B}, 18")
    e(f"s_lshl_b32 s72, s{S_H}, 8")
    e(f"s_add_u32 s{S_TMP}, s{S_TMP}, s72")
    e(f"s_add_u32 s{S_TMP}, s{S_TMP}, {AP}")
    e(f"s_mov_b32 s{S_HI}, 0")
    e(f"s_mov_b32 s{S_HI+1}, -1")
    for i4 in range(8):
        cur = V_DUP + 4 * (i4 & 1)
        nxt = V_DUP + 4 * ((i4 + 1) & 1)
        e("s_waitcnt lgkmcnt(0)")
        if i4 < 7:
            e(f"ds_read_b128 {vr(nxt)}, v{V_DUPO} offset:{OD + (i4+1)*64}")
        for ii in range(4):
            i = 4 * i4 + ii
            fr = V_FRAG + 4 * (i & 1)
            g.frag(fr, cur + ii)
            g.nop(2)
            g.mfma(V_ACC, fr, ar(4 * i))
    g.nop(10)
    e(f"v_cndmask_b32 v{R+6}, v{V_ACC}, v{V_ACC+2}, s[{S_HI}:{S_HI+1}]")
    e(f"v_cndmask_b32 v{R+7}, v{V_ACC+1}, v{V_ACC+3}, s[{S_HI}:{S_HI+1}]")
    e(f"buffer_store_dwordx4 {vr(R+6)}, v{V_TA}, {srd(sWS)}, s{S_TMP} offen sc1")
    e(f"s_cmp_eq_u32 s{S_W}, 4")
    e("s_cbranch_scc0 L_fin")
    e(f"v_and_b32 v{V_TA}, 31, v{V_LANE}")
    e(f"v_lshlrev_b32 v{V_TA}, 3, v{V_TA}")
    e(f"s_lshl_b32 s74, s{S_B}, 8")
    e(f"s_add_u32 s74, s74, {DFL}")
    flag_poll(V_TA, "s74", o["dsleep"])
    ts(11)
    e("s_lshl_b32 s72, s2, 13")
    e(f"s_add_u32 s72, s72, {AP}")
    O = V_TA
    gather_poll("s72", 1024, V_WIN, V_WIN + 32, O)
    for sw in ("v_permlane32_swap_b32", "v_permlane16_swap_b32"):
        for j in range(2):
            e(f"v_mov_b32 v{V_TC+j}, v{O+j}")
        g.nop(2)
        for j in range(2):
            e(f"{sw} v{O+j}, v{V_TC+j}")
        g.nop(1)
        for j in range(2):
            e(f"v_add_f32 v{O+j}, v{O+j}, v{V_TC+j}")
    for j in range(2):
        g.bf16r(O + j, O + j)
        e(f"v_add_f32 v{O+j}, v{O+j}, v{V_FX+j}")
        g.bf16r(O + j, O + j)
        e(f"v_add_f32 v{O+j}, v{O+j}, v{V_FB+j}")
    e(f"v_cvt_pk_bf16_f32 v{O}, v{O}, v{O+1}")
    e(f"v_lshlrev_b32 v{V_TC}, 2, v{V_C}")
    e("s_lshl_b32 s73, s2, 6")
    e("s_mov_b64 exec, 0xffff")
    e(f"buffer_store_dword v{O}, v{V_TC}, {srd(sO)}, s73 offen")
    e("s_mov_b64 exec, -1")
    g.lab("L_fin")
    ts(15)
    g.lab("L_done")
    e("s_endpgm")

    g.lab("L_aux_pro")
    tsv[0] = 127
    g.vm_restore(vm0)
    e("s_setprio 3")
    e(f"v_lshl_add_u32 v{V_TE}, v{V_G}, 15, v{V_TB}")
    e(f"s_lshl_b32 s72, s{S_B}, 2")
    e(f"s_add_u32 s72, s72, s{S_WA}")
    e(f"s_lshl_b32 s72, s72, 18")
    e(f"s_lshl_b32 s73, s{S_H}, 8")
    e("s_add_u32 s72, s72, s73")
    e(f"s_add_u32 s{sW}, s10, s72\ns_addc_u32 s{sW+1}, s11, 0")
    e(f"s_sub_u32 s{sW+2}, 0x800000, s72")
    for i in range(8):
        e(f"s_mov_b32 s{S_TMP}, {(16*(i>>2)+(i&3))*8192}")
        if 'Q' not in o['abl']:
            g.vissue(f"buffer_load_dwordx4 {ar(4*i)}, v{V_TE}, {srd(sW)}, s{S_TMP} offen {WF}", f"wq{i}")
    e(f"s_or_b32 s72, s2, s{S_WA}")
    e("s_cmp_eq_u32 s72, 0")
    e("s_cbranch_scc0 L_no_nonce")
    e("s_memrealtime s[72:73]")
    e("s_waitcnt lgkmcnt(0)")
    e("s_or_b32 s72, s72, 1")
    e(f"v_mov_b32 v{V_NONL}, s72")
    e(f"v_mov_b32 v{V_NONL+1}, s73")
    e("s_mov_b64 exec, 1")
    e(f"buffer_store_dwordx2 {vr(V_NONL,2)}, v{V_ZERO}, {srd(sDBG)}, 0 offen offset:8 sc1")
    e("s_mov_b64 exec, -1")
    g.nop(2)
    g.lab("L_no_nonce")
    g.vissue(f"buffer_load_dwordx2 {vr(V_NONL,2)}, v{V_ZERO}, {srd(sDBG)}, 0 offen offset:8 sc1", "non")
    e("s_lshr_b32 s72, s2, 3")
    e("s_and_b32 s73, s2, 7")
    e("s_mul_i32 s73, s73, 14")
    e("s_add_u32 s74, s73, s72")
    e("s_sub_u32 s75, s74, 14")
    e(f"s_and_b32 s{S_T1}, s74, 3")
    e(f"s_lshr_b32 s{S_T2}, s74, 2")
    e("s_cmp_lt_u32 s72, 14")
    e(f"s_cselect_b32 s{S_ROLE}, 1, 0")
    e("s_cbranch_scc1 L_role_done")
    e("s_cmp_lt_u32 s72, 28")
    e(f"s_cselect_b32 s{S_ROLE}, 2, 0")
    e(f"s_lshr_b32 s{S_T1}, s75, 3")
    e(f"s_and_b32 s{S_T2}, s75, 7")
    g.lab("L_role_done")
    if 'j' in o['abl']:
        e(f"s_mov_b32 s{S_ROLE}, 3")
    common_consts()
    e(f"v_and_b32 v{V_TC}, 3, v{V_TC}")
    e(f"v_lshlrev_b32 v{V_TA}, 4, v{V_G}")
    e(f"v_lshrrev_b32 v{V_TB}, 3, v{V_C}")
    e(f"v_lshl_add_u32 v{V_JOB}, v{V_TB}, 12, v{V_TA}")
    e(f"v_lshrrev_b32 v{V_TA}, 1, v{V_G}")
    e(f"v_lshl_add_u32 v{V_REDW}, v{V_TA}, 9, v{V_DW}")
    e(f"v_lshl_add_u32 v{V_REDW}, v{V_TC}, 12, v{V_REDW}")
    e(f"v_lshl_add_u32 v{V_TA16}, v{V_TC}, 10, v{V_L16}")
    ln_own_row()

    def tile_mfma(vaddr, nblk, abase, tagp, D):
        if o["cprio"] is not None and tagp == "jt":
            e(f"s_setprio {o['cprio']}")
        for j in range(16):
            e(f"v_mov_b32 v{D+j}, 0")
        seq = [(i4, pr) for i4 in range(nblk) for pr in range(4)]
        e(f"ds_read_b128 {vr(V_DUP)}, v{vaddr} offset:0")
        for n, (i4, pr) in enumerate(seq):
            cur = V_DUP + 4 * (n & 1)
            nxt = V_DUP + 4 * ((n + 1) & 1)
            e("s_waitcnt lgkmcnt(0)")
            if n + 1 < len(seq):
                i4n, prn = seq[n + 1]
                e(f"ds_read_b128 {vr(nxt)}, v{vaddr} offset:{prn*8192 + i4n*64}")
            for ii in range(4):
                i = 4 * i4 + ii
                fr = V_FRAG + 4 * (ii & 1)
                g.frag(fr, cur + ii)
                g.vwait(f"{tagp}{i}")
                g.nop(2)
                g.mfma(D + 4 * pr, fr, ar(abase + 4 * i))
        g.nop(10)
        if o["cprio"] is not None and tagp == "jt":
            e("s_setprio 3")
        for pr in range(4):
            e(f"ds_write_b128 v{V_REDW}, {vr(D+4*pr)} offset:{RED + pr*1024}")
        g.aux_sync()
        for w in range(4):
            e(f"ds_read_b128 {vr(D+4*w)}, v{V_TA16} offset:{RED + w*4096}")
        e("s_waitcnt lgkmcnt(0)")
        for j in range(4):
            e(f"v_add_f32 v{D+j}, v{D+j}, v{D+4+j}")
            e(f"v_add_f32 v{D+8+j}, v{D+8+j}, v{D+12+j}")
        for j in range(4):
            e(f"v_add_f32 v{D+j}, v{D+j}, v{D+8+j}")

    ts(4)
    QD = V_WIN
    e(f"s_lshl_b32 s72, s{S_B}, 9")
    e(f"s_lshl_b32 s73, s{S_WA}, 7")
    e("s_add_u32 s72, s72, s73")
    e(f"s_add_u32 s72, s72, {AT}")
    e(f"v_add_u32 v{V_TE}, s72, v{V_JOB}")
    tile_mfma(V_TE, 2, 0, "wq", QD)
    ts(5)
    e(f"s_lshl_b32 s72, s{S_H}, 3")
    e(f"s_add_u32 s72, s72, s{S_B}")
    e(f"s_lshl_b32 s{S_TMP}, s72, 12")
    e(f"s_add_u32 s{S_TMP}, s{S_TMP}, {QPW}")
    g.vissue(f"buffer_store_dwordx4 {vr(QD)}, v{V_TA16}, {srd(sWS)}, s{S_TMP} offen sc1", "qst")
    g.vwait("non")
    if o["non4"]:
        e(f"s_cmp_eq_u32 s{S_WA}, 0")
        e("s_cbranch_scc0 L_non_skip")
    ok = g.newlab("L_ok")
    sp = g.newlab("L_spin")
    e("s_mov_b32 s73, 0")
    g.lab(sp)
    e(f"v_readfirstlane_b32 s{S_NON}, v{V_NONL}")
    e(f"v_readfirstlane_b32 s{S_NON+1}, v{V_NONL+1}")
    g.nop(1)
    e(f"s_cmp_lg_u32 s{S_NON}, 0")
    e(f"s_cbranch_scc1 {ok}")
    e("s_add_u32 s73, s73, 1")
    e("s_cmp_ge_u32 s73, 0x4000")
    e(f"s_cbranch_scc1 {ok}")
    e(f"buffer_load_dwordx2 {vr(V_NONL,2)}, v{V_ZERO}, {srd(sDBG)}, 0 offen offset:8 sc1")
    e("s_waitcnt vmcnt(0)")
    e(f"s_branch {sp}")
    g.lab(ok)
    e(f"v_mov_b32 v{V_NONL}, s{S_NON}")
    e(f"v_mov_b32 v{V_NONL+1}, s{S_NON+1}")
    e(f"ds_write_b64 v{V_ZERO}, {vr(V_NONL,2)} offset:{CNT+24}")
    g.lab("L_non_skip")
    if o["qflag1"]:
        e(f"s_lshl_b32 s74, s{S_H}, 6")
        e(f"s_add_u32 s74, s74, {QFL}")
        e(f"s_lshl_b32 s73, s{S_B}, 3")
        e("s_add_u32 s73, s73, s74")
    else:
        e(f"s_lshl_b32 s72, s{S_H}, 2")
        e(f"s_add_u32 s73, s72, s{S_WA}")
        e(f"s_lshl_b32 s73, s73, 3")
        e(f"s_add_u32 s73, s73, s{S_B}")
        e(f"s_lshl_b32 s73, s73, 3")
        e(f"s_add_u32 s73, s73, {QFL}")
        e(f"s_lshr_b32 s74, s{S_B}, 1")
        e("s_add_u32 s74, s74, s72")
        e("s_lshl_b32 s74, s74, 6")
        e(f"s_add_u32 s74, s74, {QFL}")
    e(f"v_and_b32 v{V_TA}, 7, v{V_LANE}")
    e(f"v_lshlrev_b32 v{V_TA}, 3, v{V_TA}")
    g.vwait("qst")
    if o["qflag1"]:
        g.aux_sync()
    else:
        flag_set("s73")
    ts(6)
    e(f"s_cmp_eq_u32 s{S_WA}, 0")
    e("s_cbranch_scc0 L_no_gather")
    if o["qflag1"]:
        flag_set("s73")
    flag_poll(V_TA, "s74", 0)
    ts(7)
    e(f"s_lshl_b32 s72, s{S_H}, 15")
    e(f"s_lshl_b32 s73, s{S_B}, 9")
    e("s_add_u32 s72, s72, s73")
    for k8 in range(8):
        e(f"s_add_u32 s{S_TMP}, s72, {QPW + k8*4096}")
        e(f"buffer_load_dwordx2 {vr(QD+2*k8,2)}, v{V_L8}, {srd(sWS)}, s{S_TMP} offen sc1")
    e(f"v_lshlrev_b32 v{V_TA}, 2, v{V_LANE}")
    e("s_waitcnt vmcnt(0)")
    for k8 in range(1, 8):
        for j in range(2):
            e(f"v_add_f32 v{QD+j}, v{QD+j}, v{QD+2*k8+j}")
    e(f"v_cvt_pk_bf16_f32 v{QD}, v{QD}, v{QD+1}")
    e(f"ds_write_b32 v{V_TA}, v{QD} offset:{QB}")
    g.lds_arrive(CNT + 8)
    g.lab("L_no_gather")
    e(f"s_setprio {o['auxprio']}")
    ts(1)

    JT = 64
    D = V_D

    def job_store_signal(role, off):
        if o["contig"]:
            if role == "A":
                e(f"s_lshl_b32 s{S_TMP}, s{S_T2}, 2")
                e(f"s_add_u32 s{S_TMP}, s{S_TMP}, s{S_T1}")
            else:
                e(f"s_lshl_b32 s{S_TMP}, s{S_T1}, 3")
                e(f"s_add_u32 s{S_TMP}, s{S_TMP}, s{S_T2}")
            e(f"s_lshl_b32 s{S_TMP}, s{S_TMP}, 12")
            e(f"s_add_u32 s{S_TMP}, s{S_TMP}, {HP if role == 'A' else MP}")
            e(f"v_mov_b32 v{V_TA}, v{V_TA16}")
        else:
            rowb = 3584 * 4 if role == "A" else 1024 * 4
            e(f"v_and_b32 v{V_TA}, 255, v0")
            e(f"v_lshrrev_b32 v{V_TA}, 5, v{V_TA}")
            e(f"v_mul_u32_u24 v{V_TA}, {rowb}, v{V_TA}")
            e(f"v_and_b32 v{V_TB}, 31, v0")
            e(f"v_lshl_add_u32 v{V_TA}, v{V_TB}, 4, v{V_TA}")
            e(f"s_mul_i32 s{S_TMP}, s{S_T1}, {8*rowb}")
            e(f"s_lshl_b32 s73, s{S_T2}, 9")
            e(f"s_add_u32 s{S_TMP}, s{S_TMP}, s73")
            e(f"s_add_u32 s{S_TMP}, s{S_TMP}, {HP if role == 'A' else MP}")
        if 'S' in o['abl']:
            g.vwait_all()
            return
        g.vissue(f"buffer_store_dwordx4 {vr(D)}, v{V_TA}, {srd(sWS)}, s{S_TMP} offen sc1", "jst")
        g.vwait_all()
        g.aux_sync()
        lb = g.newlab("L_sig")
        e(f"s_cmp_eq_u32 s{S_WA}, 0")
        e(f"s_cbranch_scc0 {lb}")
        if role == "A":
            e(f"s_lshl_b32 s72, s{S_T2}, 5")
            e(f"s_lshl_b32 s73, s{S_T1}, 3")
            e("s_add_u32 s72, s72, s73")
            e(f"s_add_u32 s72, s72, {HFL}")
        else:
            e(f"s_lshr_b32 s72, s{S_T2}, 1")
            e("s_lshl_b32 s72, s72, 8")
            e(f"s_lshl_b32 s73, s{S_T1}, 4")
            e("s_add_u32 s72, s72, s73")
            e(f"s_and_b32 s73, s{S_T2}, 1")
            e("s_lshl_b32 s73, s73, 3")
            e("s_add_u32 s72, s72, s73")
            e(f"s_add_u32 s72, s72, {MFL}")
        flag_set("s72")
        g.lab(lb)

    e(f"s_cmp_eq_u32 s{S_ROLE}, 1")
    e("s_cbranch_scc0 L_not_a")
    g.role = "A"
    e(f"v_lshlrev_b32 v{V_TA}, 4, v{V_C}")
    e(f"v_mul_u32_u24 v{V_TE}, 28672, v{V_G}")
    e(f"v_add_u32 v{V_TE}, v{V_TE}, v{V_TA}")
    e(f"s_lshl_b32 s72, s{S_T1}, 2\ns_add_u32 s72, s72, s{S_WA}\ns_mul_i32 s72, s72, {64*7168}")
    e(f"s_lshl_b32 s73, s{S_T2}, 8\ns_add_u32 s72, s72, s73")
    e(f"s_add_u32 s{sW}, s16, s72\ns_addc_u32 s{sW+1}, s17, 0\ns_sub_u32 s{sW+2}, {1024*7168}, s72")
    for i in range(16):
        e(f"s_mov_b32 s{S_TMP}, {(16*(i>>2)+(i&3))*7168}")
        if 'L' not in o['abl']:
            g.vissue(f"buffer_load_dwordx4 {ar(JT+4*i)}, v{V_TE}, {srd(sW)}, s{S_TMP} offen {WF}", f"jt{i}")
    if o["cprio"] is not None:
        e(f"s_setprio {o['cprio']}")
    e(f"s_lshl_b32 s72, s{S_WA}, 13")
    e(f"s_add_u32 s72, s72, {AT}")
    e(f"v_add_u32 v{V_TD}, s72, v{V_L32}")
    e(f"v_add_u32 v{V_TE}, {AT2-AT}, v{V_TD}")
    for rr in range(2):
        for k in range(4):
            e(f"ds_read_b128 {vr(LE+4*k)}, v{V_TD} offset:{rr*4096 + (k>>1)*2048 + (k&1)*16}")
        e("s_waitcnt lgkmcnt(0)")
        for j in range(16):
            e(f"v_and_b32 v{LE+j}, s{S_HIM}, v{LE+j}")
        g.ln_core(LP, LE, LT)
        g.write_dup_row(LP, LE, V_TE, rr * 4096)
    e(f"s_lshl_b32 s72, s{S_T1}, 10")
    e(f"s_lshl_b32 s73, s{S_WA}, 8")
    e("s_add_u32 s72, s72, s73")
    e(f"s_add_u32 s72, s72, {AT2}")
    e(f"v_add_u32 v{V_TE}, s72, v{V_JOB}")
    g.aux_sync()
    tile_mfma(V_TE, 4, JT, "jt", D)
    job_store_signal("A", 0)
    e("s_branch L_job_done")
    g.role = "C"
    g.lab("L_not_a")
    e(f"s_cmp_eq_u32 s{S_ROLE}, 2")
    e("s_cbranch_scc0 L_job_n")
    g.role = "B"
    e(f"s_lshl_b32 s72, s{S_T1}, 2\ns_add_u32 s72, s72, s{S_WA}\ns_lshl_b32 s72, s72, 17")
    e(f"s_lshl_b32 s73, s{S_T2}, 8\ns_add_u32 s72, s72, s73")
    e(f"s_add_u32 s{sW}, s20, s72\ns_addc_u32 s{sW+1}, s21, 0\ns_sub_u32 s{sW+2}, {3584*2048}, s72")
    for i in range(16):
        e(f"s_mov_b32 s{S_TMP}, {(16*(i>>2)+(i&3))*2048}")
        if 'L' not in o['abl']:
            g.vissue(f"buffer_load_dwordx4 {ar(JT+4*i)}, v{V_W2K}, {srd(sW)}, s{S_TMP} offen {WF}", f"jt{i}")
    e(f"s_mov_b32 s{sB}, s18\ns_mov_b32 s{sB+1}, s19\ns_mov_b32 s{sB+2}, 7168\ns_mov_b32 s{sB+3}, 0x00020000")
    e(f"s_lshl_b32 s{S_TMP}, s{S_T1}, 9")
    B1 = LP
    g.vissue(f"buffer_load_dwordx2 {vr(B1,2)}, v{V_L8}, {srd(sB)}, s{S_TMP} offen", "b1")
    lb = g.newlab("L_bw")
    e(f"s_cmp_eq_u32 s{S_WA}, 0")
    e(f"s_cbranch_scc0 {lb}")
    e(f"v_and_b32 v{V_TA}, 7, v{V_LANE}")
    e(f"v_lshlrev_b32 v{V_TA}, 3, v{V_TA}")
    e(f"s_lshl_b32 s74, s{S_T1}, 6")
    e(f"s_add_u32 s74, s74, {HFL}")
    if 'S' not in o['abl']:
        flag_poll(V_TA, "s74", o["jsleep"])
    g.lab(lb)
    g.aux_sync()
    ts(8)
    HB = V_WIN
    e(f"v_lshrrev_b32 v{V_TC}, 5, v{V_LANE}")
    e(f"v_and_b32 v{V_TD}, 31, v{V_LANE}")
    e(f"v_lshlrev_b32 v{V_TD}, 4, v{V_TD}")
    if o["contig"]:
        e(f"v_lshl_add_u32 v{V_TD}, v{V_TC}, 14, v{V_TD}")
        e(f"s_lshl_b32 s72, s{S_T1}, 15")
        e(f"s_lshl_b32 s73, s{S_WA}, 10")
        e(f"s_add_u32 s72, s72, s73")
        for bb in range(2):
            for kq in range(4):
                e(f"s_add_u32 s{S_TMP}, s72, {HP + kq*4096 + bb*512}")
                g.vissue(f"buffer_load_dwordx4 {vr(HB+(bb*4+kq)*4)}, v{V_TD}, {srd(sWS)}, s{S_TMP} offen sc1", f"hp{bb*4+kq}")
    else:
        e(f"s_mul_i32 s72, s{S_WA}, {2*3584*4}")
        e(f"s_lshl_b32 s73, s{S_T1}, 10")
        e(f"s_add_u32 s72, s72, s73")
        for bb in range(2):
            for kq in range(4):
                e(f"s_add_u32 s{S_TMP}, s72, {HP + (kq*8+bb)*3584*4}")
                g.vissue(f"buffer_load_dwordx4 {vr(HB+(bb*4+kq)*4)}, v{V_L16}, {srd(sWS)}, s{S_TMP} offen sc1", f"hp{bb*4+kq}")
    T = LE
    g.vwait("b1")
    e(f"v_lshlrev_b32 v{T}, 16, v{B1}")
    e(f"v_and_b32 v{T+1}, s{S_HIM}, v{B1}")
    e(f"v_lshlrev_b32 v{T+2}, 16, v{B1+1}")
    e(f"v_and_b32 v{T+3}, s{S_HIM}, v{B1+1}")
    e(f"s_lshl_b32 s72, s{S_WA}, 13")
    e(f"s_add_u32 s72, s72, {AT2}")
    e(f"v_add_u32 v{V_TD}, s72, v{V_L16}")
    e(f"v_mov_b32 v{V_TA}, 0x3d372713")
    g.vwait("hp7")
    for bb in range(2):
        hb = HB + bb * 16
        for j in range(4):
            x = T + 4 + 4 * bb + j
            t = T + 12 + j
            e(f"v_add_f32 v{x}, v{hb+j}, v{hb+4+j}")
            e(f"v_add_f32 v{x}, v{x}, v{hb+8+j}")
            e(f"v_add_f32 v{x}, v{x}, v{hb+12+j}")
            g.bf16r(x, x)
            e(f"v_add_f32 v{x}, v{x}, v{T+j}")
            g.bf16r(x, x)
            e(f"v_mul_f32 v{t}, v{x}, v{x}")
            e(f"v_mul_f32 v{t}, v{t}, v{x}")
            e(f"v_fma_f32 v{t}, v{t}, v{V_TA}, v{x}")
            e(f"v_mul_f32 v{t}, 0xc0135761, v{t}")
            e(f"v_exp_f32 v{t}, v{t}")
            g.nop(1)
            e(f"v_add_f32 v{t}, 1.0, v{t}")
            e(f"v_rcp_f32 v{t}, v{t}")
            g.nop(1)
            e(f"v_mul_f32 v{x}, v{x}, v{t}")
            e(f"v_cvt_pk_bf16_f32 v{x}, v{x}, v{x}")
        e(f"ds_write_b128 v{V_TD}, {vr(T+4+4*bb)} offset:{bb*4096}")
    e(f"s_lshl_b32 s73, s{S_WA}, 8")
    e(f"s_add_u32 s72, s73, {AT2}")
    e(f"v_add_u32 v{V_TE}, s72, v{V_JOB}")
    g.aux_sync()
    tile_mfma(V_TE, 4, JT, "jt", D)
    job_store_signal("B", 4)
    e("s_branch L_job_done")
    g.role = "C"
    g.lab("L_job_n")
    e(f"s_cmp_eq_u32 s{S_WA}, 0")
    e("s_cbranch_scc0 L_job_done")
    if 'j' in o['abl'] or 'S' in o['abl']:
        e("s_branch L_job_done")
    e("s_lshr_b32 s72, s2, 3")
    e(f"s_sub_u32 s{S_T2}, s72, 28")
    e(f"s_and_b32 s{S_T1}, s2, 7")
    e(f"s_mov_b32 s{sB}, s22\ns_mov_b32 s{sB+1}, s23\ns_mov_b32 s{sB+2}, 2048\ns_mov_b32 s{sB+3}, 0x00020000")
    e(f"s_lshl_b32 s72, s{S_T2}, 9")
    B2R = LP
    e(f"buffer_load_dwordx2 {vr(B2R,2)}, v{V_L8}, {srd(sB)}, s72 offen")
    e(f"v_min_u32 v{V_TA}, 27, v{V_LANE}")
    e(f"v_lshlrev_b32 v{V_TA}, 3, v{V_TA}")
    e(f"s_lshl_b32 s74, s{S_T2}, 8")
    e(f"s_add_u32 s74, s74, {MFL}")
    flag_poll(V_TA, "s74", o["jsleep"])
    ts(9)
    e(f"s_lshl_b32 s72, s{S_T1}, 12")
    e(f"s_lshl_b32 s73, s{S_T2}, 10")
    e("s_add_u32 s72, s72, s73")
    M = V_WIN
    if o["contig"]:
        e(f"v_lshrrev_b32 v{V_TC}, 5, v{V_LANE}")
        e(f"v_and_b32 v{V_TD}, 31, v{V_LANE}")
        e(f"v_lshlrev_b32 v{V_TD}, 4, v{V_TD}")
        e(f"v_lshl_add_u32 v{V_TD}, v{V_TC}, 12, v{V_TD}")
        e(f"s_lshl_b32 s73, s{S_T2}, 13")
        e(f"s_lshl_b32 s74, s{S_T1}, 9")
        e("s_add_u32 s73, s73, s74")
        for ks in range(14):
            e(f"s_add_u32 s{S_TMP}, s73, {MP + ks*8*4096}")
            e(f"buffer_load_dwordx4 {vr(M+4*ks)}, v{V_TD}, {srd(sWS)}, s{S_TMP} offen sc1")
    else:
        for ks in range(14):
            e(f"s_add_u32 s{S_TMP}, s72, {MP + ks*8*4096}")
            e(f"buffer_load_dwordx4 {vr(M+4*ks)}, v{V_L16}, {srd(sWS)}, s{S_TMP} offen sc1")
    e(f"v_lshlrev_b32 v{T}, 16, v{B2R}")
    e(f"v_and_b32 v{T+1}, s{S_HIM}, v{B2R}")
    e(f"v_lshlrev_b32 v{T+2}, 16, v{B2R+1}")
    e(f"v_and_b32 v{T+3}, s{S_HIM}, v{B2R+1}")
    e("s_waitcnt vmcnt(0)")
    for ks in range(1, 14):
        for j in range(4):
            e(f"v_add_f32 v{M+j}, v{M+j}, v{M+4*ks+j}")
    for j in range(4):
        g.bf16r(M + j, M + j)
        e(f"v_add_f32 v{M+j}, v{M+j}, v{T+j}")
        g.bf16r(M + j, M + j)
    e(f"s_add_u32 s{S_TMP}, s72, {BFIN}")
    e(f"buffer_store_dwordx4 {vr(M)}, v{V_L16}, {srd(sWS)}, s{S_TMP} offen sc1")
    e(f"s_lshl_b32 s72, s{S_T1}, 2")
    e(f"s_add_u32 s72, s72, s{S_T2}")
    e("s_lshl_b32 s72, s72, 6")
    e(f"s_add_u32 s72, s72, {BFL}")
    e("s_waitcnt vmcnt(0)")
    flag_set("s72")
    g.lab("L_job_done")
    ts(2)
    if o["wosync"]:
        g.lds_wait_ge(CNT + 20, 1, sleep=64)
    wo_srd()
    for i in range(32):
        wo_issue(i)
    e(f"s_cmp_eq_u32 s{S_WA}, 0")
    e("s_cbranch_scc0 L_tail")
    e(f"v_lshlrev_b32 v{V_TA}, 2, v{V_C}")
    e("s_lshl_b32 s73, s2, 6")
    e(f"buffer_load_dword v{V_FB}, v{V_TA}, {srd(sX)}, s73 offen")
    e(f"s_lshl_b32 s74, s{S_B}, 2")
    e(f"s_lshr_b32 s72, s{S_H}, 3")
    e("s_add_u32 s74, s74, s72")
    e("s_lshl_b32 s74, s74, 6")
    e(f"s_add_u32 s74, s74, {BFL}")
    e("s_waitcnt vmcnt(0)")
    ts(10)
    e(f"v_lshlrev_b32 v{V_FX}, 16, v{V_FB}")
    e(f"v_and_b32 v{V_FX+1}, s{S_HIM}, v{V_FB}")
    g.lds_wait_ge(CNT + 16, 1, sleep=64)
    if 'j' not in o['abl'] and 'S' not in o['abl']:
        flag_poll(V_ZERO, "s74", 64)
    e(f"v_lshlrev_b32 v{V_TA}, 3, v{V_C}")
    e("s_lshl_b32 s72, s2, 7")
    e(f"s_add_u32 s72, s72, {BFIN}")
    e(f"buffer_load_dwordx2 {vr(V_FB,2)}, v{V_TA}, {srd(sWS)}, s72 offen sc1")
    if o["early"]:
        g.lds_wait_ge(CNT + 12, 4, sleep=8)
        e("s_lshl_b32 s72, s2, 3")
        e(f"s_add_u32 s72, s72, {DFL}")
        flag_set("s72")
    ts(3)
    e("s_branch L_tail")
    return g


HEADER = open("cdna_kernels/" + NAME + ".s.ref").read().split("; Override launch geometry")[0]
BLOCK = 512


def full_asm(opt=None):
    g = build(opt)
    s = HEADER
    s += "; generated by gen/gen7.py\n"
    s += f"; @launch grid=(256,1,1) block=({BLOCK},1,1) lds={LDS_BYTES}\n"
    s += '.amdgcn_target "amdgcn-amd-amdhsa--gfx950"\n.text\n'
    s += f".globl {KNAME}\n.p2align 8\n.type {KNAME},@function\n{KNAME}:\n"
    s += "\n".join(g.L) + "\n"
    s += f""".section .rodata,"a"
.p2align 6
.amdhsa_kernel {KNAME}
  .amdhsa_next_free_vgpr 256
  .amdhsa_next_free_sgpr 102
  .amdhsa_accum_offset 128
  .amdhsa_group_segment_fixed_size 0
  .amdhsa_kernarg_size 104
  .amdhsa_user_sgpr_count 2
  .amdhsa_user_sgpr_kernarg_segment_ptr 1
  .amdhsa_system_sgpr_workgroup_id_x 1
.end_amdhsa_kernel
"""
    return s


if __name__ == "__main__":
    out = "cdna_kernels/" + NAME + ".s"
    open(out, "w").write(full_asm())
    print("wrote", out, os.path.getsize(out))
```

```python
import sys, os

NAME = "parallel_sum__mha_block_cached__mixer_channel_mlp__decode"
KNAME = NAME + "_kernel"

OPT = dict(
    stream_flag="nt",
    w_flag="nt",
    ws_flag="",
    ts=False,
    apf=32,
    depth=16,
    auxprio=3,
    late=True,
    remap=2,
    non4=True,
    early=0,
    cprio=None,
    v_flag=None,
    v_from=256,
    woburst=0,
    remapb=0,
    remapbm=1,
    dsleep=12,
    contig=True,
    wosync=True,
    qflag1=True,
    abl='',
    jsleep=64,
    spread=True,
    din=8,
)

PD = 0
OP = 16384
OD = 18432
FB = 22528
FX = 26624
QB = 30720
SM = 30976
CNT = 31040
RED = 32768
AT = 49152
AT2 = 81920
LDS_BYTES = 114688

HP = 0
MP = 0x80000
AP = 0x400000
QPW = 0x200000
QFL = 0x300000
HFL = QFL + 0x2000
MFL = QFL + 0x3000
BFL = QFL + 0x4000
DFL = QFL + 0x5000
BFIN = QFL + 0x8000
WS_BYTES = 0x600000
TS_OFF = 0x600000

sK, sV, sW, sX, sWS, sDBG, sB, sO = 32, 36, 40, 44, 48, 52, 56, 60
S_W, S_B, S_H, S_ROLE, S_T1, S_T2, S_OFF, S_TMP = 64, 65, 66, 67, 68, 69, 70, 71
S_NON = 76
S_WA = 78
S_XT = 79
S_ODD, S_TWO = 80, 82
S_RL = 86
S_SELLO, S_SELHI, S_HIM = 90, 91, 92
S_TS = 94
S_HI = 84


def srd(n):
    return f"s[{n}:{n+3}]"


def vr(a, n=4):
    return f"v[{a}:{a+n-1}]"


def ar(a, n=4):
    return f"a[{a}:{a+n-1}]"


V_LANE, V_G, V_C, V_L16, V_L32, V_L8, V_ZERO = 1, 2, 3, 4, 5, 6, 7
V_MASK = 8
V_DW, V_W2K = 12, 13
V_TA, V_TB, V_TC, V_TD, V_TE, V_TF = 14, 15, 16, 17, 18, 19
V_DUPO = 20
V_X1, V_X2, V_X3 = 21, 22, 23
LP, LE, LT = 24, 32, 48
V_ACC = 28
V_Q = 24
V_DUP = 32
V_FRAG = 40
V_A = 32
V_D = 48
V_WIN = 64
DEPTH = 16
V_KV, V_DUPP, V_PDW = V_X1, V_X2, V_X3
V_M = 63
V_JOB, V_REDW, V_TA16 = V_X1, V_X2, V_X3
V_NON, V_FLG = V_TE, V_TC
V_NONL = 120
V_FX, V_FB = 24, 26


class G:
    def __init__(self):
        self.L = []
        self.vm = {"C": [], "A": [], "B": []}
        self.role = "C"
        self.nlab = 0

    def e(self, s):
        for ln in s.split("\n"):
            self.L.append("  " + ln.strip())

    def lab(self, l):
        self.L.append(l + ":")

    def newlab(self, p="L"):
        self.nlab += 1
        return f"{p}_{self.nlab}"

    def nop(self, n):
        while n > 0:
            k = min(n, 16)
            self.e(f"s_nop {k-1}")
            n -= k

    def _roles(self):
        return list(self.vm.keys()) if self.role == "C" else [self.role]

    def vissue(self, instr, tag):
        worst = max(len(self.vm[r]) for r in self._roles())
        if worst >= 63:
            self._wait_n(61)
        self.e(instr)
        for r in self._roles():
            self.vm[r].append(tag)

    def _wait_n(self, n):
        self.e(f"s_waitcnt vmcnt({n})")
        for r in self._roles():
            f = self.vm[r]
            self.vm[r] = [] if n == 0 else f[-n:]

    def vwait(self, tag):
        f = self.vm[self.role]
        if tag not in f:
            return
        self._wait_n(len(f) - 1 - f.index(tag))

    def vwait_all(self):
        self._wait_n(0)

    def vm_save(self):
        return {k: list(v) for k, v in self.vm.items()}

    def vm_restore(self, s):
        self.vm = {k: list(v) for k, v in s.items()}

    def wave_reduce(self, T, op):
        for r in (8, 4, 2, 1):
            self.nop(2)
            self.e(f"v_{op}_f32_dpp v{T}, v{T}, v{T} row_ror:{r} row_mask:0xf bank_mask:0xf")
        self.nop(1)
        for i in range(4):
            self.e(f"v_readlane_b32 s{S_RL+i}, v{T}, {16*i}")
        self.nop(2)
        self.e(f"v_mov_b32 v{T}, s{S_RL}")
        for i in range(1, 4):
            self.e(f"v_{op}_f32 v{T}, s{S_RL+i}, v{T}")

    def bf16r(self, dst, src):
        self.e(f"v_cvt_pk_bf16_f32 v{dst}, v{src}, v{src}")
        self.e(f"v_lshlrev_b32 v{dst}, 16, v{dst}")

    def ln_unpack(self, P, E):
        for j in range(8):
            self.e(f"v_lshlrev_b32 v{E+2*j}, 16, v{P+j}")
            self.e(f"v_and_b32 v{E+2*j+1}, s{S_HIM}, v{P+j}")

    def ln_core(self, DST, E, T):
        e = self.e
        e(f"v_add_f32 v{T}, v{E}, v{E+1}")
        e(f"v_add_f32 v{T+1}, v{E+2}, v{E+3}")
        e(f"v_add_f32 v{T+2}, v{E+4}, v{E+5}")
        e(f"v_add_f32 v{T+3}, v{E+6}, v{E+7}")
        for j in range(4):
            e(f"v_add_f32 v{T+j}, v{T+j}, v{E+8+2*j}")
            e(f"v_add_f32 v{T+j}, v{T+j}, v{E+9+2*j}")
        e(f"v_add_f32 v{T}, v{T}, v{T+1}")
        e(f"v_add_f32 v{T+2}, v{T+2}, v{T+3}")
        e(f"v_add_f32 v{T}, v{T}, v{T+2}")
        self.wave_reduce(T, "add")
        e(f"v_mul_f32 v{T}, 0x3a800000, v{T}")
        self.bf16r(T + 1, T)
        e(f"v_mov_b32 v{T+2}, 0")
        e(f"v_mov_b32 v{T+3}, 0")
        for j in range(16):
            e(f"v_sub_f32 v{T+4+(j&1)}, v{E+j}, v{T}")
            e(f"v_fmac_f32 v{T+2+(j&1)}, v{T+4+(j&1)}, v{T+4+(j&1)}")
        e(f"v_add_f32 v{T+2}, v{T+2}, v{T+3}")
        self.wave_reduce(T + 2, "add")
        e(f"v_mul_f32 v{T+2}, 0x3a800000, v{T+2}")
        self.bf16r(T + 2, T + 2)
        e(f"v_add_f32 v{T+2}, 0x3727c5ac, v{T+2}")
        self.bf16r(T + 2, T + 2)
        e(f"v_sqrt_f32 v{T+2}, v{T+2}")
        self.nop(1)
        self.bf16r(T + 2, T + 2)
        e(f"v_rcp_f32 v{T+3}, v{T+2}")
        self.nop(1)
        for j in range(8):
            a, b = E + 2 * j, E + 2 * j + 1
            e(f"v_sub_f32 v{a}, v{a}, v{T+1}")
            e(f"v_sub_f32 v{b}, v{b}, v{T+1}")
            e(f"v_cvt_pk_bf16_f32 v{T+4}, v{a}, v{b}")
            e(f"v_lshlrev_b32 v{a}, 16, v{T+4}")
            e(f"v_and_b32 v{b}, s{S_HIM}, v{T+4}")
            e(f"v_mul_f32 v{T+4}, v{a}, v{T+3}")
            e(f"v_mul_f32 v{T+5}, v{b}, v{T+3}")
            e(f"v_fma_f32 v{T+6}, -v{T+4}, v{T+2}, v{a}")
            e(f"v_fma_f32 v{T+7}, -v{T+5}, v{T+2}, v{b}")
            e(f"v_fmac_f32 v{T+4}, v{T+6}, v{T+3}")
            e(f"v_fmac_f32 v{T+5}, v{T+7}, v{T+3}")
            e(f"v_cvt_pk_bf16_f32 v{DST+j}, v{T+4}, v{T+5}")

    def write_dup_row(self, P, E, vaddr, base):
        for j in range(8):
            self.e(f"v_perm_b32 v{E+2*j}, v{P+j}, v{P+j}, s{S_SELLO}")
            self.e(f"v_perm_b32 v{E+2*j+1}, v{P+j}, v{P+j}, s{S_SELHI}")
        for k in range(4):
            off = base + (k >> 1) * 2048 + (k & 1) * 16
            self.e(f"ds_write_b128 v{vaddr}, {vr(E+4*k)} offset:{off}")

    def frag(self, fr, dup):
        for j in range(4):
            self.e(f"v_and_b32 v{fr+j}, v{dup}, v{V_MASK+j}")

    def mfma(self, D, fr, B):
        self.e(f"v_mfma_f32_16x16x32_bf16 {vr(D)}, {vr(fr)}, {B}, {vr(D)}")

    def lds_wait_ge(self, off, target, sleep=1):
        sp = self.newlab("L_lspin")
        self.lab(sp)
        self.e(f"ds_read_b32 v{V_TF}, v{V_ZERO} offset:{off}")
        self.e("s_waitcnt lgkmcnt(0)")
        self.e(f"v_readfirstlane_b32 s72, v{V_TF}")
        self.nop(1)
        self.e(f"s_cmp_ge_u32 s72, {target}")
        self.e(f"s_cbranch_scc1 {sp}_ok")
        if sleep:
            self.e(f"s_sleep {sleep}")
        self.e(f"s_branch {sp}")
        self.lab(sp + "_ok")

    def lds_arrive(self, off):
        self.e("s_waitcnt lgkmcnt(0)")
        self.e("s_mov_b64 exec, 1")
        self.e(f"v_mov_b32 v{V_TF}, 1")
        self.e(f"ds_add_u32 v{V_ZERO}, v{V_TF} offset:{off}")
        self.e("s_mov_b64 exec, -1")

    def aux_sync(self):
        self.lds_arrive(CNT)
        self.e(f"s_add_u32 s{S_XT}, s{S_XT}, 4")
        self.lds_wait_ge(CNT, f"s{S_XT}", sleep=0)


def build(opt=None):
    o = dict(OPT)
    if opt:
        o.update(opt)
    SF, WF, WSF = o["stream_flag"], o["w_flag"], o["ws_flag"]
    APF = o["apf"]
    DEPTH = o["depth"]
    g = G()
    e = g.e

    tsv = [62]

    def ts(i):
        if not o["ts"]:
            return
        if i == 0:
            e(f"s_memrealtime s[{S_TS}:{S_TS+1}]")
            return
        e(f"s_memrealtime s[{S_TS+2}:{S_TS+3}]")
        e("s_waitcnt lgkmcnt(0)")
        e(f"v_mov_b32 v{tsv[0]}, s{S_TS+2}")
        e(f"s_mov_b32 s{sWS+2}, 0x680000")
        e(f"s_lshl_b32 s{S_TS+2}, s2, 9\ns_lshl_b32 s{S_TS+3}, s{S_W}, 6\ns_add_u32 s{S_TS+2}, s{S_TS+2}, s{S_TS+3}\ns_add_u32 s{S_TS+2}, s{S_TS+2}, {TS_OFF}")
        e(f"buffer_store_dword v{tsv[0]}, v{V_ZERO}, {srd(sWS)}, s{S_TS+2} offen offset:{4*i}")
        if i == 15:
            e(f"v_mov_b32 v{tsv[0]}, s{S_TS}")
            e(f"buffer_store_dword v{tsv[0]}, v{V_ZERO}, {srd(sWS)}, s{S_TS+2} offen offset:0")

    def flag_poll(vaddr, soff, sleep):
        ok = g.newlab("L_ok")
        sp = g.newlab("L_spin")
        e("s_mov_b32 s75, 0")
        g.lab(sp)
        e(f"buffer_load_dwordx2 {vr(V_FLG,2)}, v{vaddr}, {srd(sWS)}, {soff} offen sc1")
        e("s_waitcnt vmcnt(0)")
        e(f"v_cmp_ne_u64 vcc, s[{S_NON}:{S_NON+1}], {vr(V_FLG,2)}")
        e("s_add_u32 s75, s75, 1")
        e("s_cmp_ge_u32 s75, 0x4000")
        e(f"s_cbranch_scc1 {ok}")
        g.nop(2)
        e(f"s_cbranch_vccz {ok}")
        if sleep:
            e(f"s_sleep {sleep}")
        e(f"s_branch {sp}")
        g.lab(ok)

    def gather_poll(soff_base, stride, SA, SB, OUT, boff=0):
        def issue(S, off):
            for k in range(8):
                e(f"s_add_u32 s{S_TMP}, {soff_base}, {k*stride + off}")
                e(f"buffer_load_dwordx4 {vr(S+4*k)}, v{V_L16}, {srd(sWS)}, s{S_TMP} offen sc1")

        def check(S, oklab):
            e("s_waitcnt vmcnt(8)")
            e("s_mov_b64 s[74:75], 0")
            for k in range(8):
                e(f"v_cmp_ne_u64 vcc, s[{S_NON}:{S_NON+1}], {vr(S+4*k+2,2)}")
                g.nop(1)
                e("s_or_b64 s[74:75], s[74:75], vcc")
            e("s_cmp_eq_u64 s[74:75], 0")
            e(f"s_cbranch_scc1 {oklab}")
        lp = g.newlab("L_gp")
        e("s_mov_b32 s73, 0")
        issue(SA, 0)
        g.lab(lp)
        issue(SB, 0)
        check(SA, lp + "_a")
        issue(SA, 0)
        check(SB, lp + "_b")
        if boff:
            issue(SB, boff)
            check(SA, lp + "_a")
            issue(SA, 0)
            check(SB, lp + "_b")
        e("s_add_u32 s73, s73, 1")
        e("s_cmp_lt_u32 s73, 0x2000")
        e(f"s_cbranch_scc1 {lp}")
        for nm, S in (("_b", SB), ("_a", SA)):
            g.lab(lp + nm)
            e(f"v_add_f32 v{OUT}, v{S}, v{S+4}")
            e(f"v_add_f32 v{OUT+1}, v{S+1}, v{S+5}")
            for k in range(2, 8):
                e(f"v_add_f32 v{OUT}, v{OUT}, v{S+4*k}")
                e(f"v_add_f32 v{OUT+1}, v{OUT+1}, v{S+4*k+1}")
            if nm == "_b":
                e(f"s_branch {lp}_done")
        g.lab(lp + "_done")

    def flag_set(soff):
        e(f"v_mov_b32 v{V_NON}, s{S_NON}")
        e(f"v_mov_b32 v{V_NON+1}, s{S_NON+1}")
        e("s_mov_b64 exec, 1")
        e(f"buffer_store_dwordx2 {vr(V_NON,2)}, v{V_ZERO}, {srd(sWS)}, {soff} offen sc1")
        e("s_mov_b64 exec, -1")

    e("s_cmp_ge_u32 s2, 256")
    e("s_cbranch_scc1 L_done")
    e("s_load_dwordx16 s[4:19], s[0:1], 0")
    e("s_load_dwordx8 s[20:27], s[0:1], 64")
    e("s_load_dwordx2 s[28:29], s[0:1], 96")
    if o["remap"]:
        e("s_lshr_b32 s72, s2, 3")
        e("s_and_b32 s72, s72, 3")
        e(f"s_mul_i32 s72, s72, {o['remap']}")
        e("s_add_u32 s72, s72, s2")
        if o["remapb"]:
            e("s_lshr_b32 s73, s2, 5")
            e(f"s_and_b32 s73, s73, {o['remapbm']}")
            e(f"s_mul_i32 s73, s73, {o['remapb']}")
            e("s_add_u32 s72, s72, s73")
        e("s_and_b32 s72, s72, 7")
        e("s_and_b32 s2, s2, 0xf8")
        e("s_or_b32 s2, s2, s72")
    ts(0)
    e(f"v_and_b32 v{V_LANE}, 63, v0")
    e(f"v_lshrrev_b32 v{V_TC}, 6, v0")
    e(f"v_lshrrev_b32 v{V_G}, 4, v{V_LANE}")
    e(f"v_readfirstlane_b32 s{S_W}, v{V_TC}")
    e(f"v_and_b32 v{V_C}, 15, v{V_LANE}")
    e(f"v_lshlrev_b32 v{V_L16}, 4, v{V_LANE}")
    e(f"v_lshlrev_b32 v{V_L32}, 5, v{V_LANE}")
    e(f"v_lshlrev_b32 v{V_L8}, 3, v{V_LANE}")
    e(f"v_mov_b32 v{V_ZERO}, 0")
    e(f"v_lshlrev_b32 v{V_TB}, 4, v{V_C}")
    e(f"v_lshl_add_u32 v{V_W2K}, v{V_G}, 13, v{V_TB}")
    e(f"s_and_b32 s{S_H}, s2, 31")
    e(f"s_lshr_b32 s{S_B}, s2, 5")
    e(f"s_and_b32 s{S_WA}, s{S_W}, 3")
    e(f"s_mov_b32 s{S_SELLO}, 0x01000100")
    e(f"s_mov_b32 s{S_SELHI}, 0x03020302")
    e(f"s_mov_b32 s{S_HIM}, 0xffff0000")
    e(f"s_mov_b32 s{S_ODD}, 0xaaaaaaaa")
    e(f"s_mov_b32 s{S_ODD+1}, 0xaaaaaaaa")
    e(f"s_mov_b32 s{S_TWO}, 0xcccccccc")
    e(f"s_mov_b32 s{S_TWO+1}, 0xcccccccc")
    e(f"s_mov_b32 s{S_XT}, 0")
    e("s_waitcnt lgkmcnt(0)")
    e(f"s_mov_b32 s{sX}, s4\ns_mov_b32 s{sX+1}, s5\ns_mov_b32 s{sX+2}, 16384\ns_mov_b32 s{sX+3}, 0x00020000")
    e(f"s_lshl_b32 s{S_TMP}, s{S_W}, 11")
    g.vissue(f"buffer_load_dwordx4 {vr(LP)}, v{V_L16}, {srd(sX)}, s{S_TMP} offen", "x0")
    g.vissue(f"buffer_load_dwordx4 {vr(LP+4)}, v{V_L16}, {srd(sX)}, s{S_TMP} offen offset:1024", "x1")
    e(f"s_mov_b32 s{sDBG}, s26\ns_mov_b32 s{sDBG+1}, s27\ns_mov_b32 s{sDBG+2}, 256\ns_mov_b32 s{sDBG+3}, 0x00020000")
    e(f"s_mov_b32 s{sWS}, s28\ns_mov_b32 s{sWS+1}, s29\ns_mov_b32 s{sWS+2}, {WS_BYTES}\ns_mov_b32 s{sWS+3}, 0x00020000")
    e(f"s_mov_b32 s{sW+3}, 0x00020000")
    e(f"s_cmp_ge_u32 s{S_W}, 4")
    e("s_cbranch_scc1 L_aux_pro")

    def common_consts():
        e(f"s_mov_b32 s{sO}, s24\ns_mov_b32 s{sO+1}, s25\ns_mov_b32 s{sO+2}, 16384\ns_mov_b32 s{sO+3}, 0x00020000")
        e(f"v_and_b32 v{V_TA}, 1, v{V_C}")
        e(f"v_lshlrev_b32 v{V_TA}, 4, v{V_TA}")
        e(f"v_mov_b32 v{V_TB}, 0xffff")
        e(f"v_lshlrev_b32 v{V_TB}, v{V_TA}, v{V_TB}")
        e(f"v_bfe_u32 v{V_TA}, v{V_C}, 1, 2")
        for j in range(4):
            e(f"v_cmp_eq_u32 vcc, {j}, v{V_TA}")
            g.nop(2)
            e(f"v_cndmask_b32 v{V_MASK+j}, 0, v{V_TB}, vcc")
        e(f"v_lshlrev_b32 v{V_TA}, 4, v{V_G}")
        e(f"v_lshl_add_u32 v{V_DUPO}, v{V_TC}, 9, v{V_TA}")
        e(f"v_and_b32 v{V_TB}, 1, v{V_G}")
        e(f"v_lshlrev_b32 v{V_TB}, 4, v{V_TB}")
        e(f"v_lshl_add_u32 v{V_DW}, v{V_C}, 5, v{V_TB}")

    def ln_own_row():
        e(f"s_lshl_b32 s72, s{S_W}, 12")
        e(f"s_add_u32 s72, s72, {AT}")
        e(f"v_add_u32 v{V_TD}, s72, v{V_L32}")
        g.vwait("x1")
        g.ln_unpack(LP, LE)
        g.ln_core(LP, LE, LT)
        g.write_dup_row(LP, LE, V_TD, 0)
        e("s_waitcnt lgkmcnt(0)")
        e("s_barrier")

    def wo_srd():
        e(f"s_lshl_b32 s72, s{S_H}, 18")
        e(f"s_lshl_b32 s73, s{S_W}, 8")
        e("s_add_u32 s72, s72, s73")
        e(f"s_add_u32 s{sW}, s12, s72\ns_addc_u32 s{sW+1}, s13, 0\ns_sub_u32 s{sW+2}, 0x800000, s72")

    def wo_issue(i):
        if 'w' in o['abl']:
            return
        e(f"s_mov_b32 s{S_TMP}, {(16*(i>>2)+(i&3))*2048}")
        g.vissue(f"buffer_load_dwordx4 {ar(4*i)}, v{V_W2K}, {srd(sW)}, s{S_TMP} offen {WSF}", f"wo{i}")

    vm0 = g.vm_save()

    e("s_lshl_b32 s72, s2, 20")
    e(f"s_add_u32 s{sK}, s6, s72\ns_addc_u32 s{sK+1}, s7, 0\ns_mov_b32 s{sK+2}, 0x100000\ns_mov_b32 s{sK+3}, 0x00020000")
    e(f"s_add_u32 s{sV}, s8, s72\ns_addc_u32 s{sV+1}, s9, 0\ns_mov_b32 s{sV+2}, 0x100000\ns_mov_b32 s{sV+3}, 0x00020000")
    e(f"v_lshl_add_u32 v{V_KV}, v{V_TC}, 12, v{V_L16}")
    e(f"s_mov_b32 s{S_OFF}, 0")

    def dest(L):
        if L < APF:
            return ("a", 4 * L)
        return ("v", V_WIN + 4 * ((L - APF) % DEPTH))

    def stream_issue(L):
        if L >= 512:
            return
        if L == 256:
            e(f"s_mov_b32 s{S_OFF}, 0")
        sd = sK if L < 256 else sV
        k, r = dest(L)
        d = ar(r) if k == "a" else vr(r)
        fl = SF if (o["v_flag"] is None or L < o["v_from"]) else o["v_flag"]
        g.vissue(f"buffer_load_dwordx4 {d}, v{V_KV}, {srd(sd)}, s{S_OFF} offen offset:{(L&3)*1024} {fl}", f"S{L}")
        if L & 3 == 3:
            e(f"s_add_u32 s{S_OFF}, s{S_OFF}, 16384")

    DIN = o["din"]
    for L in range(DIN):
        stream_issue(L)
    common_consts()
    lb = g.newlab("L_ci")
    e(f"s_cmp_eq_u32 s{S_W}, 0")
    e(f"s_cbranch_scc0 {lb}")
    for j in range(4):
        e(f"v_mov_b32 v{V_TA+j}, 0")
    e(f"ds_write_b128 v{V_ZERO}, {vr(V_TA)} offset:{CNT}")
    e(f"ds_write_b128 v{V_ZERO}, {vr(V_TA)} offset:{CNT+16}")
    g.lab(lb)
    e(f"v_lshrrev_b32 v{V_TC}, 6, v0")
    e(f"v_lshlrev_b32 v{V_TA}, 4, v{V_G}")
    e(f"v_lshl_add_u32 v{V_DUPP}, v{V_TC}, 12, v{V_TA}")
    e(f"v_bfe_u32 v{V_TB}, v{V_C}, 1, 1")
    e(f"v_lshl_add_u32 v{V_PDW}, v{V_TB}, 7, v{V_DUPP}")
    e(f"v_and_b32 v{V_TB}, 1, v{V_C}")
    e(f"v_lshl_add_u32 v{V_PDW}, v{V_TB}, 6, v{V_PDW}")
    e(f"v_bfe_u32 v{V_TB}, v{V_C}, 2, 1")
    e(f"v_lshl_add_u32 v{V_PDW}, v{V_TB}, 3, v{V_PDW}")
    e(f"v_lshrrev_b32 v{V_TB}, 3, v{V_C}")
    e(f"v_lshl_add_u32 v{V_PDW}, v{V_TB}, 2, v{V_PDW}")
    ln_own_row()
    for L in range(DIN, APF + DEPTH):
        g.vwait(f"S{L-DIN}")
        stream_issue(L)
    if 'q' not in o['abl']:
        g.lds_wait_ge(CNT + 8, 1, sleep=2)
    e(f"v_lshlrev_b32 v{V_TA}, 4, v{V_C}")
    e(f"ds_read_b128 {vr(V_Q)}, v{V_TA} offset:{QB}")
    e(f"v_mov_b32 v{V_M}, 0xff800000")
    e("s_waitcnt lgkmcnt(0)")
    ts(1)
    nxt_issue = APF + DEPTH
    for beta in range(16):
        for t in range(16):
            L = 16 * beta + t
            k, r = dest(L)
            g.vwait(f"S{L}")
            if k == "a":
                for j in range(4):
                    e(f"v_accvgpr_read_b32 v{V_D+j + 4*(t&1)}, a{r+j}")
                r = V_D + 4 * (t & 1)
            e(f"v_dot2_f32_bf16 v{V_A+t}, v{r}, v{V_Q}, 0")
            for j in range(1, 4):
                e(f"v_dot2_f32_bf16 v{V_A+t}, v{r+j}, v{V_Q+j}, v{V_A+t}")
            if k == "v":
                stream_issue(nxt_issue)
                nxt_issue += 1
        g.nop(3)
        A = V_A
        for p in range(8):
            e(f"v_add_f32_dpp v{A+2*p}, v{A+2*p}, v{A+2*p} row_ror:8 row_mask:0xf bank_mask:0x3")
            e(f"v_add_f32_dpp v{A+2*p}, v{A+2*p+1}, v{A+2*p+1} row_ror:8 row_mask:0xf bank_mask:0xc")
        for p in range(4):
            e(f"v_add_f32_dpp v{A+4*p}, v{A+4*p}, v{A+4*p} row_shl:4 row_mask:0xf bank_mask:0x5")
            e(f"v_add_f32_dpp v{A+4*p}, v{A+4*p+2}, v{A+4*p+2} row_shr:4 row_mask:0xf bank_mask:0xa")
        g.nop(1)
        for p in range(4):
            e(f"v_add_f32_dpp v{A+4*p}, v{A+4*p}, v{A+4*p} quad_perm:[1,0,3,2] row_mask:0xf bank_mask:0xf")
        for p in range(2):
            e(f"v_cndmask_b32 v{A+8*p}, v{A+8*p}, v{A+8*p+4}, s[{S_ODD}:{S_ODD+1}]")
        g.nop(1)
        for p in range(2):
            e(f"v_add_f32_dpp v{A+8*p}, v{A+8*p}, v{A+8*p} quad_perm:[2,3,0,1] row_mask:0xf bank_mask:0xf")
        e(f"v_cndmask_b32 v{V_TA}, v{A}, v{A+8}, s[{S_TWO}:{S_TWO+1}]")
        g.bf16r(V_TA, V_TA)
        e(f"v_mul_f32 v{V_TA}, 0x3db504f3, v{V_TA}")
        g.bf16r(V_TA, V_TA)
        e(f"v_max_f32 v{V_M}, v{V_M}, v{V_TA}")
        e(f"ds_write_b32 v{V_PDW}, v{V_TA} offset:{PD + beta*256}")
    ts(2)
    LOG2E = "0x3fb8aa3b"
    S = V_A
    for k in range(16):
        e(f"ds_read_b32 v{S+k}, v{V_PDW} offset:{PD + k*256}")
    g.wave_reduce(V_M, "max")
    e(f"v_mov_b32 v{V_TE}, 0")
    e("s_waitcnt lgkmcnt(0)")
    for k in range(16):
        t = V_TA + (k & 1)
        e(f"v_sub_f32 v{t}, v{S+k}, v{V_M}")
        e(f"v_mul_f32 v{t}, {LOG2E}, v{t}")
        e(f"v_exp_f32 v{t}, v{t}")
        g.nop(1)
        e(f"v_add_f32 v{V_TE}, v{V_TE}, v{t}")
    g.wave_reduce(V_TE, "add")
    e(f"v_mov_b32 v{V_TA}, v{V_M}")
    e(f"v_mov_b32 v{V_TB}, v{V_TE}")
    e(f"s_lshl_b32 s72, s{S_W}, 3")
    e(f"v_mov_b32 v{V_TC}, s72")
    e(f"ds_write_b64 v{V_TC}, v[{V_TA}:{V_TB}] offset:{SM}")
    g.lds_arrive(CNT + 4)
    g.lds_wait_ge(CNT + 4, 4, sleep=0)
    X = V_D
    e(f"ds_read_b128 {vr(X)}, v{V_ZERO} offset:{SM}")
    e(f"ds_read_b128 {vr(X+4)}, v{V_ZERO} offset:{SM+16}")
    e("s_waitcnt lgkmcnt(0)")
    e(f"v_max3_f32 v{V_TC}, v{X}, v{X+2}, v{X+4}")
    e(f"v_max_f32 v{V_TC}, v{V_TC}, v{X+6}")
    e(f"v_mov_b32 v{V_TE}, 0")
    for w in range(4):
        e(f"v_sub_f32 v{V_TA}, v{X+2*w}, v{V_TC}")
        e(f"v_mul_f32 v{V_TA}, {LOG2E}, v{V_TA}")
        e(f"v_exp_f32 v{V_TA}, v{V_TA}")
        g.nop(1)
        e(f"v_fmac_f32 v{V_TE}, v{V_TA}, v{X+2*w+1}")
    e(f"v_rcp_f32 v{V_TD}, v{V_TE}")
    g.nop(1)
    e(f"v_fma_f32 v{V_TA}, -v{V_TE}, v{V_TD}, 1.0")
    e(f"v_fmac_f32 v{V_TD}, v{V_TA}, v{V_TD}")
    for k in range(16):
        t = S + k
        e(f"v_sub_f32 v{t}, v{t}, v{V_TC}")
        e(f"v_mul_f32 v{t}, {LOG2E}, v{t}")
        e(f"v_exp_f32 v{t}, v{t}")
        g.nop(1)
        e(f"v_mul_f32 v{t}, v{t}, v{V_TD}")
        e(f"v_cvt_pk_bf16_f32 v{t}, v{t}, v{t}")
        e(f"ds_write_b32 v{V_PDW}, v{t} offset:{PD + k*256}")
    for j in range(4):
        e(f"v_mov_b32 v{V_ACC+j}, 0")
    wo_srd()
    e("s_waitcnt lgkmcnt(0)")
    e(f"ds_read_b128 {vr(V_DUP)}, v{V_DUPP} offset:{PD}")
    for n in range(64):
        cur = V_DUP + 4 * (n & 1)
        nxt = V_DUP + 4 * ((n + 1) & 1)
        e("s_waitcnt lgkmcnt(0)")
        if n < 63:
            e(f"ds_read_b128 {vr(nxt)}, v{V_DUPP} offset:{PD + (n+1)*64}")
        for d in range(4):
            L = 256 + 4 * n + d
            k, r = dest(L)
            fr = V_FRAG + 4 * (d & 1)
            g.frag(fr, cur + d)
            g.vwait(f"S{L}")
            g.nop(2)
            g.mfma(V_ACC, fr, vr(r))
            stream_issue(nxt_issue)
            nxt_issue += 1
        if o["woburst"]:
            B_ = o["woburst"]
            if n >= 4 and (n - 4) % 2 == 0 and (n - 4) // 2 * B_ < 32:
                for k in range(B_):
                    wo_issue((n - 4) // 2 * B_ + k)
        elif 4 <= n < 36:
            wo_issue(n - 4)
        if n == 3 and o["wosync"]:
            g.lds_arrive(CNT + 20)
        if o["early"] and n == o["early"]:
            g.lds_arrive(CNT + 12)
        if n == 24 and o["late"]:
            g.lds_arrive(CNT + 16)
    ts(3)
    g.nop(10)
    e(f"s_lshl_b32 s72, s{S_W}, 9")
    e(f"v_add_u32 v{V_TA}, s72, v{V_DW}")
    e(f"ds_write_b128 v{V_TA}, {vr(V_ACC)} offset:{OP}")

    g.lab("L_tail")
    if 't' in o['abl']:
        e("s_endpgm")
    e("s_waitcnt vmcnt(0) lgkmcnt(0)")
    g.vm = {"C": [], "A": [], "B": []}
    e("s_barrier")
    R = V_D
    for w in range(4):
        e(f"ds_read_b64 {vr(R+2*w,2)}, v{V_L8} offset:{OP + w*512}")
    e(f"ds_read_b64 {vr(R+8,2)}, v{V_ZERO} offset:{CNT+24}")
    e(f"s_lshl_b32 s72, s{S_W}, 9")
    e(f"v_add_u32 v{V_TD}, s72, v{V_L8}")
    if not o["early"]:
        lb = g.newlab("L_pf")
        e(f"s_cmp_eq_u32 s{S_W}, 4")
        e(f"s_cbranch_scc0 {lb}")
        e("s_lshl_b32 s72, s2, 3")
        e(f"s_add_u32 s72, s72, {DFL}")
        flag_set("s72")
        g.lab(lb)
    e("s_waitcnt lgkmcnt(0)")
    for j in range(2):
        e(f"v_add_f32 v{R+j}, v{R+j}, v{R+2+j}")
        e(f"v_add_f32 v{R+4+j}, v{R+4+j}, v{R+6+j}")
        e(f"v_add_f32 v{R+j}, v{R+j}, v{R+4+j}")
        e(f"v_cvt_pk_bf16_f32 v{R+j}, v{R+j}, v{R+j}")
    e(f"ds_write_b64 v{V_TD}, {vr(R,2)} offset:{OD}")
    for j in range(4):
        e(f"v_mov_b32 v{V_ACC+j}, 0")
    e("s_waitcnt lgkmcnt(0)")
    e(f"ds_read_b128 {vr(V_DUP)}, v{V_DUPO} offset:{OD}")
    e(f"v_lshrrev_b32 v{V_TA}, 2, v{V_C}")
    e(f"s_lshl_b32 s72, s{S_W}, 2")
    e(f"v_add_u32 v{V_TA}, s72, v{V_TA}")
    e(f"v_lshlrev_b32 v{V_TA}, 13, v{V_TA}")
    e(f"v_and_b32 v{V_TB}, 3, v{V_C}")
    e(f"v_lshl_add_u32 v{V_TA}, v{V_TB}, 6, v{V_TA}")
    e(f"v_and_b32 v{V_TB}, 1, v{V_G}")
    e(f"v_lshl_add_u32 v{V_TA}, v{V_TB}, 5, v{V_TA}")
    e(f"v_lshrrev_b32 v{V_TB}, 1, v{V_G}")
    e(f"v_lshl_add_u32 v{V_TA}, v{V_TB}, 4, v{V_TA}")
    e(f"s_lshl_b32 s{S_TMP}, s{S_B}, 18")
    e(f"s_lshl_b32 s72, s{S_H}, 8")
    e(f"s_add_u32 s{S_TMP}, s{S_TMP}, s72")
    e(f"s_add_u32 s{S_TMP}, s{S_TMP}, {AP}")
    e(f"s_mov_b32 s{S_HI}, 0")
    e(f"s_mov_b32 s{S_HI+1}, -1")
    for i4 in range(8):
        cur = V_DUP + 4 * (i4 & 1)
        nxt = V_DUP + 4 * ((i4 + 1) & 1)
        e("s_waitcnt lgkmcnt(0)")
        if i4 < 7:
            e(f"ds_read_b128 {vr(nxt)}, v{V_DUPO} offset:{OD + (i4+1)*64}")
        for ii in range(4):
            i = 4 * i4 + ii
            fr = V_FRAG + 4 * (i & 1)
            g.frag(fr, cur + ii)
            g.nop(2)
            g.mfma(V_ACC, fr, ar(4 * i))
    g.nop(10)
    e(f"v_cndmask_b32 v{R+6}, v{V_ACC}, v{V_ACC+2}, s[{S_HI}:{S_HI+1}]")
    e(f"v_cndmask_b32 v{R+7}, v{V_ACC+1}, v{V_ACC+3}, s[{S_HI}:{S_HI+1}]")
    e(f"buffer_store_dwordx4 {vr(R+6)}, v{V_TA}, {srd(sWS)}, s{S_TMP} offen sc1")
    e(f"s_cmp_eq_u32 s{S_W}, 4")
    e("s_cbranch_scc0 L_fin")
    e(f"v_and_b32 v{V_TA}, 31, v{V_LANE}")
    e(f"v_lshlrev_b32 v{V_TA}, 3, v{V_TA}")
    e(f"s_lshl_b32 s74, s{S_B}, 8")
    e(f"s_add_u32 s74, s74, {DFL}")
    flag_poll(V_TA, "s74", o["dsleep"])
    ts(11)
    e("s_lshl_b32 s72, s2, 13")
    e(f"s_add_u32 s72, s72, {AP}")
    O = V_TA
    gather_poll("s72", 1024, V_WIN, V_WIN + 32, O)
    for sw in ("v_permlane32_swap_b32", "v_permlane16_swap_b32"):
        for j in range(2):
            e(f"v_mov_b32 v{V_TC+j}, v{O+j}")
        g.nop(2)
        for j in range(2):
            e(f"{sw} v{O+j}, v{V_TC+j}")
        g.nop(1)
        for j in range(2):
            e(f"v_add_f32 v{O+j}, v{O+j}, v{V_TC+j}")
    for j in range(2):
        g.bf16r(O + j, O + j)
        e(f"v_add_f32 v{O+j}, v{O+j}, v{V_FX+j}")
        g.bf16r(O + j, O + j)
        e(f"v_add_f32 v{O+j}, v{O+j}, v{V_FB+j}")
    e(f"v_cvt_pk_bf16_f32 v{O}, v{O}, v{O+1}")
    e(f"v_lshlrev_b32 v{V_TC}, 2, v{V_C}")
    e("s_lshl_b32 s73, s2, 6")
    e("s_mov_b64 exec, 0xffff")
    e(f"buffer_store_dword v{O}, v{V_TC}, {srd(sO)}, s73 offen")
    e("s_mov_b64 exec, -1")
    g.lab("L_fin")
    ts(15)
    g.lab("L_done")
    e("s_endpgm")

    g.lab("L_aux_pro")
    tsv[0] = 127
    g.vm_restore(vm0)
    e("s_setprio 3")
    e(f"v_lshl_add_u32 v{V_TE}, v{V_G}, 15, v{V_TB}")
    e(f"s_lshl_b32 s72, s{S_B}, 2")
    e(f"s_add_u32 s72, s72, s{S_WA}")
    e(f"s_lshl_b32 s72, s72, 18")
    e(f"s_lshl_b32 s73, s{S_H}, 8")
    e("s_add_u32 s72, s72, s73")
    e(f"s_add_u32 s{sW}, s10, s72\ns_addc_u32 s{sW+1}, s11, 0")
    e(f"s_sub_u32 s{sW+2}, 0x800000, s72")
    for i in range(8):
        e(f"s_mov_b32 s{S_TMP}, {(16*(i>>2)+(i&3))*8192}")
        if 'Q' not in o['abl']:
            g.vissue(f"buffer_load_dwordx4 {ar(4*i)}, v{V_TE}, {srd(sW)}, s{S_TMP} offen {WF}", f"wq{i}")
    e(f"s_or_b32 s72, s2, s{S_WA}")
    e("s_cmp_eq_u32 s72, 0")
    e("s_cbranch_scc0 L_no_nonce")
    e("s_memrealtime s[72:73]")
    e("s_waitcnt lgkmcnt(0)")
    e("s_or_b32 s72, s72, 1")
    e(f"v_mov_b32 v{V_NONL}, s72")
    e(f"v_mov_b32 v{V_NONL+1}, s73")
    e("s_mov_b64 exec, 1")
    e(f"buffer_store_dwordx2 {vr(V_NONL,2)}, v{V_ZERO}, {srd(sDBG)}, 0 offen offset:8 sc1")
    e("s_mov_b64 exec, -1")
    g.nop(2)
    g.lab("L_no_nonce")
    g.vissue(f"buffer_load_dwordx2 {vr(V_NONL,2)}, v{V_ZERO}, {srd(sDBG)}, 0 offen offset:8 sc1", "non")
    e("s_lshr_b32 s72, s2, 3")
    e("s_and_b32 s73, s2, 7")
    e("s_mul_i32 s73, s73, 14")
    e("s_add_u32 s74, s73, s72")
    e("s_sub_u32 s75, s74, 14")
    e(f"s_and_b32 s{S_T1}, s74, 3")
    e(f"s_lshr_b32 s{S_T2}, s74, 2")
    e("s_cmp_lt_u32 s72, 14")
    e(f"s_cselect_b32 s{S_ROLE}, 1, 0")
    e("s_cbranch_scc1 L_role_done")
    e("s_cmp_lt_u32 s72, 28")
    e(f"s_cselect_b32 s{S_ROLE}, 2, 0")
    e(f"s_lshr_b32 s{S_T1}, s75, 3")
    e(f"s_and_b32 s{S_T2}, s75, 7")
    g.lab("L_role_done")
    if 'j' in o['abl']:
        e(f"s_mov_b32 s{S_ROLE}, 3")
    common_consts()
    e(f"v_and_b32 v{V_TC}, 3, v{V_TC}")
    e(f"v_lshlrev_b32 v{V_TA}, 4, v{V_G}")
    e(f"v_lshrrev_b32 v{V_TB}, 3, v{V_C}")
    e(f"v_lshl_add_u32 v{V_JOB}, v{V_TB}, 12, v{V_TA}")
    e(f"v_lshrrev_b32 v{V_TA}, 1, v{V_G}")
    e(f"v_lshl_add_u32 v{V_REDW}, v{V_TA}, 9, v{V_DW}")
    e(f"v_lshl_add_u32 v{V_REDW}, v{V_TC}, 12, v{V_REDW}")
    e(f"v_lshl_add_u32 v{V_TA16}, v{V_TC}, 10, v{V_L16}")
    ln_own_row()

    def tile_mfma(vaddr, nblk, abase, tagp, D):
        if o["cprio"] is not None and tagp == "jt":
            e(f"s_setprio {o['cprio']}")
        for j in range(16):
            e(f"v_mov_b32 v{D+j}, 0")
        seq = [(i4, pr) for i4 in range(nblk) for pr in range(4)]
        e(f"ds_read_b128 {vr(V_DUP)}, v{vaddr} offset:0")
        for n, (i4, pr) in enumerate(seq):
            cur = V_DUP + 4 * (n & 1)
            nxt = V_DUP + 4 * ((n + 1) & 1)
            e("s_waitcnt lgkmcnt(0)")
            if n + 1 < len(seq):
                i4n, prn = seq[n + 1]
                e(f"ds_read_b128 {vr(nxt)}, v{vaddr} offset:{prn*8192 + i4n*64}")
            for ii in range(4):
                i = 4 * i4 + ii
                fr = V_FRAG + 4 * (ii & 1)
                g.frag(fr, cur + ii)
                g.vwait(f"{tagp}{i}")
                g.nop(2)
                g.mfma(D + 4 * pr, fr, ar(abase + 4 * i))
        g.nop(10)
        if o["cprio"] is not None and tagp == "jt":
            e("s_setprio 3")
        for pr in range(4):
            e(f"ds_write_b128 v{V_REDW}, {vr(D+4*pr)} offset:{RED + pr*1024}")
        g.aux_sync()
        for w in range(4):
            e(f"ds_read_b128 {vr(D+4*w)}, v{V_TA16} offset:{RED + w*4096}")
        e("s_waitcnt lgkmcnt(0)")
        for j in range(4):
            e(f"v_add_f32 v{D+j}, v{D+j}, v{D+4+j}")
            e(f"v_add_f32 v{D+8+j}, v{D+8+j}, v{D+12+j}")
        for j in range(4):
            e(f"v_add_f32 v{D+j}, v{D+j}, v{D+8+j}")

    ts(4)
    QD = V_WIN
    e(f"s_lshl_b32 s72, s{S_B}, 9")
    e(f"s_lshl_b32 s73, s{S_WA}, 7")
    e("s_add_u32 s72, s72, s73")
    e(f"s_add_u32 s72, s72, {AT}")
    e(f"v_add_u32 v{V_TE}, s72, v{V_JOB}")
    tile_mfma(V_TE, 2, 0, "wq", QD)
    ts(5)
    e(f"s_lshl_b32 s72, s{S_H}, 3")
    e(f"s_add_u32 s72, s72, s{S_B}")
    e(f"s_lshl_b32 s{S_TMP}, s72, 12")
    e(f"s_add_u32 s{S_TMP}, s{S_TMP}, {QPW}")
    g.vissue(f"buffer_store_dwordx4 {vr(QD)}, v{V_TA16}, {srd(sWS)}, s{S_TMP} offen sc1", "qst")
    g.vwait("non")
    if o["non4"]:
        e(f"s_cmp_eq_u32 s{S_WA}, 0")
        e("s_cbranch_scc0 L_non_skip")
    ok = g.newlab("L_ok")
    sp = g.newlab("L_spin")
    e("s_mov_b32 s73, 0")
    g.lab(sp)
    e(f"v_readfirstlane_b32 s{S_NON}, v{V_NONL}")
    e(f"v_readfirstlane_b32 s{S_NON+1}, v{V_NONL+1}")
    g.nop(1)
    e(f"s_cmp_lg_u32 s{S_NON}, 0")
    e(f"s_cbranch_scc1 {ok}")
    e("s_add_u32 s73, s73, 1")
    e("s_cmp_ge_u32 s73, 0x4000")
    e(f"s_cbranch_scc1 {ok}")
    e(f"buffer_load_dwordx2 {vr(V_NONL,2)}, v{V_ZERO}, {srd(sDBG)}, 0 offen offset:8 sc1")
    e("s_waitcnt vmcnt(0)")
    e(f"s_branch {sp}")
    g.lab(ok)
    e(f"v_mov_b32 v{V_NONL}, s{S_NON}")
    e(f"v_mov_b32 v{V_NONL+1}, s{S_NON+1}")
    e(f"ds_write_b64 v{V_ZERO}, {vr(V_NONL,2)} offset:{CNT+24}")
    g.lab("L_non_skip")
    if o["qflag1"]:
        e(f"s_lshl_b32 s74, s{S_H}, 6")
        e(f"s_add_u32 s74, s74, {QFL}")
        e(f"s_lshl_b32 s73, s{S_B}, 3")
        e("s_add_u32 s73, s73, s74")
    else:
        e(f"s_lshl_b32 s72, s{S_H}, 2")
        e(f"s_add_u32 s73, s72, s{S_WA}")
        e(f"s_lshl_b32 s73, s73, 3")
        e(f"s_add_u32 s73, s73, s{S_B}")
        e(f"s_lshl_b32 s73, s73, 3")
        e(f"s_add_u32 s73, s73, {QFL}")
        e(f"s_lshr_b32 s74, s{S_B}, 1")
        e("s_add_u32 s74, s74, s72")
        e("s_lshl_b32 s74, s74, 6")
        e(f"s_add_u32 s74, s74, {QFL}")
    e(f"v_and_b32 v{V_TA}, 7, v{V_LANE}")
    e(f"v_lshlrev_b32 v{V_TA}, 3, v{V_TA}")
    g.vwait("qst")
    if o["qflag1"]:
        g.aux_sync()
    else:
        flag_set("s73")
    ts(6)
    e(f"s_cmp_eq_u32 s{S_WA}, 0")
    e("s_cbranch_scc0 L_no_gather")
    if o["qflag1"]:
        flag_set("s73")
    flag_poll(V_TA, "s74", 0)
    ts(7)
    e(f"s_lshl_b32 s72, s{S_H}, 15")
    e(f"s_lshl_b32 s73, s{S_B}, 9")
    e("s_add_u32 s72, s72, s73")
    for k8 in range(8):
        e(f"s_add_u32 s{S_TMP}, s72, {QPW + k8*4096}")
        e(f"buffer_load_dwordx2 {vr(QD+2*k8,2)}, v{V_L8}, {srd(sWS)}, s{S_TMP} offen sc1")
    e(f"v_lshlrev_b32 v{V_TA}, 2, v{V_LANE}")
    e("s_waitcnt vmcnt(0)")
    for k8 in range(1, 8):
        for j in range(2):
            e(f"v_add_f32 v{QD+j}, v{QD+j}, v{QD+2*k8+j}")
    e(f"v_cvt_pk_bf16_f32 v{QD}, v{QD}, v{QD+1}")
    e(f"ds_write_b32 v{V_TA}, v{QD} offset:{QB}")
    g.lds_arrive(CNT + 8)
    g.lab("L_no_gather")
    e(f"s_setprio {o['auxprio']}")
    ts(1)

    JT = 64
    D = V_D

    def job_store_signal(role, off):
        if o["contig"]:
            if role == "A":
                e(f"s_lshl_b32 s{S_TMP}, s{S_T2}, 2")
                e(f"s_add_u32 s{S_TMP}, s{S_TMP}, s{S_T1}")
            else:
                e(f"s_lshl_b32 s{S_TMP}, s{S_T1}, 3")
                e(f"s_add_u32 s{S_TMP}, s{S_TMP}, s{S_T2}")
            e(f"s_lshl_b32 s{S_TMP}, s{S_TMP}, 12")
            e(f"s_add_u32 s{S_TMP}, s{S_TMP}, {HP if role == 'A' else MP}")
            e(f"v_mov_b32 v{V_TA}, v{V_TA16}")
        else:
            rowb = 3584 * 4 if role == "A" else 1024 * 4
            e(f"v_and_b32 v{V_TA}, 255, v0")
            e(f"v_lshrrev_b32 v{V_TA}, 5, v{V_TA}")
            e(f"v_mul_u32_u24 v{V_TA}, {rowb}, v{V_TA}")
            e(f"v_and_b32 v{V_TB}, 31, v0")
            e(f"v_lshl_add_u32 v{V_TA}, v{V_TB}, 4, v{V_TA}")
            e(f"s_mul_i32 s{S_TMP}, s{S_T1}, {8*rowb}")
            e(f"s_lshl_b32 s73, s{S_T2}, 9")
            e(f"s_add_u32 s{S_TMP}, s{S_TMP}, s73")
            e(f"s_add_u32 s{S_TMP}, s{S_TMP}, {HP if role == 'A' else MP}")
        if 'S' in o['abl']:
            g.vwait_all()
            return
        g.vissue(f"buffer_store_dwordx4 {vr(D)}, v{V_TA}, {srd(sWS)}, s{S_TMP} offen sc1", "jst")
        g.vwait_all()
        g.aux_sync()
        lb = g.newlab("L_sig")
        e(f"s_cmp_eq_u32 s{S_WA}, 0")
        e(f"s_cbranch_scc0 {lb}")
        if role == "A":
            e(f"s_lshl_b32 s72, s{S_T2}, 5")
            e(f"s_lshl_b32 s73, s{S_T1}, 3")
            e("s_add_u32 s72, s72, s73")
            e(f"s_add_u32 s72, s72, {HFL}")
        else:
            e(f"s_lshr_b32 s72, s{S_T2}, 1")
            e("s_lshl_b32 s72, s72, 8")
            e(f"s_lshl_b32 s73, s{S_T1}, 4")
            e("s_add_u32 s72, s72, s73")
            e(f"s_and_b32 s73, s{S_T2}, 1")
            e("s_lshl_b32 s73, s73, 3")
            e("s_add_u32 s72, s72, s73")
            e(f"s_add_u32 s72, s72, {MFL}")
        flag_set("s72")
        g.lab(lb)

    e(f"s_cmp_eq_u32 s{S_ROLE}, 1")
    e("s_cbranch_scc0 L_not_a")
    g.role = "A"
    e(f"v_lshlrev_b32 v{V_TA}, 4, v{V_C}")
    e(f"v_mul_u32_u24 v{V_TE}, 28672, v{V_G}")
    e(f"v_add_u32 v{V_TE}, v{V_TE}, v{V_TA}")
    e(f"s_lshl_b32 s72, s{S_T1}, 2\ns_add_u32 s72, s72, s{S_WA}\ns_mul_i32 s72, s72, {64*7168}")
    e(f"s_lshl_b32 s73, s{S_T2}, 8\ns_add_u32 s72, s72, s73")
    e(f"s_add_u32 s{sW}, s16, s72\ns_addc_u32 s{sW+1}, s17, 0\ns_sub_u32 s{sW+2}, {1024*7168}, s72")
    for i in range(16):
        e(f"s_mov_b32 s{S_TMP}, {(16*(i>>2)+(i&3))*7168}")
        if 'L' not in o['abl']:
            g.vissue(f"buffer_load_dwordx4 {ar(JT+4*i)}, v{V_TE}, {srd(sW)}, s{S_TMP} offen {WF}", f"jt{i}")
    if o["cprio"] is not None:
        e(f"s_setprio {o['cprio']}")
    e(f"s_lshl_b32 s72, s{S_WA}, 13")
    e(f"s_add_u32 s72, s72, {AT}")
    e(f"v_add_u32 v{V_TD}, s72, v{V_L32}")
    e(f"v_add_u32 v{V_TE}, {AT2-AT}, v{V_TD}")
    for rr in range(2):
        for k in range(4):
            e(f"ds_read_b128 {vr(LE+4*k)}, v{V_TD} offset:{rr*4096 + (k>>1)*2048 + (k&1)*16}")
        e("s_waitcnt lgkmcnt(0)")
        for j in range(16):
            e(f"v_and_b32 v{LE+j}, s{S_HIM}, v{LE+j}")
        g.ln_core(LP, LE, LT)
        g.write_dup_row(LP, LE, V_TE, rr * 4096)
    e(f"s_lshl_b32 s72, s{S_T1}, 10")
    e(f"s_lshl_b32 s73, s{S_WA}, 8")
    e("s_add_u32 s72, s72, s73")
    e(f"s_add_u32 s72, s72, {AT2}")
    e(f"v_add_u32 v{V_TE}, s72, v{V_JOB}")
    g.aux_sync()
    tile_mfma(V_TE, 4, JT, "jt", D)
    job_store_signal("A", 0)
    e("s_branch L_job_done")
    g.role = "C"
    g.lab("L_not_a")
    e(f"s_cmp_eq_u32 s{S_ROLE}, 2")
    e("s_cbranch_scc0 L_job_n")
    g.role = "B"
    e(f"s_lshl_b32 s72, s{S_T1}, 2\ns_add_u32 s72, s72, s{S_WA}\ns_lshl_b32 s72, s72, 17")
    e(f"s_lshl_b32 s73, s{S_T2}, 8\ns_add_u32 s72, s72, s73")
    e(f"s_add_u32 s{sW}, s20, s72\ns_addc_u32 s{sW+1}, s21, 0\ns_sub_u32 s{sW+2}, {3584*2048}, s72")
    for i in range(16):
        e(f"s_mov_b32 s{S_TMP}, {(16*(i>>2)+(i&3))*2048}")
        if 'L' not in o['abl']:
            g.vissue(f"buffer_load_dwordx4 {ar(JT+4*i)}, v{V_W2K}, {srd(sW)}, s{S_TMP} offen {WF}", f"jt{i}")
    e(f"s_mov_b32 s{sB}, s18\ns_mov_b32 s{sB+1}, s19\ns_mov_b32 s{sB+2}, 7168\ns_mov_b32 s{sB+3}, 0x00020000")
    e(f"s_lshl_b32 s{S_TMP}, s{S_T1}, 9")
    B1 = LP
    g.vissue(f"buffer_load_dwordx2 {vr(B1,2)}, v{V_L8}, {srd(sB)}, s{S_TMP} offen", "b1")
    lb = g.newlab("L_bw")
    e(f"s_cmp_eq_u32 s{S_WA}, 0")
    e(f"s_cbranch_scc0 {lb}")
    e(f"v_and_b32 v{V_TA}, 7, v{V_LANE}")
    e(f"v_lshlrev_b32 v{V_TA}, 3, v{V_TA}")
    e(f"s_lshl_b32 s74, s{S_T1}, 6")
    e(f"s_add_u32 s74, s74, {HFL}")
    if 'S' not in o['abl']:
        flag_poll(V_TA, "s74", o["jsleep"])
    g.lab(lb)
    g.aux_sync()
    ts(8)
    HB = V_WIN
    e(f"v_lshrrev_b32 v{V_TC}, 5, v{V_LANE}")
    e(f"v_and_b32 v{V_TD}, 31, v{V_LANE}")
    e(f"v_lshlrev_b32 v{V_TD}, 4, v{V_TD}")
    if o["contig"]:
        e(f"v_lshl_add_u32 v{V_TD}, v{V_TC}, 14, v{V_TD}")
        e(f"s_lshl_b32 s72, s{S_T1}, 15")
        e(f"s_lshl_b32 s73, s{S_WA}, 10")
        e(f"s_add_u32 s72, s72, s73")
        for bb in range(2):
            for kq in range(4):
                e(f"s_add_u32 s{S_TMP}, s72, {HP + kq*4096 + bb*512}")
                g.vissue(f"buffer_load_dwordx4 {vr(HB+(bb*4+kq)*4)}, v{V_TD}, {srd(sWS)}, s{S_TMP} offen sc1", f"hp{bb*4+kq}")
    else:
        e(f"s_mul_i32 s72, s{S_WA}, {2*3584*4}")
        e(f"s_lshl_b32 s73, s{S_T1}, 10")
        e(f"s_add_u32 s72, s72, s73")
        for bb in range(2):
            for kq in range(4):
                e(f"s_add_u32 s{S_TMP}, s72, {HP + (kq*8+bb)*3584*4}")
                g.vissue(f"buffer_load_dwordx4 {vr(HB+(bb*4+kq)*4)}, v{V_L16}, {srd(sWS)}, s{S_TMP} offen sc1", f"hp{bb*4+kq}")
    T = LE
    g.vwait("b1")
    e(f"v_lshlrev_b32 v{T}, 16, v{B1}")
    e(f"v_and_b32 v{T+1}, s{S_HIM}, v{B1}")
    e(f"v_lshlrev_b32 v{T+2}, 16, v{B1+1}")
    e(f"v_and_b32 v{T+3}, s{S_HIM}, v{B1+1}")
    e(f"s_lshl_b32 s72, s{S_WA}, 13")
    e(f"s_add_u32 s72, s72, {AT2}")
    e(f"v_add_u32 v{V_TD}, s72, v{V_L16}")
    e(f"v_mov_b32 v{V_TA}, 0x3d372713")
    g.vwait("hp7")
    for bb in range(2):
        hb = HB + bb * 16
        for j in range(4):
            x = T + 4 + 4 * bb + j
            t = T + 12 + j
            e(f"v_add_f32 v{x}, v{hb+j}, v{hb+4+j}")
            e(f"v_add_f32 v{x}, v{x}, v{hb+8+j}")
            e(f"v_add_f32 v{x}, v{x}, v{hb+12+j}")
            g.bf16r(x, x)
            e(f"v_add_f32 v{x}, v{x}, v{T+j}")
            g.bf16r(x, x)
            e(f"v_mul_f32 v{t}, v{x}, v{x}")
            e(f"v_mul_f32 v{t}, v{t}, v{x}")
            e(f"v_fma_f32 v{t}, v{t}, v{V_TA}, v{x}")
            e(f"v_mul_f32 v{t}, 0xc0135761, v{t}")
            e(f"v_exp_f32 v{t}, v{t}")
            g.nop(1)
            e(f"v_add_f32 v{t}, 1.0, v{t}")
            e(f"v_rcp_f32 v{t}, v{t}")
            g.nop(1)
            e(f"v_mul_f32 v{x}, v{x}, v{t}")
            e(f"v_cvt_pk_bf16_f32 v{x}, v{x}, v{x}")
        e(f"ds_write_b128 v{V_TD}, {vr(T+4+4*bb)} offset:{bb*4096}")
    e(f"s_lshl_b32 s73, s{S_WA}, 8")
    e(f"s_add_u32 s72, s73, {AT2}")
    e(f"v_add_u32 v{V_TE}, s72, v{V_JOB}")
    g.aux_sync()
    tile_mfma(V_TE, 4, JT, "jt", D)
    job_store_signal("B", 4)
    e("s_branch L_job_done")
    g.role = "C"
    g.lab("L_job_n")
    e(f"s_cmp_eq_u32 s{S_WA}, 0")
    e("s_cbranch_scc0 L_job_done")
    if 'j' in o['abl'] or 'S' in o['abl']:
        e("s_branch L_job_done")
    e("s_lshr_b32 s72, s2, 3")
    e(f"s_sub_u32 s{S_T2}, s72, 28")
    e(f"s_and_b32 s{S_T1}, s2, 7")
    e(f"s_mov_b32 s{sB}, s22\ns_mov_b32 s{sB+1}, s23\ns_mov_b32 s{sB+2}, 2048\ns_mov_b32 s{sB+3}, 0x00020000")
    e(f"s_lshl_b32 s72, s{S_T2}, 9")
    B2R = LP
    e(f"buffer_load_dwordx2 {vr(B2R,2)}, v{V_L8}, {srd(sB)}, s72 offen")
    e(f"v_min_u32 v{V_TA}, 27, v{V_LANE}")
    e(f"v_lshlrev_b32 v{V_TA}, 3, v{V_TA}")
    e(f"s_lshl_b32 s74, s{S_T2}, 8")
    e(f"s_add_u32 s74, s74, {MFL}")
    flag_poll(V_TA, "s74", o["jsleep"])
    ts(9)
    e(f"s_lshl_b32 s72, s{S_T1}, 12")
    e(f"s_lshl_b32 s73, s{S_T2}, 10")
    e("s_add_u32 s72, s72, s73")
    M = V_WIN
    if o["contig"]:
        e(f"v_lshrrev_b32 v{V_TC}, 5, v{V_LANE}")
        e(f"v_and_b32 v{V_TD}, 31, v{V_LANE}")
        e(f"v_lshlrev_b32 v{V_TD}, 4, v{V_TD}")
        e(f"v_lshl_add_u32 v{V_TD}, v{V_TC}, 12, v{V_TD}")
        e(f"s_lshl_b32 s73, s{S_T2}, 13")
        e(f"s_lshl_b32 s74, s{S_T1}, 9")
        e("s_add_u32 s73, s73, s74")
        for ks in range(14):
            e(f"s_add_u32 s{S_TMP}, s73, {MP + ks*8*4096}")
            e(f"buffer_load_dwordx4 {vr(M+4*ks)}, v{V_TD}, {srd(sWS)}, s{S_TMP} offen sc1")
    else:
        for ks in range(14):
            e(f"s_add_u32 s{S_TMP}, s72, {MP + ks*8*4096}")
            e(f"buffer_load_dwordx4 {vr(M+4*ks)}, v{V_L16}, {srd(sWS)}, s{S_TMP} offen sc1")
    e(f"v_lshlrev_b32 v{T}, 16, v{B2R}")
    e(f"v_and_b32 v{T+1}, s{S_HIM}, v{B2R}")
    e(f"v_lshlrev_b32 v{T+2}, 16, v{B2R+1}")
    e(f"v_and_b32 v{T+3}, s{S_HIM}, v{B2R+1}")
    e("s_waitcnt vmcnt(0)")
    for ks in range(1, 14):
        for j in range(4):
            e(f"v_add_f32 v{M+j}, v{M+j}, v{M+4*ks+j}")
    for j in range(4):
        g.bf16r(M + j, M + j)
        e(f"v_add_f32 v{M+j}, v{M+j}, v{T+j}")
        g.bf16r(M + j, M + j)
    e(f"s_add_u32 s{S_TMP}, s72, {BFIN}")
    e(f"buffer_store_dwordx4 {vr(M)}, v{V_L16}, {srd(sWS)}, s{S_TMP} offen sc1")
    e(f"s_lshl_b32 s72, s{S_T1}, 2")
    e(f"s_add_u32 s72, s72, s{S_T2}")
    e("s_lshl_b32 s72, s72, 6")
    e(f"s_add_u32 s72, s72, {BFL}")
    e("s_waitcnt vmcnt(0)")
    flag_set("s72")
    g.lab("L_job_done")
    ts(2)
    if o["wosync"]:
        g.lds_wait_ge(CNT + 20, 1, sleep=64)
    wo_srd()
    for i in range(32):
        wo_issue(i)
    e(f"s_cmp_eq_u32 s{S_WA}, 0")
    e("s_cbranch_scc0 L_tail")
    e(f"v_lshlrev_b32 v{V_TA}, 2, v{V_C}")
    e("s_lshl_b32 s73, s2, 6")
    e(f"buffer_load_dword v{V_FB}, v{V_TA}, {srd(sX)}, s73 offen")
    e(f"s_lshl_b32 s74, s{S_B}, 2")
    e(f"s_lshr_b32 s72, s{S_H}, 3")
    e("s_add_u32 s74, s74, s72")
    e("s_lshl_b32 s74, s74, 6")
    e(f"s_add_u32 s74, s74, {BFL}")
    e("s_waitcnt vmcnt(0)")
    ts(10)
    e(f"v_lshlrev_b32 v{V_FX}, 16, v{V_FB}")
    e(f"v_and_b32 v{V_FX+1}, s{S_HIM}, v{V_FB}")
    g.lds_wait_ge(CNT + 16, 1, sleep=64)
    if 'j' not in o['abl'] and 'S' not in o['abl']:
        flag_poll(V_ZERO, "s74", 64)
    e(f"v_lshlrev_b32 v{V_TA}, 3, v{V_C}")
    e("s_lshl_b32 s72, s2, 7")
    e(f"s_add_u32 s72, s72, {BFIN}")
    e(f"buffer_load_dwordx2 {vr(V_FB,2)}, v{V_TA}, {srd(sWS)}, s72 offen sc1")
    if o["early"]:
        g.lds_wait_ge(CNT + 12, 4, sleep=8)
        e("s_lshl_b32 s72, s2, 3")
        e(f"s_add_u32 s72, s72, {DFL}")
        flag_set("s72")
    ts(3)
    e("s_branch L_tail")
    return g


HEADER = open("cdna_kernels/" + NAME + ".s.ref").read().split("; Override launch geometry")[0]
BLOCK = 512


def full_asm(opt=None):
    g = build(opt)
    s = HEADER
    s += "; generated by gen/gen7.py (own generator script)\n"
    s += "; One workgroup per (batch, head), 8 waves: waves 0-3 stream K then V (rolling window of nt loads, dot2 scores,\n"
    s += "; exact two-pass softmax, P.V and all GEMVs as MFMAs with a sparse one-hot A operand); waves 4-7 do the side work\n"
    s += "; (q-projection tile + exchange, MLP tiles, reductions). Cross-workgroup hand-offs use sc1 stores/loads tagged with a\n"
    s += "; per-launch nonce published in d_debug; all spins are bounded.\n"
    s += f"; @launch grid=(256,1,1) block=({BLOCK},1,1) lds={LDS_BYTES}\n"
    s += '.amdgcn_target "amdgcn-amd-amdhsa--gfx950"\n.text\n'
    s += f".globl {KNAME}\n.p2align 8\n.type {KNAME},@function\n{KNAME}:\n"
    s += "\n".join(g.L) + "\n"
    s += f""".section .rodata,"a"
.p2align 6
.amdhsa_kernel {KNAME}
  .amdhsa_next_free_vgpr 256
  .amdhsa_next_free_sgpr 102
  .amdhsa_accum_offset 128
  .amdhsa_group_segment_fixed_size 0
  .amdhsa_kernarg_size 104
  .amdhsa_user_sgpr_count 2
  .amdhsa_user_sgpr_kernarg_segment_ptr 1
  .amdhsa_system_sgpr_workgroup_id_x 1
.end_amdhsa_kernel
"""
    return s


if __name__ == "__main__":
    out = "cdna_kernels/" + NAME + ".s"
    open(out, "w").write(full_asm())
    print("wrote", out, os.path.getsize(out))
```
